```python
import torch

def _softmax(x, axis=-1):
    return torch.softmax(x, dim=axis)
def _gelu(x):
    return torch.nn.functional.gelu(x, approximate="tanh")
def _silu(x):
    return torch.nn.functional.silu(x)
def _sigmoid(x):
    return torch.sigmoid(x)
def _layernorm(x, axis=-1, eps=1e-5):
    m = x.mean(dim=axis, keepdim=True)
    v = x.var(dim=axis, keepdim=True, unbiased=False)
    return (x - m) / torch.sqrt(v + eps)
def _scatter_add(tgt, idx, src, axis=0):
    return tgt.clone().index_add_(axis, idx, src)
def _segment_sum(src, seg, n):
    out = torch.zeros((n,) + src.shape[1:], dtype=src.dtype)
    return out.index_add_(0, seg, src)
def _pad(x, pw):
    flat = tuple(v for pair in reversed(pw) for v in pair)
    return torch.nn.functional.pad(x, flat)

kernel_name = 'recurrent_scan__sliding_block_cached__mixer_s_mlp__prompt'

def setup_inputs():

    _w = (lambda a: (lambda t: t.to(torch.bfloat16) if t.is_floating_point() else t)(torch.as_tensor(a)))
    def _A_setup():
        B, Sq, D = 1, 2048, 512
        Hq, Hkv, Sk, Dh = 32, 8, 2048, 128
        assert Hq % Hkv == 0, (Hq, Hkv)
        return {
            "x": _w((lambda *s: torch.randn(*s, dtype=torch.bfloat16) * 0.05)(B, Sq, D)),
            "k_cache": _w((lambda *s: torch.randn(*s, dtype=torch.bfloat16) * 0.8)(B, Hkv, Sk, Dh)),
            "v_cache": _w((lambda *s: torch.randn(*s, dtype=torch.bfloat16) * 0.8)(B, Hkv, Sk, Dh)),
            "wq": _w((lambda *s: torch.randn(*s, dtype=torch.bfloat16) * 0.8)(D, Hq * Dh) * (D ** -0.5)),
            "wo": _w((lambda *s: torch.randn(*s, dtype=torch.bfloat16) * 0.8)(Hq * Dh, D) * ((Hq * Dh) ** -0.5)),
        }
    _A_in = _A_setup()

    def _B_setup():
        B, S, D, F = 1, 2048, 512, 1792
        return {
            "x":  _w((lambda *s: torch.randn(*s, dtype=torch.bfloat16) * 0.05)(B, S, D)),
            "w1": _w((lambda *s: torch.randn(*s, dtype=torch.bfloat16) * 3.2)(D, D) * (D ** -0.5)),
            "w2": _w((lambda *s: torch.randn(*s, dtype=torch.bfloat16) * 3.2)(D, D) * (D ** -0.5)),
            "w3": _w((lambda *s: torch.randn(*s, dtype=torch.bfloat16) * 3.2)(D, F) * (D ** -0.5)),
            "w4": _w((lambda *s: torch.randn(*s, dtype=torch.bfloat16) * 3.2)(F, D) * (F ** -0.5)),
        }
    _B_in = _B_setup()

    return {
        "A_x": _A_in["x"],
        "A_k_cache": _A_in["k_cache"],
        "A_v_cache": _A_in["v_cache"],
        "A_wq": _A_in["wq"],
        "A_wo": _A_in["wo"],
        "B_x": _B_in["x"],
        "B_w1": _B_in["w1"],
        "B_w2": _B_in["w2"],
        "B_w3": _B_in["w3"],
        "B_w4": _B_in["w4"],
    }

def reference(A_x, A_k_cache, A_v_cache, A_wq, A_wo, B_x, B_w1, B_w2, B_w3, B_w4):
    def _A_ref(x, k_cache, v_cache, wq, wo):
        B, Sq, D = x.shape
        Hq, Dh = 32, 128
        Hkv, Sk = k_cache.shape[1], k_cache.shape[2]
        W = min(4096, max(256, Sk // 4))
        rep = Hq // Hkv
        q = (lambda x, *d: x.permute(*d))((x @ wq).reshape(B, Sq, Hq, Dh), 0, 2, 1, 3)
        k = (lambda x, n, axis: torch.repeat_interleave(x, n, dim=axis))(k_cache[:, :, Sk - W:, :], rep, axis=1)
        v = (lambda x, n, axis: torch.repeat_interleave(x, n, dim=axis))(v_cache[:, :, Sk - W:, :], rep, axis=1)
        scores = torch.einsum("bhqd,bhkd->bhqk", q, k) * (Dh ** -0.5)
        p = _softmax(scores, axis=-1)
        o = torch.einsum("bhqk,bhkd->bhqd", p, v)
        return (lambda x, *d: x.permute(*d))(o, 0, 2, 1, 3).reshape(B, Sq, Hq * Dh) @ wo

    def _B_ref(x, w1, w2, w3, w4):
        B, S, D = x.shape
        h = _gelu(_layernorm(x, axis=-1) @ w1)
        c = D // 4
        g0 = _pad(h[:, :, 0*c:1*c], ((0, 0), (1, 0), (0, 0)))[:, :S, :]
        g1 = _pad(h[:, :, 1*c:2*c], ((0, 0), (0, 1), (0, 0)))[:, 1:, :]
        g2 = _pad(h[:, :, 2*c:3*c], ((0, 0), (2, 0), (0, 0)))[:, :S, :]
        g3 = _pad(h[:, :, 3*c:   ], ((0, 0), (0, 2), (0, 0)))[:, 2:, :]
        hs = torch.concatenate([g0, g1, g2, g3], axis=-1) @ w2
        x1 = x + hs
        h2 = _gelu(_layernorm(x1, axis=-1) @ w3) @ w4
        return x1 + h2

    x = A_x
    xn = _layernorm(x, axis=-1)
    s = _A_ref(xn, A_k_cache, A_v_cache, A_wq, A_wo)
    g = _silu(_B_ref(xn, B_w1, B_w2, B_w3, B_w4))
    return x + s * g
```

```python
import re

REG_RE = re.compile(r'^(-?)(abs\()?([vas])(\d+)\)?$')
RNG_RE = re.compile(r'^(-?)([vas])\[(\d+):(\d+)\]$')


def regs_of(tok):
    tok = tok.strip()
    m = RNG_RE.match(tok)
    if m:
        return {(m.group(2), i) for i in range(int(m.group(3)), int(m.group(4)) + 1)}
    m = REG_RE.match(tok)
    if m:
        return {(m.group(3), int(m.group(4)))}
    if tok == 'vcc':
        return {('s', 'vcc')}
    if tok == 'exec':
        return {('s', 'exec')}
    if tok == 'm0':
        return {('s', 'm0')}
    return set()


TRANS = ('v_exp_f32', 'v_log_f32', 'v_rcp_f32', 'v_rsq_f32', 'v_sqrt_f32', 'v_sin_f32', 'v_cos_f32')


class Ins:
    __slots__ = ('text', 'op', 'kind', 'w', 'r', 'A', 'B', 'C', 'data', 'lds', 'dpp', 'wide', 'nops')

    def __init__(s, text):
        s.text = text
        t = text.split(';')[0].strip()
        s.w = set(); s.r = set(); s.A = set(); s.B = set(); s.C = set(); s.data = set()
        s.lds = False; s.dpp = False; s.wide = False; s.nops = 1
        if t.endswith(':') or t.startswith('.') or not t:
            s.op = 'label'; s.kind = 'label'; s.nops = 0
            return
        parts = t.split(None, 1)
        s.op = parts[0]
        rest = parts[1] if len(parts) > 1 else ''
        ops = [o.strip() for o in rest.split(',')] if rest else []
        mods = ''
        if ops:
            last = ops[-1].split(None, 1)
        toks = []
        depth = 0; cur = ''
        for ch in rest:
            if ch == '[': depth += 1
            if ch == ']': depth -= 1
            if ch == ',' and depth == 0:
                toks.append(cur.strip()); cur = ''
            else:
                cur += ch
        if cur.strip(): toks.append(cur.strip())
        if toks:
            sp = toks[-1].split(None, 1)
            toks[-1] = sp[0]
            mods = sp[1] if len(sp) > 1 else ''
        R = [regs_of(x) for x in toks]
        op = s.op
        if op.startswith('v_mfma'):
            s.kind = 'mfma'; s.w = R[0]; s.A = R[1]; s.B = R[2]; s.C = R[3]; s.r = s.A | s.B | s.C
        elif op.startswith('ds_read') or op.startswith('ds_bpermute'):
            s.kind = 'ds'; s.w = R[0]; s.r = set().union(*R[1:])
        elif op.startswith('ds_write'):
            s.kind = 'ds'; s.r = set().union(*R); s.data = s.r
        elif op.startswith('buffer_load'):
            s.kind = 'vmem'
            if re.search(r'\blds\b', mods):
                s.lds = True; s.r = set().union(*R) | {('s', 'm0')}
            else:
                s.w = R[0]; s.r = set().union(*R[1:])
        elif op.startswith('buffer_store') or op.startswith('buffer_atomic'):
            s.kind = 'vmem'; s.r = set().union(*R); s.data = R[0]
            s.wide = op.endswith('x4') or op.endswith('x3')
            if op.startswith('buffer_atomic') and 'sc0' in mods: s.w = R[0]
        elif op.startswith('v_'):
            s.kind = 'valu'
            s.dpp = ('quad_perm' in mods or 'row_' in mods)
            if op.startswith('v_permlane'):
                s.w = R[0] | R[1]; s.r = R[0] | R[1]
            elif op.startswith('v_cmp'):
                s.w = R[0]; s.r = set().union(*R[1:])
            elif op.startswith('v_add_co') or op.startswith('v_addc_co'):
                s.w = R[0] | R[1]; s.r = set().union(*R[2:])
            else:
                s.w = R[0]; s.r = set().union(*R[1:]) if len(R) > 1 else set()
                if op.startswith('v_fmac') or op.startswith('v_dot2c') or op.startswith('v_writelane'):
                    s.r |= R[0]
        elif op == 's_nop':
            s.kind = 'salu'; s.nops = int(toks[0]) + 1
        elif op.startswith('s_'):
            s.kind = 'salu'
            if op.startswith('s_cmp') or op.startswith('s_cbranch') or op in ('s_waitcnt', 's_barrier', 's_branch', 's_endpgm', 's_setprio', 's_sleep'):
                s.r = set().union(*R) if R else set()
            else:
                s.w = R[0] if R else set(); s.r = set().union(*R[1:]) if len(R) > 1 else set()
        else:
            raise ValueError('unknown instruction ' + text)


def need(p, c):
    n = 0
    if p.kind == 'valu':
        vw = {x for x in p.w if x[0] in 'va'}
        sw = {x for x in p.w if x[0] == 's'}
        if c.kind == 'mfma' and vw & c.r: n = max(n, 2)
        if c.kind == 'valu':
            if c.dpp and vw & c.r: n = max(n, 2)
            if c.op.startswith('v_permlane') and vw & c.r: n = max(n, 2)
            if (c.op.startswith('v_readfirstlane') or c.op.startswith('v_readlane')) and vw & c.r: n = max(n, 1)
            if p.op in TRANS and vw & c.r and c.op not in TRANS: n = max(n, 1)
            if p.op in TRANS and vw & c.r: n = max(n, 1)
            if p.op.startswith('v_dot2'):
                if vw & (c.r | c.w):
                    if c.op == p.op:
                        if not (vw & c.w): n = max(n, 3)
                    else:
                        n = max(n, 3)
            if sw & c.r:
                n = max(n, 4 if (c.op.startswith('v_readlane') or c.op.startswith('v_writelane')) else 2)
        if p.op.startswith('v_dot2') and c.kind in ('ds', 'vmem', 'mfma') and vw & c.r: n = max(n, 3)
        if c.kind == 'vmem' and sw & c.r: n = max(n, 5)
        if c.kind == 'salu' and sw & c.r: n = max(n, 1)
        if ('s', 'exec') in sw:
            if c.kind == 'mfma': n = max(n, 4)
            if c.kind == 'valu': n = max(n, 5)
    elif p.kind == 'mfma':
        if c.kind == 'mfma':
            if p.w & (c.A | c.B): n = max(n, 8)
            if p.w & c.C and p.w != c.C: n = max(n, 6)
            if p.w & c.w and not (p.w & c.C) : n = max(n, 6)
        elif c.kind in ('valu', 'ds', 'vmem'):
            if p.w & (c.r | c.w): n = max(n, 8)
            if c.kind == 'valu' and p.C & c.w: n = max(n, 3)
    elif p.kind == 'vmem':
        if p.wide and c.kind in ('valu', 'mfma', 'ds', 'vmem') and p.data & c.w: n = max(n, 2)
    elif p.kind == 'salu':
        if ('s', 'm0') in p.w and c.kind == 'vmem' and c.lds: n = max(n, 1)
    return n


class K:
    def __init__(s):
        s.items = []
        s.vm = []
        s.lg = []
        s.nlab = 0

    def __call__(s, *lines):
        for l in lines:
            for x in l.split('\n'):
                x = x.strip()
                if x: s.items.append(Ins(x))

    def label(s, base):
        s.nlab += 1
        return f'L_{base}_{s.nlab}'

    def vmem(s, text, tag=None, cond=False):
        s(text); s.vm.append((tag, cond))

    def lds(s, text, tag=None):
        s(text); s.lg.append(tag)

    def n_vm_after(s, tag):
        idx = max(i for i, (t, c) in enumerate(s.vm) if t == tag)
        return sum(1 for (t, c) in s.vm[idx + 1:] if not c)

    def n_lg_after(s, tag):
        idx = max(i for i, t in enumerate(s.lg) if t == tag)
        return len(s.lg) - idx - 1

    def wait(s, vm=None, lg=None):
        parts = []
        if vm is not None:
            n = 0 if vm == 0 else min(63, s.n_vm_after(vm))
            parts.append(f'vmcnt({n})')
        if lg is not None:
            n = 0 if lg == 0 else min(15, s.n_lg_after(lg))
            parts.append(f'lgkmcnt({n})')
        s('s_waitcnt ' + ' '.join(parts))

    def item(s, it):
        if isinstance(it, str): s(it)
        elif callable(it): it()
        elif it[0] == 'vm': s.vmem(it[1], it[2], it[3] if len(it) > 3 else False)
        elif it[0] == 'lds': s.lds(it[1], it[2])
        elif it[0] == 'wait': s.wait(it[1], it[2])
        else: raise ValueError(it)

    def weave(s, spine, fill):
        for x in fill.get(-1, []): s.item(x)
        for i, m in enumerate(spine):
            s.item(m)
            for x in fill.get(i, []): s.item(x)
        extra = [g for g in fill if g >= len(spine) and fill[g]]
        assert not extra, extra

    def text(s):
        out = []
        hist = []
        saved = {}
        labpos = {i.text[:-1]: n for n, i in enumerate(s.items) if i.kind == 'label' and i.text.endswith(':')}
        npad = 0

        def req_for(h, ins, dist0=0):
            req = 0; dist = dist0
            for p in reversed(h):
                n = need(p, ins) - dist
                if n > req: req = n
                dist += p.nops
                if dist >= 12: break
            return req
        hists = [hist]
        for n, ins in enumerate(s.items):
            if ins.kind == 'label':
                out.append(ins.text)
                name = ins.text[:-1]
                if name in saved: hists = hists + saved.pop(name)
                continue
            req = max([req_for(h, ins) for h in hists] + [0])
            if ins.op.startswith('s_cbranch') or ins.op == 's_branch':
                tgt = ins.text.split()[-1]
                if tgt in labpos and labpos[tgt] < n:
                    d = 1
                    for c in s.items[labpos[tgt] + 1: labpos[tgt] + 14]:
                        if c.kind == 'label': continue
                        for h in hists: req = max(req, req_for(h, c, d))
                        d += c.nops
            if req > 0:
                nop = Ins(f's_nop {req - 1}')
                for h in hists: h.append(nop)
                out.append('  ' + nop.text); npad += 1
            for h in hists:
                h.append(ins)
                if len(h) > 16: del h[0]
            out.append('  ' + ins.text)
            if ins.op.startswith('s_cbranch') or ins.op == 's_branch':
                tgt = ins.text.split()[-1]
                if tgt in labpos and labpos[tgt] > n:
                    saved.setdefault(tgt, []).extend([list(h) for h in hists])
                if ins.op == 's_branch': hists = []
            if ins.op == 's_endpgm': hists = []
            if len(hists) > 1:
                u = []
                for h in hists:
                    if not any([id(x) for x in h[-12:]] == [id(x) for x in g[-12:]] for g in u): u.append(h)
                hists = u
            if not hists: hists = [[]]
        s.npad = npad
        return '\n'.join(out) + '\n'


def spread(fill, items, g0, g1):
    n = len(items)
    if n == 0: return
    span = g1 - g0 + 1
    for i, it in enumerate(items):
        g = g0 + (i * span) // n
        fill.setdefault(g, [])
        if isinstance(it, list): fill[g].extend(it)
        else: fill[g].append(it)
```

```python
import sys, math
from emit import K, spread

NAME = "recurrent_scan__sliding_block_cached__mixer_s_mlp__prompt_kernel"

HPL = 33024
WS_H, WS_X1, WS_H2, WS_SP, WS_DUMP = 0, 0x400000, 0x800000, 0x1000000, 0x4000000
WS_STAMP = 0x8000000
SLOT = [65536, 98304, 131072]
SCR_R2 = 65536 + 3 * 8192 + 7 * 1024
KVPOS = [32768, 49152, 65536, 81920]
B4SLOT = [98304, 131072, 65536, 0, 32768]
sW, sTB, sG, sTH, sCH = 3, 4, 5, 6, 7
X, KC, VC, WQ, WO, W1, W2, W3, W4, OUT, DBG, WS = [8 + 4 * i for i in range(12)]
sT0, sT1, sT2, sT3 = 56, 57, 58, 59
sOFF = 60
sRING = 61
sKV = 62
sKVM = 63
sONE2, sLO, sHI = 64, 65, 66
sC = 68
sC2 = 70
sPASS = 72
sSPIN = 73
sHB = 74
sSTAMP = 76
vL, vB, vB2 = 1, 2, 3
vT0, vT1 = 4, 12
vD = 20
vE = 24
vS = 28
vX, vY = 30, 31
vX1 = 32
vU = 40
vACC = 48
vQ = 64
vS_ = 128
vP = 160
vRAW = 192


def srd(r): return f"s[{r}:{r + 3}]"
def v(b, n=1): return f"v{b}" if n == 1 else f"v[{b}:{b + n - 1}]"
def a(b, n=1): return f"a{b}" if n == 1 else f"a[{b}:{b + n - 1}]"
def mfma(d, A, B, C): return f"v_mfma_f32_16x16x32_bf16 {d}, {A}, {B}, {C}"
def f2u(x):
    import struct
    return struct.unpack('<I', struct.pack('<f', x))[0]


class Gen(K):
    def __init__(s, amap=2, dumps=(), stamps=False, thr_log2=30):
        super().__init__()
        s.amap = amap; s.dumps = set(dumps); s.stamps = stamps; s.nstamp = 0; s.thr = thr_log2

    def stamp(s, name):
        if not s.stamps: return
        i = s.nstamp; s.nstamp += 1
        s.stamp_names = getattr(s, 'stamp_names', []) + [name]
        tmp = vX1 if i < 3 else 0
        s("s_memtime s[90:91]", "s_memrealtime s[92:93]", "s_waitcnt lgkmcnt(0)")
        s(f"v_mov_b32 v{tmp}, s90", f"v_accvgpr_write_b32 a{212 + 2 * i}, v{tmp}", f"v_mov_b32 v{tmp}, s92", f"v_accvgpr_write_b32 a{213 + 2 * i}, v{tmp}")

    def mk_srd(s, r, ptr, size, off=None):
        if off is None:
            s(f"s_mov_b32 s{r}, s{ptr}", f"s_mov_b32 s{r + 1}, s{ptr + 1}", f"s_mov_b32 s{r + 2}, {size}")
        else:
            s(f"s_add_u32 s{r}, s{ptr}, s{off}", f"s_addc_u32 s{r + 1}, s{ptr + 1}, 0", f"s_sub_u32 s{r + 2}, {size}, s{off}")
        s(f"s_mov_b32 s{r + 3}, 0x20000")

    def dump(s, name, regs, slot):
        if name not in s.dumps: return
        s("s_waitcnt vmcnt(0) lgkmcnt(0)", "s_nop 7", "s_nop 7")
        s(f"s_lshl_b32 s{sT0}, s{sTB}, 5", f"s_lshl_b32 s{sT1}, s{sG}, 2", f"s_add_u32 s{sT0}, s{sT0}, s{sT1}", f"s_add_u32 s{sT0}, s{sT0}, s{sW}")
        s(f"s_mul_i32 s{sT0}, s{sT0}, {len(regs) * 256}", f"s_add_u32 s{sT0}, s{sT0}, {WS_DUMP + slot * 0x1000000}")
        s(f"v_lshlrev_b32 v{vX}, 2, v{vL}")
        for i, r in enumerate(regs):
            if r[0] == 'a':
                s(f"v_accvgpr_read_b32 v{vY}, {r}"); r = f"v{vY}"
            s(f"buffer_store_dword {r}, v{vX}, {srd(WS)}, s{sT0} offen", f"s_add_u32 s{sT0}, s{sT0}, 256")
            s("s_waitcnt vmcnt(0)")

    def t256(s, dst, base_s=None, base_imm=0, kv=False):
        s(f"v_lshrrev_b32 v{vX}, 4, v{vL}", f"v_bfe_u32 v{vY}, v{vL}, 2, 2")
        s(f"v_and_b32 v{vU}, 1, v{vX}", f"v_lshl_add_u32 v{vU}, v{vU}, 2, v{vY}")
        if kv:
            s(f"v_lshrrev_b32 v{vX}, 1, v{vX}", f"v_lshlrev_b32 v{vX}, 12, v{vX}", f"v_lshl_add_u32 v{vU + 1}, v{vU}, 8, v{vX}")
        else:
            s(f"v_lshl_add_u32 v{vX}, v{vX}, 2, v{vY}", f"v_lshlrev_b32 v{vU + 1}, 8, v{vX}")
        s(f"v_and_b32 v{vY}, 3, v{vL}", f"v_lshl_add_u32 v{vU + 1}, v{vY}, 3, v{vU + 1}")
        if base_s is not None: s(f"v_add_u32 v{vU + 1}, s{base_s}, v{vU + 1}")
        if base_imm: s(f"v_add_u32 v{vU + 1}, {base_imm}, v{vU + 1}")
        for nt in range(8):
            s(f"v_xor_b32 v{vX}, {nt}, v{vU}", f"v_lshl_add_u32 v{dst + nt}, v{vX}, 5, v{vU + 1}")

    def t128(s, dst, nts, base_s=None, base_imm=0):
        s(f"v_lshrrev_b32 v{vX}, 4, v{vL}", f"v_bfe_u32 v{vY}, v{vL}, 2, 2")
        s(f"v_lshl_add_u32 v{vU + 1}, v{vX}, 2, v{vY}", f"v_lshlrev_b32 v{vU + 1}, 7, v{vU + 1}")
        s(f"v_and_b32 v{vX}, 1, v{vX}", f"v_lshrrev_b32 v{vY}, 1, v{vY}", f"v_lshl_add_u32 v{vU}, v{vX}, 1, v{vY}")
        s(f"v_and_b32 v{vY}, 3, v{vL}", f"v_lshl_add_u32 v{vU + 1}, v{vY}, 3, v{vU + 1}")
        if base_s is not None: s(f"v_add_u32 v{vU + 1}, s{base_s}, v{vU + 1}")
        if base_imm: s(f"v_add_u32 v{vU + 1}, {base_imm}, v{vU + 1}")
        if nts[0] == 's':
            s(f"s_lshl_b32 s{sT0}, s{nts[1]}, 1", f"v_xor_b32 v{vU}, s{sT0}, v{vU}")
            nts = [0, 1]
        for i, nt in enumerate(nts):
            s(f"v_xor_b32 v{vX}, {nt}, v{vU}", f"v_lshl_add_u32 v{dst + i}, v{vX}, 5, v{vU + 1}")

    def d256(s, dst, RS, natural):
        s(f"v_lshrrev_b32 v{vX}, 4, v{vL}")
        s(f"v_bfe_u32 v{vY}, v{vL}, 1, 3", f"v_xor_b32 v{vY}, v{vY}, v{vX}", f"v_lshlrev_b32 v{vY}, 5, v{vY}")
        s(f"v_and_b32 v{vU}, 1, v{vL}", f"v_lshl_add_u32 v{vY}, v{vU}, 4, v{vY}")
        s(f"s_mov_b32 s{sT0}, {RS}", f"v_mul_lo_u32 v{vX}, v{vX}, s{sT0}")
        for p in range(4):
            ro = (8 if natural else 4) * p * RS - 1024 * p
            if p & 1: s(f"v_xor_b32 v{vU}, 0x80, v{vY}", f"v_add_u32 v{vU}, v{vU}, v{vX}")
            else: s(f"v_add_u32 v{vU}, v{vY}, v{vX}")
            s(f"v_add_u32 v{dst + p}, {ro}, v{vU}")

    def d128(s, dst, RS, natural, oob_w3=False):
        s(f"v_lshrrev_b32 v{vX}, 3, v{vL}")
        if natural:
            s(f"v_lshrrev_b32 v{vY}, 2, v{vX}", f"v_and_b32 v{vX}, 3, v{vX}", f"v_lshl_add_u32 v{vX}, v{vY}, 3, v{vX}")
        s(f"s_mov_b32 s{sT0}, {RS}", f"v_mul_lo_u32 v{vX}, v{vX}, s{sT0}")
        s(f"v_bfe_u32 v{vY}, v{vL}, 1, 2", f"v_lshrrev_b32 v{vU}, 4, v{vL}", f"v_xor_b32 v{vY}, v{vY}, v{vU}")
        if oob_w3:
            s(f"s_cmp_eq_u32 s{sW}, 3", f"s_cselect_b32 s{sT0}, 0x20000000, 0", f"v_lshrrev_b32 v{vU}, 1, v{vY}",
              f"v_mul_lo_u32 v{vU}, v{vU}, s{sT0}", f"v_add_u32 v{vX}, v{vX}, v{vU}")
        s(f"v_lshl_add_u32 v{vX}, v{vY}, 5, v{vX}", f"v_and_b32 v{vU}, 1, v{vL}", f"v_lshl_add_u32 v{vX}, v{vU}, 4, v{vX}")
        for q in range(4):
            ro = ((16 * (q & 1) + 4 * (q >> 1)) if natural else 8 * q) * RS - 1024 * q
            s(f"v_add_u32 v{dst + q}, {ro}, v{vX}")

    def dma4(s, vo, S, soff, m0s, m0imm, tag, n=4, first=0):
        it = [f"s_add_u32 m0, s{m0s}, {m0imm}" if m0s is not None else f"s_mov_b32 m0, {m0imm}"]
        for p in range(first, n):
            it.append(('vm', f"buffer_load_dwordx4 v{vo + p}, {srd(S)}, s{soff} offen offset:{1024 * p} lds", tag))
        return it

    def pstep_dma(s, S, step_bytes, half_bytes, slot, tag):
        it = s.dma4(vD, S, sOFF, sRING, slot * 32768, tag)
        it.append(f"s_add_u32 s{sOFF}, s{sOFF}, {half_bytes}")
        it += s.dma4(vD, S, sOFF, sRING, slot * 32768 + 4096, tag)
        it.append(f"s_add_u32 s{sOFF}, s{sOFF}, {step_bytes - half_bytes}")
        return it

    def signal(s, field):
        L = s.label('sig')
        s(f"s_or_b32 s{sT0}, s{sW}, s{sPASS}" if field == 1 else f"s_mov_b32 s{sT0}, s{sW}", f"s_cmp_lg_u32 s{sT0}, 0", f"s_cbranch_scc1 {L}")
        s(f"s_lshl_b32 s{sT0}, s{sTB}, 3", f"v_mov_b32 v{vX}, s{sT0}", f"v_mov_b32 v{vY}, {1 << (8 * field)}")
        s("s_mov_b64 exec, 1")
        s.vmem(f"buffer_atomic_add v{vY}, v{vX}, {srd(DBG)}, 0 offen sc1", None, cond=True)
        s("s_mov_b64 exec, -1")
        s(f"{L}:")

    def poll_items(s, halo, tag):
        if halo:
            it = [f"v_min_u32 v{vU + 6}, 2, v{vL}", f"v_add_u32 v{vU + 6}, s{sTB}, v{vU + 6}", f"v_subrev_u32 v{vU + 6}, 1, v{vU + 6}",
                  f"v_max_i32 v{vU + 6}, 0, v{vU + 6}", f"v_min_i32 v{vU + 6}, 31, v{vU + 6}", f"v_lshlrev_b32 v{vU + 6}, 3, v{vU + 6}"]
        else:
            it = [f"s_lshl_b32 s{sT0}, s{sTB}, 3", f"v_mov_b32 v{vU + 6}, s{sT0}"]
        it.append(('vm', f"buffer_load_dword v{vU + 7}, v{vU + 6}, {srd(DBG)}, 0 offen sc1", tag))
        return it

    def poll_check(s, field, tag):
        Lok, Lsp = s.label('ok'), s.label('spin')
        s.wait(vm=tag)
        s(f"v_bfe_u32 v{vU + 7}, v{vU + 7}, {8 * field}, 8", f"v_cmp_gt_u32 vcc, 8, v{vU + 7}", f"s_cbranch_vccz {Lok}")
        s(f"s_mov_b32 s{sSPIN}, 0")
        s(f"{Lsp}:")
        s.vmem(f"buffer_load_dword v{vU + 7}, v{vU + 6}, {srd(DBG)}, 0 offen sc1", None, cond=True)
        s("s_waitcnt vmcnt(0)")
        s(f"s_add_u32 s{sSPIN}, s{sSPIN}, 1", f"s_cmp_gt_u32 s{sSPIN}, 0x40000", f"s_cbranch_scc1 {Lok}")
        s(f"v_bfe_u32 v{vU + 7}, v{vU + 7}, {8 * field}, 8", f"v_cmp_gt_u32 vcc, 8, v{vU + 7}", f"s_cbranch_vccnz {Lsp}")
        s(f"{Lok}:")

    def xsum(s, r, tmp, op="v_add_f32"):
        s(f"v_mov_b32 v{tmp}, v{r}", f"v_permlane32_swap_b32 v{r}, v{tmp}", f"{op} v{r}, v{r}, v{tmp}")
        s(f"v_mov_b32 v{tmp}, v{r}", f"v_permlane16_swap_b32 v{r}, v{tmp}", f"{op} v{r}, v{r}, v{tmp}")

    def qsum(s, r):
        s(f"v_add_f32_dpp v{r}, v{r}, v{r} quad_perm:[1,0,3,2] row_mask:0xf bank_mask:0xf")
        s(f"v_add_f32_dpp v{r}, v{r}, v{r} quad_perm:[2,3,0,1] row_mask:0xf bank_mask:0xf")

    def layernorm(s, first, wr_addr):
        red = (lambda r: s.qsum(r)) if first else (lambda r: s.xsum(r, vU + 5))
        for i in range(64):
            c = "0" if i < 4 else f"v{vU + (i & 3)}"
            s(f"v_dot2_f32_bf16 v{vU + (i & 3)}, v{vRAW + i}, s{sONE2}, {c}")
        s(f"v_add_f32 v{vU}, v{vU}, v{vU + 1}", f"v_add_f32 v{vU + 2}, v{vU + 2}, v{vU + 3}", f"v_add_f32 v{vU}, v{vU}, v{vU + 2}")
        red(vU)
        s(f"v_mul_f32 v{vU + 4}, {f2u(-1.0 / 512)}, v{vU}")
        for i in range(64):
            s(f"v_dot2_f32_bf16 v{128 + 2 * i}, v{vRAW + i}, s{sLO}, v{vU + 4}", f"v_dot2_f32_bf16 v{129 + 2 * i}, v{vRAW + i}, s{sHI}, v{vU + 4}")
        for i in range(64):
            acc = v(vU + 2 * (i & 1), 2)
            c = f"0 op_sel_hi:[1,1,0]" if i < 2 else acc
            s(f"v_pk_fma_f32 {acc}, {v(128 + 2 * i, 2)}, {v(128 + 2 * i, 2)}, {c}")
        s(f"v_pk_add_f32 {v(vU, 2)}, {v(vU, 2)}, {v(vU + 2, 2)}", f"v_add_f32 v{vU}, v{vU}, v{vU + 1}")
        red(vU)
        s(f"v_mov_b32 v{vU + 1}, {f2u(1e-5)}", f"v_fmac_f32 v{vU + 1}, {f2u(1.0 / 512)}, v{vU}")
        s(f"v_rsq_f32 v{vU + 2}, v{vU + 1}")
        if first:
            s(f"v_mul_f32 v{vU}, {f2u(1.0 / 512)}, v{vU}", f"v_mul_f32 v{vU}, v{vU}, v{vU + 2}", f"v_mul_f32 v{vU}, v{vU}, v{vU + 2}",
              f"v_add_f32 v{vU}, {f2u(1e-5)}, v{vU}", f"v_rsq_f32 v{vU}, v{vU}")
            s(f"v_lshrrev_b32 v{vU + 1}, 2, v0", f"v_lshlrev_b32 v{vU + 1}, 2, v{vU + 1}", f"v_add_u32 v{vU + 1}, {SCR_R2}, v{vU + 1}")
            s.lds(f"ds_write_b32 v{vU + 1}, v{vU}", 'r2w')
        for m in range(16):
            for j in range(4):
                t = 128 + 8 * m + 2 * j
                s(f"v_pk_mul_f32 {v(t, 2)}, {v(t, 2)}, {v(vU + 2, 2)} op_sel_hi:[1,0]")
            for j in range(4):
                t = 128 + 8 * m + 2 * j
                s(f"v_cvt_pk_bf16_f32 v{128 + 4 * m + j}, v{t}, v{t + 1}")
            s.lds(f"ds_write_b128 v{wr_addr}, {v(128 + 4 * m, 4)} offset:{m * 1024}", 'lnw')

    def gelu_pairs(s, regs, tmp):
        n = len(regs)
        T = [tmp + 2 + 2 * i for i in range(4)]
        for b in range(0, n, 4):
            grp = regs[b:b + 4]
            for r, t in zip(grp, T): s(f"v_pk_mul_f32 {v(t, 2)}, {v(r, 2)}, {v(r, 2)}")
            for r, t in zip(grp, T): s(f"v_pk_fma_f32 {v(t, 2)}, {v(t, 2)}, s[{sC2}:{sC2 + 1}], {v(tmp, 2)}")
            for r, t in zip(grp, T): s(f"v_pk_mul_f32 {v(t, 2)}, {v(t, 2)}, {v(r, 2)}")
            for r, t in zip(grp, T): s(f"v_exp_f32 v{t}, v{t}", f"v_exp_f32 v{t + 1}, v{t + 1}")
            for r, t in zip(grp, T): s(f"v_pk_add_f32 {v(t, 2)}, {v(t, 2)}, 1.0 op_sel_hi:[1,0]")
            for r, t in zip(grp, T): s(f"v_rcp_f32 v{t}, v{t}", f"v_rcp_f32 v{t + 1}, v{t + 1}")
            for r, t in zip(grp, T): s(f"v_pk_mul_f32 {v(r, 2)}, {v(t, 2)}, {v(r, 2)}")

    def gelu_consts(s, tmp):
        kk = 2 * 0.7978845608028654 * 1.4426950408889634
        s(f"s_mov_b32 s{sC2}, {f2u(-kk * 0.044715)}", f"s_mov_b32 s{sC2 + 1}, {f2u(-kk * 0.044715)}")
        s(f"v_mov_b32 v{tmp}, {f2u(-kk)}", f"v_mov_b32 v{tmp + 1}, {f2u(-kk)}")

    def stype_reads(s, m, tagp):
        buf = 16 * (m & 3)
        it = []
        for i in range(2):
            it.append(('lds', f"ds_read_b128 {a(buf + 8 + 4 * i, 4)}, v{vB2} offset:{(16 * i + m) * 1024}", (tagp, m)))
            for jh in range(2):
                it.append(('lds', f"ds_read_b64_tr_b16 {a(buf + 4 * i + 2 * jh, 2)}, v{vS + i} offset:{m * 4096 + jh * 2048}", (tagp, m)))
        return it

    def stype_resident(s, tagp, pre_done=3, extra=None):
        spine = []; fill = {}
        for m in range(16):
            buf = 16 * (m & 3)
            for n in range(2):
                for t in range(2):
                    d = v(vACC + 8 * n + 4 * t, 4)
                    spine.append(mfma(d, a(buf + 4 * n, 4), a(buf + 8 + 4 * t, 4), "0" if m == 0 else d))
            fill.setdefault(4 * m - 1, []).append(('wait', None, (tagp, m)))
            if m + pre_done < 16:
                spread(fill, s.stype_reads(m + pre_done, tagp), 4 * m, 4 * m + 2)
        if extra:
            for g, its in extra.items(): fill.setdefault(g, []).extend(its)
        s.weave(spine, fill)

    def p_reads_A(s, st, slot, tagp):
        buf = 32 * (st & 1)
        base = vT1 if slot == 2 else vT0
        off = 32768 if slot == 1 else 0
        it = []
        for nt in range(8):
            for jh in range(2):
                it.append(('lds', f"ds_read_b64_tr_b16 {a(buf + 4 * nt + 2 * jh, 2)}, v{base + nt} offset:{off + jh * 4096}", (tagp, st, 'a' if nt < 4 else 'b')))
        return it

    def p_reads_B(s, st, tagp):
        buf = 64 + 16 * (st & 1)
        return [('lds', f"ds_read_b128 {a(buf + 4 * tt, 4)}, v{vB} offset:{(16 * tt + st) * 1024}", (tagp, st, 'a')) for tt in range(4)]

    def ptype(s, tagp, S, step_bytes, half_bytes, extra):
        for st in range(16):
            ab = 32 * (st & 1); bb = 64 + 16 * (st & 1)
            spine = []
            for nt in range(8):
                for tt in range(4):
                    d = v(128 + 16 * nt + 4 * tt, 4)
                    spine.append(mfma(d, a(ab + 4 * nt, 4), a(bb + 4 * tt, 4), "0" if st == 0 else d))
            ex = extra(st)
            fill = {-1: [('wait', None, (tagp, st, 'a'))], 1: [('wait', None, 0)]}
            for g, its in ex.get('early', {}).items(): fill.setdefault(g, []).extend(its)
            if st + 3 < 16: dm = s.pstep_dma(S, step_bytes, half_bytes, st % 3, (tagp, 'd', st + 3))
            else: dm = ex.get('dma', [])
            if st + 1 < 16:
                spread(fill, dm, 2, 9)
                fill.setdefault(9, []).append(('wait', (tagp, 'd', st + 1), None))
                A = s.p_reads_A(st + 1, (st + 1) % 3, tagp); B = s.p_reads_B(st + 1, tagp)
                rd = [B[0]] + A[0:2] + B[1:4] + A[2:]
                spread(fill, rd, 10, 25)
            else:
                spread(fill, dm, 2, 31)
            for g, its in ex.get('at', {}).items(): fill.setdefault(g, []).extend(its)
            s.weave(spine, fill)

    def kv_dma(s, t):
        pos = KVPOS[(t + 2) & 3]
        return [f"s_add_u32 m0, s{sKVM}, {pos}",
                ('vm', f"buffer_load_dwordx4 v{vE}, {srd(KC)}, s{sKV} offen lds", ('kv', t)),
                ('vm', f"buffer_load_dwordx4 v{vE + 1}, {srd(KC)}, s{sKV} offen offset:1024 lds", ('kv', t)),
                ('vm', f"buffer_load_dwordx4 v{vE + 2}, {srd(VC)}, s{sKV} offen offset:2048 lds", ('kv', t)),
                ('vm', f"buffer_load_dwordx4 v{vE + 3}, {srd(VC)}, s{sKV} offen offset:3072 lds", ('kv', t)),
                f"s_add_u32 s{sKV}, s{sKV}, 8192"]

    def k_reads(s, t):
        off = KVPOS[(t + 2) & 3] - KVPOS[0]
        return [('lds', f"ds_read_b128 {a(144 + 16 * u + 4 * ds, 4)}, v{vT1 + ds} offset:{off + u * 8192}", ('K', t))
                for u in range(2) for ds in range(4)]

    def v_reads(s, t):
        off = KVPOS[(t + 2) & 3] - KVPOS[0]
        return [('lds', f"ds_read_b64_tr_b16 {a(176 + 4 * dt + 2 * jh, 2)}, v{vT0 + dt} offset:{off + jh * 8192}", ('V', t))
                for dt in range(8) for jh in range(2)]

    def qk_spine(s, cinit):
        sp = []
        for qt in range(4):
            for u in range(2):
                d = v(vS_ + 8 * qt + 4 * u, 4)
                for ds in range(4):
                    sp.append(mfma(d, a(144 + 16 * u + 4 * ds, 4), v(vQ + 16 * ds + 4 * qt, 4), d if ds else cinit(qt)))
        return sp

    def pv_spine(s, t):
        sp = []
        for qt in range(4):
            p = v(vP + 16 * (t & 1) + 4 * qt, 4)
            for dt in range(8):
                d = a(16 * dt + 4 * qt, 4)
                sp.append(mfma(d, a(176 + 4 * dt, 4), p, "0" if t == 0 else d))
            d = a(128 + 4 * qt, 4)
            sp.append(mfma(d, a(208, 4), p, "0" if t == 0 else d))
        return sp

    def job(s, t, qt):
        b = vS_ + 8 * qt
        E = [f"v_exp_f32 v{b + i}, v{b + i}" for i in range(8)]
        C = [f"v_cvt_pk_bf16_f32 v{vP + 16 * (t & 1) + 4 * qt + i}, v{b + 2 * i}, v{b + 2 * i + 1}" for i in range(4)]
        return E, C

    def place_job(s, fill, t, qt, g0, n):
        E, C = s.job(t, qt)
        step = n // 8
        for i, e in enumerate(E): fill.setdefault(g0 + i * step, []).append(e)
        for i, c in enumerate(C): fill.setdefault(min(g0 + n - 1, g0 + (2 * i + 1) * step + 1), []).append(c)

    def build(s):
        s("s_cmp_ge_u32 s2, 256", "s_cbranch_scc1 L_end")
        s("s_load_dwordx16 s[64:79], s[0:1], 0", "s_load_dwordx8 s[80:87], s[0:1], 64", "s_load_dwordx2 s[88:89], s[0:1], 96")
        s(f"v_and_b32 v{vL}, 63, v0", f"v_lshrrev_b32 v{vX}, 6, v0", f"v_readfirstlane_b32 s{sW}, v{vX}")
        s(f"s_and_b32 s{sT0}, s2, 7", f"s_lshr_b32 s{sT1}, s2, 3")
        if s.amap == 1:
            s(f"s_mov_b32 s{sG}, s{sT0}", f"s_mov_b32 s{sTB}, s{sT1}")
        elif s.amap == 2:
            s(f"s_and_b32 s{sG}, s{sT0}, 3", f"s_lshl_b32 s{sG}, s{sG}, 1", f"s_and_b32 s{sT2}, s{sT1}, 1", f"s_add_u32 s{sG}, s{sG}, s{sT2}")
            s(f"s_lshr_b32 s{sTB}, s{sT1}, 1", f"s_lshl_b32 s{sTB}, s{sTB}, 1", f"s_lshr_b32 s{sT2}, s{sT0}, 2", f"s_add_u32 s{sTB}, s{sTB}, s{sT2}")
        elif s.amap == 4:
            s(f"s_and_b32 s{sG}, s{sT0}, 1", f"s_lshl_b32 s{sG}, s{sG}, 2", f"s_and_b32 s{sT2}, s{sT1}, 3", f"s_add_u32 s{sG}, s{sG}, s{sT2}")
            s(f"s_lshr_b32 s{sTB}, s{sT1}, 2", f"s_lshl_b32 s{sTB}, s{sTB}, 2", f"s_lshr_b32 s{sT2}, s{sT0}, 1", f"s_add_u32 s{sTB}, s{sTB}, s{sT2}")
        else:
            s(f"s_and_b32 s{sG}, s{sT1}, 7", f"s_lshr_b32 s{sTB}, s{sT1}, 3", f"s_lshl_b32 s{sTB}, s{sTB}, 3", f"s_add_u32 s{sTB}, s{sTB}, s{sT0}")
        s(f"s_and_b32 s{sTH}, s{sW}, 1", f"s_lshr_b32 s{sCH}, s{sW}, 1")
        s(f"v_lshrrev_b32 v{vX}, 2, v0", f"v_lshlrev_b32 v{vX}, 10, v{vX}", f"v_and_b32 v{vY}, 3, v0", f"v_lshl_add_u32 v{vU + 4}, v{vY}, 4, v{vX}")
        s(f"s_lshl_b32 s{sOFF}, s{sTB}, 16")
        s.d128(vE, 1024, True)
        s("s_waitcnt lgkmcnt(0)")
        s.mk_srd(X, 64, 0x200000)
        for m in range(16):
            s.vmem(f"buffer_load_dwordx4 {v(vRAW + 4 * m, 4)}, v{vU + 4}, {srd(X)}, s{sOFF} offen offset:{m * 64}", 'x')
        s(f"s_lshl_b32 s{sT1}, s{sG}, 7")
        s.mk_srd(W1, 76, 0x80000, sT1)
        s.mk_srd(W2, 78, 0x80000, sT1)
        s.mk_srd(W4, 82, 0x1c0000, sT1)
        s(f"s_lshl_b32 s{sRING}, s{sW}, 13", f"s_add_u32 s{sRING}, s{sRING}, {SLOT[0]}")
        for half in range(2):
            for k in range(2):
                s(f"s_lshl_b32 s{sT2}, s{sW}, 16", f"s_add_u32 s{sT2}, s{sT2}, {(half * 8 + k) * 32768}")
                for it in s.dma4(vE, W1, sT2, sRING, 32768 * (1 + half) + 4096 * k, 'w1'): s.item(it)
        s(f"s_lshl_b32 s{sT0}, s{sG}, 10", f"s_lshl_b32 s{sT1}, s{sW}, 8", f"s_add_u32 s{sT3}, s{sT0}, s{sT1}")
        s.mk_srd(WQ, 70, 0x400000, sT3)
        s.d256(vD, 8192, True)
        s(f"s_mov_b32 s{sOFF}, 0")
        for it in s.dma4(vD, WQ, sOFF, sRING, 0, ('q', 'd', 0)): s.item(it)
        s(f"s_mov_b32 s{sOFF}, {4 * 8192}")
        for it in s.dma4(vD, WQ, sOFF, sRING, 4096, ('q', 'd', 0), n=3): s.item(it)
        s(f"s_lshl_b32 s{sT0}, s{sG}, 19", f"s_add_u32 s{sT3}, s{sT0}, {1536 * 256}")
        s.mk_srd(KC, 66, 0x400000, sT3)
        s(f"s_sub_u32 s{sT3}, s{sT3}, 2048")
        s.mk_srd(VC, 68, 0x400000, sT3)
        s(f"s_lshl_b32 s{sT1}, s{sW}, 8", f"s_add_u32 s{sT3}, s{sT0}, s{sT1}")
        s.mk_srd(WO, 72, 0x400000, sT3)
        s(f"s_mul_i32 s{sT0}, s{sG}, 448", f"s_lshl_b32 s{sT1}, s{sW}, 7", f"s_add_u32 s{sT3}, s{sT0}, s{sT1}")
        s.mk_srd(W3, 80, 0x1c0000, sT3)
        s.mk_srd(OUT, 84, 0x200000)
        s.mk_srd(DBG, 86, 256)
        s.mk_srd(WS, 88, 0x10000000)
        s(f"s_mov_b32 s{sONE2}, 0x3f803f80", f"s_mov_b32 s{sLO}, 0x00003f80", f"s_mov_b32 s{sHI}, 0x3f800000")
        s(f"s_lshl_b32 s{sKVM}, s{sW}, 12", f"s_mov_b32 s{sKV}, 0", f"s_mov_b32 s{sPASS}, 0")
        s(f"v_lshrrev_b32 v{vX}, 4, v{vL}", f"v_lshlrev_b32 v{vY}, 1, v{vX}", f"v_and_b32 v{vB}, 15, v{vL}", f"v_xor_b32 v{vB}, v{vB}, v{vY}",
          f"v_lshl_add_u32 v{vB}, v{vX}, 4, v{vB}", f"v_lshlrev_b32 v{vB}, 4, v{vB}")
        s(f"s_lshl_b32 s{sT0}, s{sTH}, 15", f"v_add_u32 v{vB2}, s{sT0}, v{vB}")
        s.t256(vT0, base_s=sRING)
        for nt in range(8): s(f"v_add_u32 v{vT1 + nt}, 0x10000, v{vT0 + nt}")
        s.t128(vS, ('s', sCH), base_imm=SLOT[1])
        vLW = vX1 + 7
        s(f"v_and_b32 v{vX}, 3, v{vL}", f"v_lshrrev_b32 v{vY}, 2, v{vL}", f"v_lshlrev_b32 v{vU}, 1, v{vX}", f"v_xor_b32 v{vY}, v{vY}, v{vU}",
          f"v_lshl_add_u32 v{vY}, v{vX}, 4, v{vY}", f"v_lshlrev_b32 v{vY}, 4, v{vY}", f"s_lshl_b32 s{sT0}, s{sW}, 14", f"v_add_u32 v{vLW}, s{sT0}, v{vY}")
        s.stamp('setup')
        s.wait(vm='x')
        s.stamp('x_landed')
        s.layernorm(True, vLW)
        s.stamp('ln1')
        s.wait(vm='w1', lg=0)
        s("s_barrier")
        s(f"v_and_b32 v{vX}, 15, v{vL}", f"s_lshl_b32 s{sT0}, s{sTH}, 7", f"s_add_u32 s{sT0}, s{sT0}, {SCR_R2}", f"v_lshl_add_u32 v{vX}, v{vX}, 2, s{sT0}")
        s.lds(f"ds_read_b32 v{vU + 2}, v{vX}", 'r2'); s.lds(f"ds_read_b32 v{vU + 3}, v{vX} offset:64", 'r2')
        s(f"v_lshrrev_b32 v{vX}, 5, v{vL}", f"v_and_b32 v{vY}, 15, v{vL}", f"v_bfe_u32 v{vU}, v{vL}, 4, 1")
        s(f"s_lshl_b32 s{sT0}, s{sG}, 1", f"s_add_u32 s{sT0}, s{sT0}, s{sCH}", f"s_lshl_b32 s{sT0}, s{sT0}, 10", f"s_lshl_b32 s{sT1}, s{sTH}, 15", f"s_add_u32 s{sT0}, s{sT0}, s{sT1}")
        for n in range(2):
            s(f"v_add_u32 v{vU + 1}, {2 * n}, v{vX}", f"v_lshlrev_b32 v{vU + 4}, 1, v{vU + 1}", f"v_xor_b32 v{vU + 4}, v{vU + 4}, v{vY}",
              f"v_lshl_add_u32 v{vU + 4}, v{vU + 1}, 4, v{vU + 4}", f"v_lshlrev_b32 v{vU + 4}, 4, v{vU + 4}", f"v_lshl_add_u32 v{vU + 4}, v{vU}, 3, v{vU + 4}",
              f"v_add_u32 v{vU + 4}, s{sT0}, v{vU + 4}")
            for t in range(2):
                s.lds(f"ds_read_b64 {v(vX1 + 4 * t + 2 * n, 2)}, v{vU + 4} offset:{t * 16384}", 'xs')
        for m in range(3):
            for it in s.stype_reads(m, 'b1'): s.item(it)
        s.wait(lg='r2')
        s("s_barrier")
        s(f"s_add_u32 m0, s{sRING}, 4096", f"s_nop 0")
        s.vmem(f"buffer_load_dwordx4 v{vD + 3}, {srd(WQ)}, s{sOFF} offen offset:3072 lds", ('q', 'd', 0))
        s(f"s_mov_b32 s{sOFF}, {32 * 8192}")
        s.stype_resident('b1')
        s.wait(lg=0)
        s("s_barrier")
        s.stamp('b1')
        for k in (1, 2):
            for it in s.pstep_dma(WQ, 32 * 8192, 4 * 8192, k, ('q', 'd', k)): s.item(it)
        s.wait(vm=('q', 'd', 0))
        A = s.p_reads_A(0, 0, 'q'); B = s.p_reads_B(0, 'q')
        for it in B + A: s.item(it)
        s.gelu_consts(vQ)
        for n in range(2):
            for t in range(2):
                for j in range(2):
                    r = vACC + 8 * n + 4 * t + 2 * j
                    sel = "op_sel_hi:[1,0]" if t == 0 else "op_sel:[0,1] op_sel_hi:[1,1]"
                    s(f"v_pk_mul_f32 {v(r, 2)}, {v(r, 2)}, {v(vU + 2, 2)} {sel}")
        s.gelu_pairs([vACC + 2 * i for i in range(8)], vQ)
        for t in range(2):
            for n in range(2):
                for j in range(2):
                    r = vACC + 8 * n + 4 * t + 2 * j
                    s(f"v_cvt_pk_bf16_f32 v{vQ + 16 + 4 * t + 2 * n + j}, v{r}, v{r + 1}")
        s(f"v_lshrrev_b32 v{vX}, 4, v{vL}", f"s_mov_b32 s{sT0}, {HPL}", f"v_mul_lo_u32 v{vX}, v{vX}, s{sT0}", f"v_and_b32 v{vY}, 15, v{vL}",
          f"v_lshl_add_u32 v{vX}, v{vY}, 4, v{vX}")
        s(f"s_lshl_b32 s{sT0}, s{sG}, 1", f"s_add_u32 s{sT0}, s{sT0}, s{sCH}", f"s_mul_i32 s{sT0}, s{sT0}, {4 * HPL}", f"s_lshl_b32 s{sT1}, s{sTB}, 10",
          f"s_add_u32 s{sT0}, s{sT0}, s{sT1}", f"s_lshl_b32 s{sT1}, s{sTH}, 9", f"s_add_u32 s{sT0}, s{sT0}, s{sT1}", f"s_add_u32 s{sT0}, s{sT0}, {WS_H + 128}")
        for t in range(2):
            s.vmem(f"buffer_store_dwordx4 {v(vQ + 16 + 4 * t, 4)}, v{vX}, {srd(WS)}, s{sT0} offen offset:{t * 256} sc1", 'hst')
        Lp = s.label('pad')
        s(f"s_cmp_lg_u32 s{sW}, 0", f"s_cbranch_scc1 {Lp}")
        s(f"s_add_u32 s{sT1}, s{sTB}, 1", f"s_and_b32 s{sT1}, s{sT1}, 30", f"s_cmp_lg_u32 s{sT1}, 0", f"s_cbranch_scc1 {Lp}")
        s(f"s_cmp_eq_u32 s{sTB}, 0", f"s_cselect_b32 s{sT1}, 0, {(8 + 2048) * 16}", f"s_mul_i32 s{sT0}, s{sG}, {8 * HPL}", f"s_add_u32 s{sT0}, s{sT0}, s{sT1}",
          f"s_add_u32 s{sT0}, s{sT0}, {WS_H}")
        s(f"v_lshrrev_b32 v{vX}, 3, v{vL}", f"s_mov_b32 s{sT1}, {HPL}", f"v_mul_lo_u32 v{vX}, v{vX}, s{sT1}", f"v_and_b32 v{vY}, 7, v{vL}",
          f"v_lshl_add_u32 v{vX}, v{vY}, 4, v{vX}")
        for i in range(4): s(f"v_mov_b32 v{vQ + 24 + i}, 0")
        s.vmem(f"buffer_store_dwordx4 {v(vQ + 24, 4)}, v{vX}, {srd(WS)}, s{sT0} offen sc1", None, cond=True)
        s(f"{Lp}:")
        s.d128(vE, 1024, False)
        s.stamp('b1epi')

        def w2_dma(half):
            it = []
            for k in range(2):
                it += [f"s_lshl_b32 s{sT2}, s{sW}, 16", f"s_add_u32 s{sT2}, s{sT2}, {(half * 8 + k) * 32768}"]
                it += s.dma4(vE, W2, sT2, sRING, 32768 * (1 + half) + 4096 * k, 'w2')
            return it

        def h_kv_dma():
            it = ["s_barrier"]
            it += [f"v_lshrrev_b32 v{vX}, 4, v{vL}", f"v_lshlrev_b32 v{vY}, 1, v{vX}", f"v_and_b32 v{vU}, 15, v{vL}", f"v_xor_b32 v{vY}, v{vY}, v{vU}",
                   f"s_mov_b32 s{sT0}, {HPL}", f"v_mul_lo_u32 v{vX}, v{vX}, s{sT0}", f"v_lshl_add_u32 v{vU + 1}, v{vY}, 4, v{vX}",
                   f"s_lshl_b32 s{sHB}, s{sTB}, 10", f"s_lshl_b32 s{sT0}, s{sW}, 8", f"s_add_u32 s{sHB}, s{sHB}, s{sT0}", f"s_lshl_b32 s{sT1}, s{sW}, 14"]
            shift = [1, -1, 2, -2]
            for m in range(16):
                it.append([f"s_add_u32 m0, s{sT1}, {m * 1024}", f"s_add_u32 s{sT0}, s{sHB}, {WS_H + m * 4 * HPL + (8 - shift[m >> 2]) * 16}",
                           ('vm', f"buffer_load_dwordx4 v{vU + 1}, {srd(WS)}, s{sT0} offen sc1 lds", 'h')])
            return it

        def kv_offsets():
            it = [f"v_lshrrev_b32 v{vX}, 4, v{vL}", f"s_lshl_b32 s{sT0}, s{sW}, 3", f"v_add_u32 v{vX}, s{sT0}, v{vX}"]
            for p in range(2):
                it += [f"v_add_u32 v{vY}, {4 * p}, v{vX}", f"v_and_b32 v{vU}, 15, v{vY}", f"v_xor_b32 v{vU}, v{vU}, v{vL}", f"v_and_b32 v{vU}, 15, v{vU}",
                       f"v_lshlrev_b32 v{vU}, 4, v{vU}", f"v_lshl_add_u32 v{vE + p}, v{vX}, 8, v{vU}"]
                it += [f"v_and_b32 v{vU}, 7, v{vY}", f"v_lshlrev_b32 v{vU}, 1, v{vU}", f"v_xor_b32 v{vU}, v{vU}, v{vL}", f"v_and_b32 v{vU}, 15, v{vU}",
                       f"v_lshlrev_b32 v{vU}, 4, v{vU}", f"v_lshl_add_u32 v{vE + 2 + p}, v{vX}, 8, v{vU}"]
            return it

        def q_extra(st):
            ex = {}
            if st == 2: ex['at'] = {9: ["s_barrier", lambda: s.signal(0)]}
            if st == 11: ex['at'] = {12: s.poll_items(True, 'p1')}
            if st == 13: ex['dma'] = w2_dma(0)
            if st == 14:
                ex['dma'] = w2_dma(1)
                ex['at'] = {9: [lambda: s.poll_check(0, 'p1')]}
            if st == 15: ex['dma'] = h_kv_dma()
            return ex
        s.ptype('q', WQ, 32 * 8192, 4 * 8192, q_extra)
        s.stamp('qproj')
        for it in kv_offsets(): s.item(it)
        for t in (0, 1):
            for it in s.kv_dma(t): s.item(it)
        c = 1.4426950408889634 / math.sqrt(128)
        s(f"s_mov_b32 s{sC}, {f2u(c)}", f"s_mov_b32 s{sC + 1}, {f2u(c)}")
        for ds in range(4):
            for tt in range(4):
                q = vQ + 16 * ds + 4 * tt
                for u in range(2):
                    for j in range(2):
                        r = 128 + 16 * (2 * ds + u) + 4 * tt + 2 * j
                        s(f"v_pk_mul_f32 {v(r, 2)}, {v(r, 2)}, s[{sC}:{sC + 1}]")
                for u in range(2):
                    for j in range(2):
                        r = 128 + 16 * (2 * ds + u) + 4 * tt + 2 * j
                        s(f"v_cvt_pk_bf16_f32 v{q + 2 * u + j}, v{r}, v{r + 1}")
            for tt in range(4):
                q = vQ + 16 * ds + 4 * tt
                for j in range(2): s(f"v_permlane32_swap_b32 v{q + j}, v{q + 2 + j}")
            for tt in range(4):
                q = vQ + 16 * ds + 4 * tt
                for j in range(2): s(f"v_permlane16_swap_b32 v{q + j}, v{q + 2 + j}")
        s.dump('q', [f"v{vQ + i}" for i in range(64)], 0)
        s.stamp('qepi')
        s.wait(vm=0)
        s("s_barrier")
        s.stamp('b2wait')
        for m in range(3):
            for it in s.stype_reads(m, 'b2'): s.item(it)
        s.t256(vT0, base_imm=KVPOS[0] + 2048, kv=True)
        s(f"v_and_b32 v{vX}, 15, v{vL}", f"v_lshrrev_b32 v{vY}, 3, v{vX}", f"v_lshlrev_b32 v{vY}, 12, v{vY}", f"v_and_b32 v{vU}, 7, v{vX}",
          f"v_lshl_add_u32 v{vY}, v{vU}, 8, v{vY}", f"v_add_u32 v{vY}, {KVPOS[0]}, v{vY}", f"v_lshrrev_b32 v{vU}, 4, v{vL}")
        for ds in range(4):
            s(f"v_add_u32 v{vU + 1}, {4 * ds}, v{vU}", f"v_xor_b32 v{vU + 1}, v{vU + 1}, v{vX}", f"v_lshl_add_u32 v{vT1 + ds}, v{vU + 1}, 4, v{vY}")
        s.stype_resident('b2')
        s.wait(lg=0)
        s("s_barrier")
        s.stamp('b2')
        for it in s.k_reads(0): s.item(it)
        for t in range(2):
            for n in range(2):
                for j in range(2):
                    xr = vX1 + 4 * t + 2 * n + j; r = vACC + 8 * n + 4 * t + 2 * j
                    s(f"v_dot2_f32_bf16 v{r}, v{xr}, s{sLO}, v{r}", f"v_dot2_f32_bf16 v{r + 1}, v{xr}, s{sHI}, v{r + 1}")
        for t in range(2):
            for n in range(2):
                for j in range(2):
                    xr = vX1 + 4 * t + 2 * n + j; r = vACC + 8 * n + 4 * t + 2 * j
                    s(f"v_cvt_pk_bf16_f32 v{xr}, v{r}, v{r + 1}")
        s(f"v_lshlrev_b32 v{vX}, 4, v{vL}")
        s(f"s_lshl_b32 s{sT0}, s{sTB}, 16", f"s_lshl_b32 s{sT1}, s{sTH}, 15", f"s_add_u32 s{sT0}, s{sT0}, s{sT1}", f"s_lshl_b32 s{sT1}, s{sG}, 11",
          f"s_add_u32 s{sT0}, s{sT0}, s{sT1}", f"s_lshl_b32 s{sT1}, s{sCH}, 10", f"s_add_u32 s{sT0}, s{sT0}, s{sT1}", f"s_add_u32 s{sT0}, s{sT0}, {WS_X1}")
        s.vmem(f"buffer_store_dwordx4 {v(vX1, 4)}, v{vX}, {srd(WS)}, s{sT0} offen sc1", 'x1st')
        s(f"s_add_u32 s{sT0}, s{sT0}, 16384")
        s.vmem(f"buffer_store_dwordx4 {v(vX1 + 4, 4)}, v{vX}, {srd(WS)}, s{sT0} offen sc1", 'x1st')
        for t in (2, 3):
            for it in s.kv_dma(t): s.item(it)
        for i in range(4): s(f"v_mov_b32 v{vX}, s{sONE2}", f"v_accvgpr_write_b32 a{208 + i}, v{vX}")
        s.d128(vD, 3584, False, oob_w3=True)
        s(f"s_mov_b32 s{sOFF}, 0")

        s("L_attn:")
        s.wait(lg=0)
        Lsk, Lj = s.label('nomax'), s.label('join')
        s(f"s_cmp_lg_u32 s{sPASS}, 0", f"s_cbranch_scc1 {Lsk}")
        for m_ in s.qk_spine(lambda qt: "0"): s(m_)
        for it in s.k_reads(1): s.item(it)
        for qt in range(4):
            b = vS_ + 8 * qt; r = vACC + 4 * qt
            s(f"v_max3_f32 v{r}, v{b}, v{b + 1}, v{b + 2}", f"v_max3_f32 v{r + 1}, v{b + 3}, v{b + 4}, v{b + 5}", f"v_max3_f32 v{r}, v{r}, v{b + 6}, v{b + 7}",
              f"v_max_f32 v{r}, v{r}, v{r + 1}")
        for qt in range(4): s(f"v_mov_b32 v{vACC + 4 * qt + 1}, v{vACC + 4 * qt}")
        for qt in range(4): s(f"v_permlane32_swap_b32 v{vACC + 4 * qt}, v{vACC + 4 * qt + 1}")
        for qt in range(4): s(f"v_max_f32 v{vACC + 4 * qt}, v{vACC + 4 * qt}, v{vACC + 4 * qt + 1}")
        for qt in range(4): s(f"v_mov_b32 v{vACC + 4 * qt + 1}, v{vACC + 4 * qt}")
        for qt in range(4): s(f"v_permlane16_swap_b32 v{vACC + 4 * qt}, v{vACC + 4 * qt + 1}")
        for qt in range(4): s(f"v_max_f32 v{vACC + 4 * qt}, v{vACC + 4 * qt}, v{vACC + 4 * qt + 1}")
        for qt in range(4):
            r = vACC + 4 * qt
            s(f"v_sub_f32 v{r}, 0, v{r}")
            for i in range(1, 4): s(f"v_mov_b32 v{r + i}, v{r}")
        for qt in range(4):
            for i in range(8): s(f"v_add_f32 v{vS_ + 8 * qt + i}, v{vS_ + 8 * qt + i}, v{vACC + 4 * qt}")
        s(f"s_branch {Lj}")
        s(f"{Lsk}:")
        for m_ in s.qk_spine(lambda qt: v(vACC + 4 * qt, 4)): s(m_)
        for it in s.k_reads(1): s.item(it)
        s("s_nop 7")
        s(f"{Lj}:")
        for qt in range(3):
            E, C = s.job(0, qt)
            for e in E: s(e)
            for c_ in C: s(c_)
        s.wait(lg=0)
        s.stamp('attn_pro')

        def x1_loads(lo, hi):
            it = []
            for m in range(lo, hi):
                if m % 4 == 0: it.append(f"s_add_u32 s{sT0}, s{sHB}, {m * 1024}")
                it.append(('vm', f"buffer_load_dwordx4 {v(vRAW + 4 * m, 4)}, v{vY}, {srd(WS)}, s{sT0} offen offset:{(m & 3) * 1024} sc1", 'x1'))
            return it

        def w3_dma(ms):
            it = s.dma4(vD, W3, sOFF, sRING, ((ms + 1) % 3) * 32768, ('c', 'd', ms))
            it.append(f"s_add_u32 s{sOFF}, s{sOFF}, {32 * 3584}")
            it += s.dma4(vD, W3, sOFF, sRING, ((ms + 1) % 3) * 32768 + 4096, ('c', 'd', ms))
            it.append(f"s_add_u32 s{sOFF}, s{sOFF}, {32 * 3584}")
            return it

        for t in range(16):
            fill = {}
            if t < 15:
                spine = s.qk_spine(lambda qt: v(vACC + 4 * qt, 4))
                s.place_job(fill, t, 3, 0, 16)
                s.place_job(fill, t + 1, 0, 16, 16)
                V = s.v_reads(t)
                for i, it in enumerate(V):
                    g = [1, 3, 3, 5, 7, 7, 9, 11, 11, 13, 15, 17, 19, 21, 23, 25][i]
                    fill.setdefault(g, []).append(it)
                s.weave(spine, fill)
            else:
                V = s.v_reads(t)
                for it in V: s.item(it)
                E, C = s.job(t, 3)
                for e in E: s(e)
                for c_ in C: s(c_)
            if t + 2 < 16: s.wait(vm=('kv', t + 2), lg=0)
            else: s.wait(lg=0)
            if t < 14: s("s_barrier")
            if t == 0: s.signal(1)
            spine = s.pv_spine(t); fill = {}
            if t < 15:
                s.place_job(fill, t + 1, 1, 0, 16)
                s.place_job(fill, t + 1, 2, 18, 16)
            other = []
            if t + 2 < 16: other += s.k_reads(t + 2)
            for i, it in enumerate(other): fill.setdefault([1, 5, 9, 13, 16, 17, 21, 25][i], []).append(it)
            dm = []
            if t + 4 < 16: dm = s.kv_dma(t + 4)
            if t == 10: dm += s.poll_items(False, 'p2')
            if t == 12:
                fill.setdefault(-1, []).append(lambda: s.poll_check(1, 'p2'))
                dm = [f"v_lshlrev_b32 v{vY}, 4, v{vL}", f"s_lshl_b32 s{sHB}, s{sTB}, 16", f"s_lshl_b32 s{sT0}, s{sW}, 14", f"s_add_u32 s{sHB}, s{sHB}, s{sT0}",
                      f"s_add_u32 s{sHB}, s{sHB}, {WS_X1}"] + x1_loads(0, 8)
            if t == 13: dm = x1_loads(8, 16)
            if t == 14: dm = w3_dma(0)
            if t == 15: dm = w3_dma(1)
            spread(fill, dm, 3, 35)
            s.weave(spine, fill)
            s.wait(lg=0)
        s.stamp('attn')
        s("s_nop 7")
        for qt in range(4): s(f"v_accvgpr_read_b32 v{vS_ + qt}, a{128 + 4 * qt}")
        s(f"v_max3_f32 v{vX}, v{vS_}, v{vS_ + 1}, v{vS_ + 2}", f"v_max_f32 v{vX}, v{vX}, v{vS_ + 3}")
        s(f"s_mov_b32 s{sT0}, {f2u(2.0 ** s.thr)}")
        s(f"v_cmp_u_f32 s[{sT2}:{sT3}], v{vS_}, v{vS_ + 1}", f"v_cmp_u_f32 vcc, v{vS_ + 2}, v{vS_ + 3}", f"s_or_b64 s[{sT2}:{sT3}], s[{sT2}:{sT3}], vcc")
        s(f"v_cmp_lt_f32 vcc, s{sT0}, v{vX}", f"s_or_b64 vcc, vcc, s[{sT2}:{sT3}]", "s_cmp_lg_u64 vcc, 0", f"s_cselect_b32 s{sT0}, 1, 0")
        s(f"v_mov_b32 v{vX}, s{sT0}", f"s_lshl_b32 s{sT1}, s{sW}, 2", f"v_mov_b32 v{vU}, s{sT1}")
        s.lds(f"ds_write_b32 v{vU}, v{vX}", None)
        s.wait(lg=0)
        s("s_barrier")
        s(f"v_and_b32 v{vU}, 3, v{vL}", f"v_lshlrev_b32 v{vU}, 2, v{vU}")
        s.lds(f"ds_read_b32 v{vX}, v{vU}", None)
        s.wait(lg=0)
        s(f"v_cmp_ne_u32 vcc, 0, v{vX}", f"s_cmp_eq_u32 s{sPASS}, 0", "s_cselect_b64 s[58:59], -1, 0", "s_and_b64 vcc, vcc, s[58:59]", "s_cbranch_vccnz L_slow")
        for it in w3_dma(2): s.item(it)
        for qt in range(4): s(f"v_rcp_f32 v{vS_ + 2 * qt + 8}, v{vS_ + qt}")
        for ds in range(4):
            for qt in range(4):
                T = vP + 8 * (qt & 1)
                for u in range(2):
                    for i in range(4): s(f"v_accvgpr_read_b32 v{T + 4 * u + i}, a{16 * (2 * ds + u) + 4 * qt + i}")
                for i in range(4): s(f"v_pk_mul_f32 {v(T + 2 * i, 2)}, {v(T + 2 * i, 2)}, {v(vS_ + 2 * qt + 8, 2)} op_sel_hi:[1,0]")
                for i in range(4): s(f"v_cvt_pk_bf16_f32 v{vQ + 16 * ds + 4 * qt + i}, v{T + 2 * i}, v{T + 2 * i + 1}")
        s.dump('o', [f"v{vQ + i}" for i in range(64)], 1)
        s("s_barrier")
        s.stamp('oepi')
        s(f"s_lshl_b32 s{sT0}, s{sW}, 14", f"v_add_u32 v{vB2}, s{sT0}, v{vB}")
        s.t128(vT0, [0, 1, 2, 3], base_s=sRING)
        for i in range(4): s(f"v_add_u32 v{vT1 + i}, 0x10000, v{vT0 + i}")
        s.wait(vm='x1')
        s.layernorm(False, vB2)
        s.wait(vm=('c', 'd', 0), lg=0)
        s("s_barrier")
        s.stamp('ln3')

        def c_reads(ms):
            ab = 32 * (ms & 1); bb = 64 + 32 * (ms & 1)
            slot = (ms + 1) % 3
            base = vT1 if slot == 2 else vT0; off = 32768 if slot == 1 else 0
            A, B = [], []
            for ks in range(2):
                tg = ('c', ms, 'a' if ks == 0 else 'b')
                b_ = [('lds', f"ds_read_b128 {a(bb + 16 * ks + 4 * tt, 4)}, v{vB} offset:{(16 * tt + 2 * ms + ks) * 1024}", tg) for tt in range(4)]
                a_ = [('lds', f"ds_read_b64_tr_b16 {a(ab + 16 * ks + 4 * nt + 2 * jh, 2)}, v{base + nt} offset:{off + ks * 4096 + jh * 2048}", tg)
                      for nt in range(4) for jh in range(2)]
                A += [b_[0]] + a_[0:2] + b_[1:] + a_[2:]
            return A
        for it in c_reads(0): s.item(it)
        s.d256(vE, 1024, False)
        for ms in range(8):
            ab = 32 * (ms & 1); bb = 64 + 32 * (ms & 1)
            spine = []
            for ks in range(2):
                for nt in range(4):
                    for tt in range(4):
                        d = v(128 + 16 * nt + 4 * tt, 4)
                        spine.append(mfma(d, a(ab + 16 * ks + 4 * nt, 4), a(bb + 16 * ks + 4 * tt, 4), "0" if (ms == 0 and ks == 0) else d))
            fill = {-1: [('wait', None, ('c', ms, 'a'))], 1: [('wait', None, 0)]}
            if ms + 3 < 8: dm = w3_dma(ms + 3)
            else:
                k = ms - 5
                dm = ([f"s_mov_b32 s{sOFF}, 0"] if k == 0 else [])
                dm += s.dma4(vE, WO, sOFF, sRING, k * 32768, ('o', 'd', k)) + [f"s_add_u32 s{sOFF}, s{sOFF}, {16 * 1024}"]
                dm += s.dma4(vE, WO, sOFF, sRING, k * 32768 + 4096, ('o', 'd', k)) + [f"s_add_u32 s{sOFF}, s{sOFF}, {16 * 1024}"]
            spread(fill, dm, 2, 8)
            if ms + 1 < 8:
                fill.setdefault(8, []).append(('wait', ('c', 'd', ms + 1), None))
                spread(fill, c_reads(ms + 1), 9, 26)
            s.weave(spine, fill)
        s("s_barrier")
        s.stamp('b3')
        s(f"s_lshl_b32 s{sT0}, s{sW}, 12", f"v_add_u32 v{vB2}, s{sT0}, v{vB}")
        for ds in range(4):
            for qt in range(4):
                s.lds(f"ds_write_b128 v{vB2}, {v(vQ + 16 * ds + 4 * qt, 4)} offset:{qt * 16384 + ds * 1024}", 'ow')
        for i in range(4): s(f"v_mov_b32 v{vD + i}, v{vE + i}")
        s.t256(vT0, base_s=sRING)
        for nt in range(8): s(f"v_add_u32 v{vT1 + nt}, 0x10000, v{vT0 + nt}")
        s.wait(vm=('o', 'd', 0))
        for it in s.p_reads_A(0, 0, 'o'): s.item(it)
        s.gelu_consts(192)
        s(f"v_lshlrev_b32 v{vX}, 4, v{vL}")
        s(f"s_mul_i32 s{sHB}, s{sTB}, 229376", f"s_mul_i32 s{sT0}, s{sG}, {7 * 4096}", f"s_add_u32 s{sHB}, s{sHB}, s{sT0}", f"s_lshl_b32 s{sT0}, s{sW}, 13",
          f"s_add_u32 s{sHB}, s{sHB}, s{sT0}", f"s_add_u32 s{sHB}, s{sHB}, {WS_H2}")
        Lw3 = s.label('w3skip')
        for b in range(2):
            if b == 1: s(f"s_cmp_eq_u32 s{sW}, 3", f"s_cbranch_scc1 {Lw3}", f"s_add_u32 s{sHB}, s{sHB}, 4096")
            s.gelu_pairs([128 + 32 * b + 2 * i for i in range(16)], 192)
            for tt in range(4):
                for n in range(2):
                    for j in range(2):
                        r = 128 + 16 * (2 * b + n) + 4 * tt + 2 * j
                        s(f"v_cvt_pk_bf16_f32 v{208 + 16 * b + 4 * tt + 2 * n + j}, v{r}, v{r + 1}")
                s.vmem(f"buffer_store_dwordx4 {v(208 + 16 * b + 4 * tt, 4)}, v{vX}, {srd(WS)}, s{sHB} offen offset:{tt * 1024} sc1", 'h2st', cond=(b == 1))
        s(f"{Lw3}:")
        s.wait(lg=0)
        s("s_barrier")
        for it in s.p_reads_B(0, 'o'): s.item(it)
        s.d128(vE, 1024, False)
        s.stamp('b3epi')

        def b4_dma(c, with_h2=True, with_w4=True):
            slot = B4SLOT[c]if c < 5 else B4SLOT[c % 5]
            it = []
            if with_w4:
                it += [f"s_lshl_b32 s{sT2}, s{sW}, 15", f"s_add_u32 s{sT2}, s{sT2}, {c * 4 * 32768}", f"s_lshl_b32 s{sT1}, s{sW}, 13"]
                it += s.dma4(vE, W4, sT2, sT1, slot + 4096, ('y', c))
            if with_h2:
                it += [f"s_lshl_b32 s{sT1}, s{sW}, 13", f"s_add_u32 m0, s{sT1}, {slot}", f"s_add_u32 s{sT2}, s{sHB}, {c * 4 * 4096}"]
                for tt in range(4):
                    it.append(('vm', f"buffer_load_dwordx4 v{vB2}, {srd(WS)}, s{sT2} offen offset:{tt * 1024} sc1 lds", ('y', c)))
            return it

        def o_extra(st):
            ex = {}
            if st == 2: ex['at'] = {9: ["s_barrier", lambda: s.signal(2)]}
            if st == 11:
                ex['at'] = {12: s.poll_items(False, 'p3') + [f"v_lshlrev_b32 v{vB2}, 4, v{vL}", f"s_mul_i32 s{sHB}, s{sTB}, 229376", f"s_lshl_b32 s{sT0}, s{sW}, 12",
                                                             f"s_add_u32 s{sHB}, s{sHB}, s{sT0}", f"s_add_u32 s{sHB}, s{sHB}, {WS_H2}"]}
            if st == 13:
                ex['early'] = {1: [lambda: s.poll_check(2, 'p3')]}
                ex['dma'] = b4_dma(0)
            if st == 14: ex['dma'] = b4_dma(1)
            if st == 15: ex['dma'] = b4_dma(2) + ["s_barrier"] + b4_dma(3)
            return ex
        s.ptype('o', WO, 32 * 1024, 16 * 1024, o_extra)
        s.stamp('oproj')
        s(f"v_lshlrev_b32 v{vX}, 4, v{vL}")
        s(f"s_lshl_b32 s{sT0}, s{sTB}, 19", f"s_lshl_b32 s{sT1}, s{sW}, 17", f"s_add_u32 s{sT0}, s{sT0}, s{sT1}", f"s_lshl_b32 s{sT1}, s{sG}, 10",
          f"s_add_u32 s{sT0}, s{sT0}, s{sT1}", f"s_add_u32 s{sT0}, s{sT0}, {WS_SP}")
        for b in range(4):
            for tt in range(4):
                for n in range(2):
                    for j in range(2):
                        r = 128 + 16 * (2 * b + n) + 4 * tt + 2 * j
                        s(f"v_cvt_pk_bf16_f32 v{vQ + 16 * b + 4 * tt + 2 * n + j}, v{r}, v{r + 1}")
                s(f"s_add_u32 s{sT1}, s{sT0}, {b * 32768 + tt * 8192}")
                s.vmem(f"buffer_store_dwordx4 {v(vQ + 16 * b + 4 * tt, 4)}, v{vX}, {srd(WS)}, s{sT1} offen sc1", 'spst')
        for it in b4_dma(4): s.item(it)
        s.t128(vT0, ('s', sCH), base_imm=4096)
        s(f"s_lshl_b32 s{sT0}, s{sTH}, 11", f"v_add_u32 v{vT0 + 2}, s{sT0}, v{vB2}")
        for wdw in (1, 2):
            for i in range(3): s(f"v_add_u32 v{vT0 + 4 * wdw + i}, {0x10000 * wdw}, v{vT0 + i}")
        s.stamp('spst')

        def y_reads(c, j):
            slot = B4SLOT[c % 5]
            base = vT0 + 4 * (slot >> 16); off = (slot & 0xffff) + j * 8192
            buf = 16 * j
            it = []
            for i in range(2):
                it.append(('lds', f"ds_read_b128 {a(buf + 8 + 4 * i, 4)}, v{base + 2} offset:{off + i * 1024}", ('y', c, j)))
                for jh in range(2):
                    it.append(('lds', f"ds_read_b64_tr_b16 {a(buf + 4 * i + 2 * jh, 2)}, v{base + i} offset:{off + jh * 2048}", ('y', c, j)))
            return it

        def sp_loads(t):
            it = []
            for src in range(8):
                if src % 4 == 0: it.append(f"s_add_u32 s{sT0}, s{sOFF}, {t * 8192 + src * 1024}")
                it.append(('vm', f"buffer_load_dwordx4 {v(vQ + 32 * t + 4 * src, 4)}, v{vB2}, {srd(WS)}, s{sT0} offen offset:{(src & 3) * 1024} sc1", ('sp', t)))
            return it
        for c in range(14):
            s.wait(vm=('y', c))
            s("s_barrier")
            if c == 3: s.wait(vm='spst'); s("s_barrier"); s.signal(3)
            for it in y_reads(c, 0) + y_reads(c, 1): s.item(it)
            spine = []; fill = {}
            for j in range(4):
                for n in range(2):
                    for t in range(2):
                        d = v(vACC + 8 * n + 4 * t, 4)
                        spine.append(mfma(d, a(16 * j + 4 * n, 4), a(16 * j + 8 + 4 * t, 4), "0" if (c == 0 and j == 0) else d))
                fill.setdefault(4 * j - 1, []).append(('wait', None, ('y', c, j)))
                if j + 2 < 4: spread(fill, y_reads(c, j + 2), 4 * j, 4 * j + 3)
            if 1 <= c and c + 4 < 14:
                its = b4_dma(c + 4)
                spread(fill, its, 8, 15)
            if c == 9:
                spread(fill, s.poll_items(False, 'p4') + [
                    f"s_lshl_b32 s{sOFF}, s{sTB}, 19", f"s_lshl_b32 s{sT0}, s{sG}, 16", f"s_add_u32 s{sOFF}, s{sOFF}, s{sT0}", f"s_lshl_b32 s{sT0}, s{sCH}, 15",
                    f"s_add_u32 s{sOFF}, s{sOFF}, s{sT0}", f"s_lshl_b32 s{sT0}, s{sTH}, 14", f"s_add_u32 s{sOFF}, s{sOFF}, s{sT0}", f"s_add_u32 s{sOFF}, s{sOFF}, {WS_SP}"], 0, 7)
            if c == 11:
                fill.setdefault(7, []).append(lambda: s.poll_check(3, 'p4'))
                spread(fill, sp_loads(0) + sp_loads(1), 8, 15)
            if c == 12:
                its = [f"v_and_b32 v{vX}, 15, v{vL}", f"v_lshlrev_b32 v{vX}, 10, v{vX}", f"v_lshrrev_b32 v{vY}, 4, v{vL}", f"v_lshl_add_u32 v{vD}, v{vY}, 4, v{vX}",
                       f"s_lshl_b32 s{sHB}, s{sTB}, 16", f"s_lshl_b32 s{sT0}, s{sTH}, 15", f"s_add_u32 s{sHB}, s{sHB}, s{sT0}", f"s_lshl_b32 s{sT0}, s{sG}, 7",
                       f"s_add_u32 s{sHB}, s{sHB}, s{sT0}", f"s_lshl_b32 s{sT0}, s{sCH}, 6", f"s_add_u32 s{sHB}, s{sHB}, s{sT0}", f"s_add_u32 s{sT1}, s{sHB}, 16384",
                       ('vm', f"buffer_load_dwordx4 {v(192, 4)}, v{vD}, {srd(X)}, s{sHB} offen", 'xf'),
                       ('vm', f"buffer_load_dwordx4 {v(196, 4)}, v{vD}, {srd(X)}, s{sT1} offen", 'xf')]
                spread(fill, its, 8, 15)
            s.weave(spine, fill)
        s.stamp('b4')
        for t in range(2):
            for n in range(2):
                for j in range(2):
                    xr = vX1 + 4 * t + 2 * n + j; r = vACC + 8 * n + 4 * t + 2 * j
                    s(f"v_dot2_f32_bf16 v{r}, v{xr}, s{sLO}, v{r}", f"v_dot2_f32_bf16 v{r + 1}, v{xr}, s{sHI}, v{r + 1}")
        s(f"s_mov_b32 s{sC}, {f2u(-1.4426950408889634)}", f"s_mov_b32 s{sC + 1}, {f2u(-1.4426950408889634)}")
        T = 128
        for i in range(8): s(f"v_pk_mul_f32 {v(T + 2 * i, 2)}, {v(vACC + 2 * i, 2)}, s[{sC}:{sC + 1}]")
        for i in range(16): s(f"v_exp_f32 v{T + i}, v{T + i}")
        for i in range(8): s(f"v_pk_add_f32 {v(T + 2 * i, 2)}, {v(T + 2 * i, 2)}, 1.0 op_sel_hi:[1,0]")
        for i in range(16): s(f"v_rcp_f32 v{T + i}, v{T + i}")
        for i in range(8): s(f"v_pk_mul_f32 {v(vACC + 2 * i, 2)}, {v(vACC + 2 * i, 2)}, {v(T + 2 * i, 2)}")
        for t in range(2):
            s.wait(vm=('sp', t))
            for src in range(8):
                for n in range(2):
                    for j in range(2):
                        pr = vQ + 32 * t + 4 * src + 2 * n + j; r = T + 8 * n + 4 * t + 2 * j
                        c0 = "0" if src == 0 else f"v{r}"; c1 = "0" if src == 0 else f"v{r + 1}"
                        s(f"v_dot2_f32_bf16 v{r}, v{pr}, s{sLO}, {c0}", f"v_dot2_f32_bf16 v{r + 1}, v{pr}, s{sHI}, {c1}")
        for i in range(8): s(f"v_pk_mul_f32 {v(T + 2 * i, 2)}, {v(T + 2 * i, 2)}, {v(vACC + 2 * i, 2)}")
        for t in range(2):
            for i in range(4): s(f"v_permlane32_swap_b32 v{T + 4 * t + i}, v{T + 8 + 4 * t + i}")
        for t in range(2):
            for i in range(4): s(f"v_permlane16_swap_b32 v{T + 4 * t + i}, v{T + 8 + 4 * t + i}")
        s.wait(vm='xf')
        for t in range(2):
            for h in range(2):
                for j in range(2):
                    r = T + 8 * h + 4 * t + 2 * j; xr = 192 + 4 * t + 2 * h + j
                    s(f"v_dot2_f32_bf16 v{r}, v{xr}, s{sLO}, v{r}", f"v_dot2_f32_bf16 v{r + 1}, v{xr}, s{sHI}, v{r + 1}")
        for t in range(2):
            for h in range(2):
                for j in range(2):
                    r = T + 8 * h + 4 * t + 2 * j
                    s(f"v_cvt_pk_bf16_f32 v{200 + 4 * t + 2 * h + j}, v{r}, v{r + 1}")
        s.vmem(f"buffer_store_dwordx4 {v(200, 4)}, v{vD}, {srd(OUT)}, s{sHB} offen", None)
        s.vmem(f"buffer_store_dwordx4 {v(204, 4)}, v{vD}, {srd(OUT)}, s{sT1} offen", None)
        if s.stamps:
            s.stamp('end')
            s(f"s_lshl_b32 s{sT0}, s2, 2", f"s_add_u32 s{sT0}, s{sT0}, s{sW}", f"s_lshl_b32 s{sT0}, s{sT0}, 9", f"s_add_u32 s{sT0}, s{sT0}, {WS_STAMP}")
            s(f"v_mov_b32 v{vX}, 0", "s_mov_b64 exec, 1")
            for i in range(2 * s.nstamp):
                s(f"v_accvgpr_read_b32 v{vY}, a{212 + i}")
                s.vmem(f"buffer_store_dword v{vY}, v{vX}, {srd(WS)}, s{sT0} offen offset:{4 * i}", None)
                s("s_waitcnt vmcnt(0)")
        s("s_endpgm")

        s("L_slow:")
        s("s_waitcnt vmcnt(0) lgkmcnt(0)", "s_barrier")
        for i in range(16): s(f"v_mov_b32 v{vACC + i}, 0xff800000")
        s(f"s_mov_b32 s{sKV}, 0", f"s_mov_b32 s{sPASS}, 0")
        s("L_slow_loop:")
        s(f"s_add_u32 m0, s{sKVM}, {KVPOS[2]}", "s_nop 0")
        s(f"buffer_load_dwordx4 v{vE}, {srd(KC)}, s{sKV} offen lds", f"buffer_load_dwordx4 v{vE + 1}, {srd(KC)}, s{sKV} offen offset:1024 lds")
        s(f"s_add_u32 s{sKV}, s{sKV}, 8192", "s_waitcnt vmcnt(0)", "s_barrier")
        for it in s.k_reads(0): s(it[1])
        s("s_waitcnt lgkmcnt(0)", "s_barrier")
        for m_ in s.qk_spine(lambda qt: "0"): s(m_)
        s("s_nop 7")
        for qt in range(4):
            b = vS_ + 8 * qt; r = vACC + 4 * qt
            for i in range(4): s(f"v_max3_f32 v{r}, v{r}, v{b + 2 * i}, v{b + 2 * i + 1}")
        s(f"s_add_u32 s{sPASS}, s{sPASS}, 1", f"s_cmp_lt_u32 s{sPASS}, 16", "s_cbranch_scc1 L_slow_loop")
        for qt in range(4):
            r = vACC + 4 * qt
            s.xsum(r, r + 1, op="v_max_f32")
            s(f"v_sub_f32 v{r}, 0, v{r}")
            for i in range(1, 4): s(f"v_mov_b32 v{r + i}, v{r}")
        s(f"s_mov_b32 s{sKV}, 0", f"s_mov_b32 s{sOFF}, 0")
        for t in range(4):
            for it in s.kv_dma(t): s(it if isinstance(it, str) else it[1])
        s("s_waitcnt vmcnt(0)", "s_barrier")
        for it in s.k_reads(0): s(it[1])
        s("s_branch L_attn")
        s("L_end:", "s_endpgm")
        return s.text()


HEADER = """; Fused kernel: x + attention(LN(x)) * silu(mixer-MLP(LN(x))), one persistent workgroup per CU.
; @launch grid=(256,1,1) block=(256,1,1) lds=163840
.amdgcn_target "amdgcn-amd-amdhsa--gfx950"
.text
.globl {n}
.p2align 8
.type {n},@function
{n}:
"""
FOOTER = """.section .rodata,"a"
.p2align 6
.amdhsa_kernel {n}
  .amdhsa_next_free_vgpr 512
  .amdhsa_next_free_sgpr 102
  .amdhsa_accum_offset 256
  .amdhsa_group_segment_fixed_size 0
  .amdhsa_kernarg_size 104
  .amdhsa_user_sgpr_count 2
  .amdhsa_user_sgpr_kernarg_segment_ptr 1
  .amdhsa_system_sgpr_workgroup_id_x 1
  .amdhsa_float_denorm_mode_32 3
.end_amdhsa_kernel
"""


def generate(**kw):
    g = Gen(**kw)
    body = g.build()
    return HEADER.format(n=NAME) + body + FOOTER.format(n=NAME), g


if __name__ == "__main__":
    import argparse
    ap = argparse.ArgumentParser()
    ap.add_argument("-o", default="k.s"); ap.add_argument("--amap", type=int, default=2)
    ap.add_argument("--dumps", default=""); ap.add_argument("--stamps", action="store_true"); ap.add_argument("--thr", type=int, default=30)
    A_ = ap.parse_args()
    txt, g = generate(amap=A_.amap, dumps=[d for d in A_.dumps.split(",") if d], stamps=A_.stamps, thr_log2=A_.thr)
    open(A_.o, "w").write(txt)
    print("lines", txt.count("\n"), "pads", g.npad, "stamps", getattr(g, 'stamp_names', None))
```

```python
import re

REG_RE = re.compile(r'^(-?)(abs\()?([vas])(\d+)\)?$')
RNG_RE = re.compile(r'^(-?)([vas])\[(\d+):(\d+)\]$')


def regs_of(tok):
    tok = tok.strip()
    m = RNG_RE.match(tok)
    if m:
        return {(m.group(2), i) for i in range(int(m.group(3)), int(m.group(4)) + 1)}
    m = REG_RE.match(tok)
    if m:
        return {(m.group(3), int(m.group(4)))}
    if tok == 'vcc':
        return {('s', 'vcc')}
    if tok == 'exec':
        return {('s', 'exec')}
    if tok == 'm0':
        return {('s', 'm0')}
    return set()


TRANS = ('v_exp_f32', 'v_log_f32', 'v_rcp_f32', 'v_rsq_f32', 'v_sqrt_f32', 'v_sin_f32', 'v_cos_f32')


class Ins:
    __slots__ = ('text', 'op', 'kind', 'w', 'r', 'A', 'B', 'C', 'data', 'lds', 'dpp', 'wide', 'nops')

    def __init__(s, text):
        s.text = text
        t = text.split(';')[0].strip()
        s.w = set(); s.r = set(); s.A = set(); s.B = set(); s.C = set(); s.data = set()
        s.lds = False; s.dpp = False; s.wide = False; s.nops = 1
        if t.endswith(':') or t.startswith('.') or not t:
            s.op = 'label'; s.kind = 'label'; s.nops = 0
            return
        parts = t.split(None, 1)
        s.op = parts[0]
        rest = parts[1] if len(parts) > 1 else ''
        ops = [o.strip() for o in rest.split(',')] if rest else []
        mods = ''
        if ops:
            last = ops[-1].split(None, 1)
        toks = []
        depth = 0; cur = ''
        for ch in rest:
            if ch == '[': depth += 1
            if ch == ']': depth -= 1
            if ch == ',' and depth == 0:
                toks.append(cur.strip()); cur = ''
            else:
                cur += ch
        if cur.strip(): toks.append(cur.strip())
        if toks:
            sp = toks[-1].split(None, 1)
            toks[-1] = sp[0]
            mods = sp[1] if len(sp) > 1 else ''
        R = [regs_of(x) for x in toks]
        op = s.op
        if op.startswith('v_mfma'):
            s.kind = 'mfma'; s.w = R[0]; s.A = R[1]; s.B = R[2]; s.C = R[3]; s.r = s.A | s.B | s.C
        elif op.startswith('ds_read') or op.startswith('ds_bpermute'):
            s.kind = 'ds'; s.w = R[0]; s.r = set().union(*R[1:])
        elif op.startswith('ds_write'):
            s.kind = 'ds'; s.r = set().union(*R); s.data = s.r
        elif op.startswith('global_load'):
            s.kind = 'vmem'; s.w = R[0]; s.r = set().union(*R[1:])
        elif op.startswith('buffer_load'):
            s.kind = 'vmem'
            if re.search(r'\blds\b', mods):
                s.lds = True; s.r = set().union(*R) | {('s', 'm0')}
            else:
                s.w = R[0]; s.r = set().union(*R[1:])
        elif op.startswith('buffer_store') or op.startswith('buffer_atomic'):
            s.kind = 'vmem'; s.r = set().union(*R); s.data = R[0]
            s.wide = op.endswith('x4') or op.endswith('x3')
            if op.startswith('buffer_atomic') and 'sc0' in mods: s.w = R[0]
        elif op.startswith('v_'):
            s.kind = 'valu'
            s.dpp = ('quad_perm' in mods or 'row_' in mods)
            if op.startswith('v_permlane'):
                s.w = R[0] | R[1]; s.r = R[0] | R[1]
            elif op.startswith('v_cmp'):
                s.w = R[0]; s.r = set().union(*R[1:])
            elif op.startswith('v_add_co') or op.startswith('v_addc_co'):
                s.w = R[0] | R[1]; s.r = set().union(*R[2:])
            else:
                s.w = R[0]; s.r = set().union(*R[1:]) if len(R) > 1 else set()
                if op.startswith('v_fmac') or op.startswith('v_dot2c') or op.startswith('v_writelane'):
                    s.r |= R[0]
        elif op == 's_nop':
            s.kind = 'salu'; s.nops = int(toks[0]) + 1
        elif op.startswith('s_'):
            s.kind = 'salu'
            if op.startswith('s_cmp') or op.startswith('s_cbranch') or op in ('s_waitcnt', 's_barrier', 's_branch', 's_endpgm', 's_setprio', 's_sleep'):
                s.r = set().union(*R) if R else set()
            else:
                s.w = R[0] if R else set(); s.r = set().union(*R[1:]) if len(R) > 1 else set()
        else:
            raise ValueError('unknown instruction ' + text)


def need(p, c):
    n = 0
    if p.kind == 'valu':
        vw = {x for x in p.w if x[0] in 'va'}
        sw = {x for x in p.w if x[0] == 's'}
        if c.kind == 'mfma' and vw & c.r: n = max(n, 2)
        if c.kind == 'valu':
            if c.dpp and vw & c.r: n = max(n, 2)
            if c.op.startswith('v_permlane') and vw & c.r: n = max(n, 2)
            if (c.op.startswith('v_readfirstlane') or c.op.startswith('v_readlane')) and vw & c.r: n = max(n, 1)
            if p.op in TRANS and vw & c.r and c.op not in TRANS: n = max(n, 1)
            if p.op in TRANS and vw & c.r: n = max(n, 1)
            if p.op.startswith('v_dot2'):
                if vw & (c.r | c.w):
                    if c.op == p.op:
                        if not (vw & c.w): n = max(n, 3)
                    else:
                        n = max(n, 3)
            if sw & c.r:
                n = max(n, 4 if (c.op.startswith('v_readlane') or c.op.startswith('v_writelane')) else 2)
        if p.op.startswith('v_dot2') and c.kind in ('ds', 'vmem', 'mfma') and vw & c.r: n = max(n, 3)
        if c.kind == 'vmem' and sw & c.r: n = max(n, 5)
        if c.kind == 'salu' and sw & c.r: n = max(n, 1)
        if ('s', 'exec') in sw:
            if c.kind == 'mfma': n = max(n, 4)
            if c.kind == 'valu': n = max(n, 5)
    elif p.kind == 'mfma':
        if c.kind == 'mfma':
            if p.w & (c.A | c.B): n = max(n, 8)
            if p.w & c.C and p.w != c.C: n = max(n, 6)
            if p.w & c.w and not (p.w & c.C) : n = max(n, 6)
        elif c.kind in ('valu', 'ds', 'vmem'):
            if p.w & (c.r | c.w): n = max(n, 8)
            if c.kind == 'valu' and p.C & c.w: n = max(n, 3)
    elif p.kind == 'vmem':
        if p.wide and c.kind in ('valu', 'mfma', 'ds', 'vmem') and p.data & c.w: n = max(n, 2)
    elif p.kind == 'salu':
        if ('s', 'm0') in p.w and c.kind == 'vmem' and c.lds: n = max(n, 1)
    return n


class K:
    def __init__(s):
        s.items = []
        s.vm = []
        s.lg = []
        s.nlab = 0
        s.cap = None

    def __call__(s, *lines):
        for l in lines:
            for x in l.split('\n'):
                x = x.strip()
                if not x: continue
                if s.cap is not None: s.cap.append(x)
                else: s.items.append(Ins(x))

    def capture(s, fn):
        old = s.cap; s.cap = []
        fn()
        out = s.cap; s.cap = old
        return out

    def bg(s, main, back, lo=0.0, hi=1.0):
        n = len(main); i0 = int(n * lo); i1 = max(i0 + 1, int(n * hi))
        fill = {}
        groups = []
        pend = []
        for it in back:
            if isinstance(it, list): groups.append(pend + it); pend = []
            elif isinstance(it, str) or callable(it): pend.append(it)
            else: groups.append(pend + [it]); pend = []
        if pend:
            if groups: groups[-1] = groups[-1] + pend
            else: groups.append(pend)
        spread(fill, groups, i0, i1 - 1)
        s.weave(main, fill)

    def label(s, base):
        s.nlab += 1
        return f'L_{base}_{s.nlab}'

    def vmem(s, text, tag=None, cond=False):
        if s.cap is not None: s.cap.append(('vm', text, tag, cond)); return
        s(text); s.vm.append((tag, cond))

    def lds(s, text, tag=None):
        if s.cap is not None: s.cap.append(('lds', text, tag)); return
        s(text); s.lg.append(tag)

    def n_vm_after(s, tag):
        idx = max(i for i, (t, c) in enumerate(s.vm) if t == tag)
        return sum(1 for (t, c) in s.vm[idx + 1:] if not c)

    def n_lg_after(s, tag):
        idx = max(i for i, t in enumerate(s.lg) if t == tag)
        return len(s.lg) - idx - 1

    def wait(s, vm=None, lg=None):
        if s.cap is not None: s.cap.append(('wait', vm, lg)); return
        parts = []
        if vm is not None:
            n = 0 if vm == 0 else min(63, s.n_vm_after(vm))
            parts.append(f'vmcnt({n})')
        if lg is not None:
            n = 0 if lg == 0 else min(15, s.n_lg_after(lg))
            parts.append(f'lgkmcnt({n})')
        s('s_waitcnt ' + ' '.join(parts))

    def item(s, it):
        if isinstance(it, str): s(it)
        elif isinstance(it, list):
            for x in it: s.item(x)
        elif callable(it): it()
        elif it[0] == 'vm': s.vmem(it[1], it[2], it[3] if len(it) > 3 else False)
        elif it[0] == 'lds': s.lds(it[1], it[2])
        elif it[0] == 'wait': s.wait(it[1], it[2])
        else: raise ValueError(it)

    def weave(s, spine, fill):
        for x in fill.get(-1, []): s.item(x)
        for i, m in enumerate(spine):
            s.item(m)
            for x in fill.get(i, []): s.item(x)
        extra = [g for g in fill if g >= len(spine) and fill[g]]
        assert not extra, extra

    def text(s):
        out = []
        hist = []
        saved = {}
        labpos = {i.text[:-1]: n for n, i in enumerate(s.items) if i.kind == 'label' and i.text.endswith(':')}
        npad = 0

        def req_for(h, ins, dist0=0):
            req = 0; dist = dist0
            for p in reversed(h):
                n = need(p, ins) - dist
                if n > req: req = n
                dist += p.nops
                if dist >= 12: break
            return req
        hists = [hist]
        for n, ins in enumerate(s.items):
            if ins.kind == 'label':
                out.append(ins.text)
                name = ins.text[:-1]
                if name in saved: hists = hists + saved.pop(name)
                continue
            req = max([req_for(h, ins) for h in hists] + [0])
            if ins.op.startswith('s_cbranch') or ins.op == 's_branch':
                tgt = ins.text.split()[-1]
                if tgt in labpos and labpos[tgt] < n:
                    d = 1
                    for c in s.items[labpos[tgt] + 1: labpos[tgt] + 14]:
                        if c.kind == 'label': continue
                        for h in hists: req = max(req, req_for(h, c, d))
                        d += c.nops
            if req > 0:
                nop = Ins(f's_nop {req - 1}')
                for h in hists: h.append(nop)
                out.append('  ' + nop.text); npad += 1
            for h in hists:
                h.append(ins)
                if len(h) > 16: del h[0]
            out.append('  ' + ins.text)
            if ins.op.startswith('s_cbranch') or ins.op == 's_branch':
                tgt = ins.text.split()[-1]
                if tgt in labpos and labpos[tgt] > n:
                    saved.setdefault(tgt, []).extend([list(h) for h in hists])
                if ins.op == 's_branch': hists = []
            if ins.op == 's_endpgm': hists = []
            if len(hists) > 1:
                u = []
                for h in hists:
                    if not any([id(x) for x in h[-12:]] == [id(x) for x in g[-12:]] for g in u): u.append(h)
                hists = u
            if not hists: hists = [[]]
        s.npad = npad
        return '\n'.join(out) + '\n'


def spread(fill, items, g0, g1):
    n = len(items)
    if n == 0: return
    span = g1 - g0 + 1
    for i, it in enumerate(items):
        g = g0 + (i * span) // n
        fill.setdefault(g, [])
        if isinstance(it, list): fill[g].extend(it)
        else: fill[g].append(it)
```

```python
import sys, math
from emit import K, spread

NAME = "recurrent_scan__sliding_block_cached__mixer_s_mlp__prompt_kernel"

HPL = 33024
WS_H, WS_X1, WS_H2, WS_SP, WS_DUMP = 0, 0x400000, 0x800000, 0x1000000, 0x4000000
WS_STAMP = 0x8000000
SLOT = [65536, 98304, 131072]
SCR_R2 = 65536 + 3 * 8192 + 7 * 1024
KVPOS = [32768, 49152, 65536, 81920]
B4SLOT = [98304, 131072, 65536, 0, 32768]
sW, sTB, sG, sTH, sCH = 3, 4, 5, 6, 7
X, KC, VC, WQ, WO, W1, W2, W3, W4, OUT, DBG, WS = [8 + 4 * i for i in range(12)]
sT0, sT1, sT2, sT3 = 56, 57, 58, 59
sOFF = 60
sRING = 61
sKV = 62
sKVM = 63
sONE2, sLO, sHI = 64, 65, 66
sC = 68
sC2 = 70
sPASS = 72
sSPIN = 73
sHB = 74
sB0, sB1 = 94, 95
sJJ = 96
aDUMMY = 255
vL, vB, vB2 = 1, 2, 3
vT0, vT1 = 4, 12
vD = 20
vE = 24
vS = 28
vX, vY = 30, 31
vX1 = 32
vU = 40
vACC = 48
vQ = 64
vS_ = 128
vP = 160
vRAW = 192


def srd(r): return f"s[{r}:{r + 3}]"
def v(b, n=1): return f"v{b}" if n == 1 else f"v[{b}:{b + n - 1}]"
def a(b, n=1): return f"a{b}" if n == 1 else f"a[{b}:{b + n - 1}]"
def mfma(d, A, B, C): return f"v_mfma_f32_16x16x32_bf16 {d}, {A}, {B}, {C}"
def f2u(x):
    import struct
    return struct.unpack('<I', struct.pack('<f', x))[0]


class Gen(K):
    def __init__(s, amap=2, dumps=(), stamps=False, thr_log2=30, only=None, **opt):
        super().__init__()
        s.amap = amap; s.dumps = set(dumps); s.stamps = stamps; s.nstamp = 0; s.thr = thr_log2; s.only = only; s.opt = opt

    def stamp(s, name):
        if not s.stamps: return
        if s.only is None:
            if name[0] == '.': return
        elif name not in s.only: return
        i = s.nstamp; s.nstamp += 1
        assert i < 21
        s.stamp_names = getattr(s, 'stamp_names', []) + [name]
        tmp = vX1 if name in ('start', 'setup', 'x_landed', 'ln1') else 0
        s("s_memtime s[90:91]", "s_memrealtime s[92:93]", "s_waitcnt lgkmcnt(0)")
        s(f"v_mov_b32 v{tmp}, s90", f"v_accvgpr_write_b32 a{212 + 2 * i}, v{tmp}", f"v_mov_b32 v{tmp}, s92", f"v_accvgpr_write_b32 a{213 + 2 * i}, v{tmp}")

    def mk_srd(s, r, ptr, size, off=None):
        if off is None:
            s(f"s_mov_b32 s{r}, s{ptr}", f"s_mov_b32 s{r + 1}, s{ptr + 1}", f"s_mov_b32 s{r + 2}, {size}")
        else:
            s(f"s_add_u32 s{r}, s{ptr}, s{off}", f"s_addc_u32 s{r + 1}, s{ptr + 1}, 0", f"s_sub_u32 s{r + 2}, {size}, s{off}")
        s(f"s_mov_b32 s{r + 3}, 0x20000")

    def dump(s, name, regs, slot):
        if name not in s.dumps: return
        s("s_waitcnt vmcnt(0) lgkmcnt(0)", "s_nop 7", "s_nop 7")
        s(f"s_lshl_b32 s{sT0}, s{sTB}, 5", f"s_lshl_b32 s{sT1}, s{sG}, 2", f"s_add_u32 s{sT0}, s{sT0}, s{sT1}", f"s_add_u32 s{sT0}, s{sT0}, s{sW}")
        s(f"s_mul_i32 s{sT0}, s{sT0}, {len(regs) * 256}", f"s_add_u32 s{sT0}, s{sT0}, {WS_DUMP + slot * 0x1000000}")
        s(f"v_lshlrev_b32 v{vX}, 2, v{vL}")
        for i, r in enumerate(regs):
            if r[0] == 'a':
                s(f"v_accvgpr_read_b32 v{vY}, {r}"); r = f"v{vY}"
            s(f"buffer_store_dword {r}, v{vX}, {srd(WS)}, s{sT0} offen", f"s_add_u32 s{sT0}, s{sT0}, 256")
            s("s_waitcnt vmcnt(0)")

    def t256(s, dst, base_s=None, base_imm=0, kv=False):
        s(f"v_lshrrev_b32 v{vX}, 4, v{vL}", f"v_bfe_u32 v{vY}, v{vL}, 2, 2")
        s(f"v_and_b32 v{vU}, 1, v{vX}", f"v_lshl_add_u32 v{vU}, v{vU}, 2, v{vY}")
        if kv:
            s(f"v_lshrrev_b32 v{vX}, 1, v{vX}", f"v_lshlrev_b32 v{vX}, 12, v{vX}", f"v_lshl_add_u32 v{vU + 1}, v{vU}, 8, v{vX}")
        else:
            s(f"v_lshl_add_u32 v{vX}, v{vX}, 2, v{vY}", f"v_lshlrev_b32 v{vU + 1}, 8, v{vX}")
        s(f"v_and_b32 v{vY}, 3, v{vL}", f"v_lshl_add_u32 v{vU + 1}, v{vY}, 3, v{vU + 1}")
        if base_s is not None: s(f"v_add_u32 v{vU + 1}, s{base_s}, v{vU + 1}")
        if base_imm: s(f"v_add_u32 v{vU + 1}, {base_imm}, v{vU + 1}")
        for nt in range(8):
            s(f"v_xor_b32 v{vX}, {nt}, v{vU}", f"v_lshl_add_u32 v{dst + nt}, v{vX}, 5, v{vU + 1}")

    def t128(s, dst, nts, base_s=None, base_imm=0):
        s(f"v_lshrrev_b32 v{vX}, 4, v{vL}", f"v_bfe_u32 v{vY}, v{vL}, 2, 2")
        s(f"v_lshl_add_u32 v{vU + 1}, v{vX}, 2, v{vY}", f"v_lshlrev_b32 v{vU + 1}, 7, v{vU + 1}")
        s(f"v_and_b32 v{vX}, 1, v{vX}", f"v_lshrrev_b32 v{vY}, 1, v{vY}", f"v_lshl_add_u32 v{vU}, v{vX}, 1, v{vY}")
        s(f"v_and_b32 v{vY}, 3, v{vL}", f"v_lshl_add_u32 v{vU + 1}, v{vY}, 3, v{vU + 1}")
        if base_s is not None: s(f"v_add_u32 v{vU + 1}, s{base_s}, v{vU + 1}")
        if base_imm: s(f"v_add_u32 v{vU + 1}, {base_imm}, v{vU + 1}")
        if nts[0] == 's':
            s(f"s_lshl_b32 s{sT0}, s{nts[1]}, 1", f"v_xor_b32 v{vU}, s{sT0}, v{vU}")
            nts = [0, 1]
        for i, nt in enumerate(nts):
            s(f"v_xor_b32 v{vX}, {nt}, v{vU}", f"v_lshl_add_u32 v{dst + i}, v{vX}, 5, v{vU + 1}")

    def d256(s, dst, RS, natural):
        s(f"v_lshrrev_b32 v{vX}, 4, v{vL}")
        s(f"v_bfe_u32 v{vY}, v{vL}, 1, 3", f"v_xor_b32 v{vY}, v{vY}, v{vX}", f"v_lshlrev_b32 v{vY}, 5, v{vY}")
        s(f"v_and_b32 v{vU}, 1, v{vL}", f"v_lshl_add_u32 v{vY}, v{vU}, 4, v{vY}")
        s(f"s_mov_b32 s{sT0}, {RS}", f"v_mul_lo_u32 v{vX}, v{vX}, s{sT0}")
        for p in range(4):
            ro = (8 if natural else 4) * p * RS - 1024 * p
            if p & 1: s(f"v_xor_b32 v{vU}, 0x80, v{vY}", f"v_add_u32 v{vU}, v{vU}, v{vX}")
            else: s(f"v_add_u32 v{vU}, v{vY}, v{vX}")
            s(f"v_add_u32 v{dst + p}, {ro}, v{vU}")

    def d128(s, dst, RS, natural, oob_w3=False):
        s(f"v_lshrrev_b32 v{vX}, 3, v{vL}")
        if natural:
            s(f"v_lshrrev_b32 v{vY}, 2, v{vX}", f"v_and_b32 v{vX}, 3, v{vX}", f"v_lshl_add_u32 v{vX}, v{vY}, 3, v{vX}")
        s(f"s_mov_b32 s{sT0}, {RS}", f"v_mul_lo_u32 v{vX}, v{vX}, s{sT0}")
        s(f"v_bfe_u32 v{vY}, v{vL}, 1, 2", f"v_lshrrev_b32 v{vU}, 4, v{vL}", f"v_xor_b32 v{vY}, v{vY}, v{vU}")
        if oob_w3:
            s(f"s_cmp_eq_u32 s{sW}, 3", f"s_cselect_b32 s{sT0}, 0x20000000, 0", f"v_lshrrev_b32 v{vU}, 1, v{vY}",
              f"v_mul_lo_u32 v{vU}, v{vU}, s{sT0}", f"v_add_u32 v{vX}, v{vX}, v{vU}")
        s(f"v_lshl_add_u32 v{vX}, v{vY}, 5, v{vX}", f"v_and_b32 v{vU}, 1, v{vL}", f"v_lshl_add_u32 v{vX}, v{vU}, 4, v{vX}")
        for q in range(4):
            ro = ((16 * (q & 1) + 4 * (q >> 1)) if natural else 8 * q) * RS - 1024 * q
            s(f"v_add_u32 v{dst + q}, {ro}, v{vX}")

    def dma4(s, vo, S, soff, m0s, m0imm, tag, n=4, first=0):
        it = [f"s_add_u32 m0, s{m0s}, {m0imm}" if m0s is not None else f"s_mov_b32 m0, {m0imm}"]
        for p in range(first, n):
            it.append(('vm', f"buffer_load_dwordx4 v{vo + p}, {srd(S)}, s{soff} offen offset:{1024 * p} lds", tag))
        return it

    def pstep_dma(s, S, step_bytes, half_bytes, slot, tag):
        it = s.dma4(vD, S, sOFF, sRING, slot * 32768, tag)
        it.append(f"s_add_u32 s{sOFF}, s{sOFF}, {half_bytes}")
        it += s.dma4(vD, S, sOFF, sRING, slot * 32768 + 4096, tag)
        it.append(f"s_add_u32 s{sOFF}, s{sOFF}, {step_bytes - half_bytes}")
        return it

    def signal(s, field):
        L = s.label('sig')
        s(f"s_or_b32 s{sT0}, s{sW}, s{sPASS}" if field == 1 else f"s_mov_b32 s{sT0}, s{sW}", f"s_cmp_lg_u32 s{sT0}, 0", f"s_cbranch_scc1 {L}")
        s(f"s_lshl_b32 s{sT0}, s{sTB}, 3", f"v_mov_b32 v{vX}, s{sT0}", f"v_mov_b32 v{vY}, {1 << (8 * field)}")
        s("s_mov_b64 exec, 1")
        s.vmem(f"buffer_atomic_add v{vY}, v{vX}, {srd(DBG)}, 0 offen sc1", None, cond=True)
        s("s_mov_b64 exec, -1")
        s(f"{L}:")

    def poll_items(s, halo, tag):
        if halo:
            it = [f"v_min_u32 v{vU + 6}, 2, v{vL}", f"v_add_u32 v{vU + 6}, s{sTB}, v{vU + 6}", f"v_subrev_u32 v{vU + 6}, 1, v{vU + 6}",
                  f"v_max_i32 v{vU + 6}, 0, v{vU + 6}", f"v_min_i32 v{vU + 6}, 31, v{vU + 6}", f"v_lshlrev_b32 v{vU + 6}, 3, v{vU + 6}"]
        else:
            it = [f"s_lshl_b32 s{sT0}, s{sTB}, 3", f"v_mov_b32 v{vU + 6}, s{sT0}"]
        it.append(('vm', f"buffer_load_dword v{vU + 7}, v{vU + 6}, {srd(DBG)}, 0 offen sc1", tag))
        return it

    def poll_check(s, field, tag):
        Lok, Lsp = s.label('ok'), s.label('spin')
        s.wait(vm=tag)
        s(f"v_bfe_u32 v{vU + 7}, v{vU + 7}, {8 * field}, 8", f"v_cmp_gt_u32 vcc, 8, v{vU + 7}", f"s_cbranch_vccz {Lok}")
        s(f"s_mov_b32 s{sSPIN}, 0")
        s(f"{Lsp}:")
        s.vmem(f"buffer_load_dword v{vU + 7}, v{vU + 6}, {srd(DBG)}, 0 offen sc1", None, cond=True)
        s("s_waitcnt vmcnt(0)")
        s(f"s_add_u32 s{sSPIN}, s{sSPIN}, 1", f"s_cmp_gt_u32 s{sSPIN}, 0x40000", f"s_cbranch_scc1 {Lok}")
        s(f"v_bfe_u32 v{vU + 7}, v{vU + 7}, {8 * field}, 8", f"v_cmp_gt_u32 vcc, 8, v{vU + 7}", f"s_cbranch_vccnz {Lsp}")
        s(f"{Lok}:")

    def xsum(s, r, tmp, op="v_add_f32"):
        s(f"v_mov_b32 v{tmp}, v{r}", f"v_permlane32_swap_b32 v{r}, v{tmp}", f"{op} v{r}, v{r}, v{tmp}")
        s(f"v_mov_b32 v{tmp}, v{r}", f"v_permlane16_swap_b32 v{r}, v{tmp}", f"{op} v{r}, v{r}, v{tmp}")

    def qsum(s, r):
        s(f"v_add_f32_dpp v{r}, v{r}, v{r} quad_perm:[1,0,3,2] row_mask:0xf bank_mask:0xf")
        s(f"v_add_f32_dpp v{r}, v{r}, v{r} quad_perm:[2,3,0,1] row_mask:0xf bank_mask:0xf")

    def layernorm(s, first, wr_addr, tagf):
        red = (lambda r: s.qsum(r)) if first else (lambda r: s.xsum(r, vU + 5))
        for i in range(64):
            if i % 16 == 0: s.wait(vm=tagf(i // 16))
            c = "0" if i < 4 else f"v{vU + (i & 3)}"
            s(f"v_dot2_f32_bf16 v{vU + (i & 3)}, v{vRAW + i}, s{sONE2}, {c}")
        s(f"v_add_f32 v{vU}, v{vU}, v{vU + 1}", f"v_add_f32 v{vU + 2}, v{vU + 2}, v{vU + 3}", f"v_add_f32 v{vU}, v{vU}, v{vU + 2}")
        red(vU)
        s(f"v_mul_f32 v{vU + 4}, {f2u(-1.0 / 512)}, v{vU}")
        for i in range(64):
            s(f"v_dot2_f32_bf16 v{128 + 2 * i}, v{vRAW + i}, s{sLO}, v{vU + 4}", f"v_dot2_f32_bf16 v{129 + 2 * i}, v{vRAW + i}, s{sHI}, v{vU + 4}")
        for i in range(64):
            acc = v(vU + 2 * (i & 1), 2)
            c = f"0 op_sel_hi:[1,1,0]" if i < 2 else acc
            s(f"v_pk_fma_f32 {acc}, {v(128 + 2 * i, 2)}, {v(128 + 2 * i, 2)}, {c}")
        s(f"v_pk_add_f32 {v(vU, 2)}, {v(vU, 2)}, {v(vU + 2, 2)}", f"v_add_f32 v{vU}, v{vU}, v{vU + 1}")
        red(vU)
        s(f"v_mov_b32 v{vU + 1}, {f2u(1e-5)}", f"v_fmac_f32 v{vU + 1}, {f2u(1.0 / 512)}, v{vU}")
        s(f"v_rsq_f32 v{vU + 2}, v{vU + 1}")
        if first:
            s(f"v_mul_f32 v{vU}, {f2u(1.0 / 512)}, v{vU}", f"v_mul_f32 v{vU}, v{vU}, v{vU + 2}", f"v_mul_f32 v{vU}, v{vU}, v{vU + 2}",
              f"v_add_f32 v{vU}, {f2u(1e-5)}, v{vU}", f"v_rsq_f32 v{vU}, v{vU}")
            s(f"v_lshrrev_b32 v{vU + 1}, 2, v0", f"v_lshlrev_b32 v{vU + 1}, 2, v{vU + 1}", f"v_add_u32 v{vU + 1}, {SCR_R2}, v{vU + 1}")
            s.lds(f"ds_write_b32 v{vU + 1}, v{vU}", 'r2w')
        for m in range(16):
            for j in range(4):
                t = 128 + 8 * m + 2 * j
                s(f"v_pk_mul_f32 {v(t, 2)}, {v(t, 2)}, {v(vU + 2, 2)} op_sel_hi:[1,0]")
            for j in range(4):
                t = 128 + 8 * m + 2 * j
                s(f"v_cvt_pk_bf16_f32 v{128 + 4 * m + j}, v{t}, v{t + 1}")
            s.lds(f"ds_write_b128 v{wr_addr}, {v(128 + 4 * m, 4)} offset:{m * 1024}", 'lnw')

    def gelu_pairs(s, regs, tmp):
        n = len(regs)
        T = [tmp + 2 + 2 * i for i in range(4)]
        for b in range(0, n, 4):
            grp = regs[b:b + 4]
            for r, t in zip(grp, T): s(f"v_pk_mul_f32 {v(t, 2)}, {v(r, 2)}, {v(r, 2)}")
            for r, t in zip(grp, T): s(f"v_pk_fma_f32 {v(t, 2)}, {v(t, 2)}, s[{sC2}:{sC2 + 1}], {v(tmp, 2)}")
            for r, t in zip(grp, T): s(f"v_pk_mul_f32 {v(t, 2)}, {v(t, 2)}, {v(r, 2)}")
            for r, t in zip(grp, T): s(f"v_exp_f32 v{t}, v{t}", f"v_exp_f32 v{t + 1}, v{t + 1}")
            for r, t in zip(grp, T): s(f"v_pk_add_f32 {v(t, 2)}, {v(t, 2)}, 1.0 op_sel_hi:[1,0]")
            for r, t in zip(grp, T): s(f"v_rcp_f32 v{t}, v{t}", f"v_rcp_f32 v{t + 1}, v{t + 1}")
            for r, t in zip(grp, T): s(f"v_pk_mul_f32 {v(r, 2)}, {v(t, 2)}, {v(r, 2)}")

    def gelu_consts(s, tmp):
        kk = 2 * 0.7978845608028654 * 1.4426950408889634
        s(f"s_mov_b32 s{sC2}, {f2u(-kk * 0.044715)}", f"s_mov_b32 s{sC2 + 1}, {f2u(-kk * 0.044715)}")
        s(f"v_mov_b32 v{tmp}, {f2u(-kk)}", f"v_mov_b32 v{tmp + 1}, {f2u(-kk)}")

    def stype_reads(s, m, tagp):
        buf = 16 * (m & 3)
        it = []
        for i in range(2):
            it.append(('lds', f"ds_read_b128 {a(buf + 8 + 4 * i, 4)}, v{vB2} offset:{(16 * i + m) * 1024}", (tagp, m)))
            for jh in range(2):
                it.append(('lds', f"ds_read_b64_tr_b16 {a(buf + 4 * i + 2 * jh, 2)}, v{vS + i} offset:{m * 4096 + jh * 2048}", (tagp, m)))
        return it

    def stype_resident(s, tagp, pre_done=3, extra=None):
        spine = []; fill = {}
        for m in range(16):
            buf = 16 * (m & 3)
            for n in range(2):
                for t in range(2):
                    d = v(vACC + 8 * n + 4 * t, 4)
                    spine.append(mfma(d, a(buf + 4 * n, 4), a(buf + 8 + 4 * t, 4), "0" if m == 0 else d))
            fill.setdefault(4 * m - 1, []).append(('wait', None, (tagp, m)))
            if m + pre_done < 16:
                spread(fill, s.stype_reads(m + pre_done, tagp), 4 * m, 4 * m + 2)
        if extra:
            for g, its in extra.items(): fill.setdefault(g, []).extend(its)
        s.weave(spine, fill)

    def p_reads_A(s, st, slot, tagp):
        buf = 32 * (st & 1)
        base = vT1 if slot == 2 else vT0
        off = 32768 if slot == 1 else 0
        it = []
        for nt in range(8):
            for jh in range(2):
                it.append(('lds', f"ds_read_b64_tr_b16 {a(buf + 4 * nt + 2 * jh, 2)}, v{base + nt} offset:{off + jh * 4096}", (tagp, st, 'a' if nt < 4 else 'b')))
        return it

    def p_reads_B(s, st, tagp):
        buf = 64 + 16 * (st & 1)
        return [('lds', f"ds_read_b128 {a(buf + 4 * tt, 4)}, v{vB} offset:{(16 * tt + st) * 1024}", (tagp, st, 'a')) for tt in range(4)]

    def ptype(s, tagp, S, step_bytes, half_bytes, extra):
        for st in range(16):
            ab = 32 * (st & 1); bb = 64 + 16 * (st & 1)
            spine = []
            for nt in range(8):
                for tt in range(4):
                    d = v(128 + 16 * nt + 4 * tt, 4)
                    spine.append(mfma(d, a(ab + 4 * nt, 4), a(bb + 4 * tt, 4), "0" if st == 0 else d))
            ex = extra(st)
            fill = {-1: [('wait', None, (tagp, st, 'a'))], 1: [('wait', None, 0)]}
            for g, its in ex.get('early', {}).items(): fill.setdefault(g, []).extend(its)
            if st + 3 < 16: dm = s.pstep_dma(S, step_bytes, half_bytes, st % 3, (tagp, 'd', st + 3))
            else: dm = ex.get('dma', [])
            if st + 1 < 16:
                spread(fill, dm, 2, 9)
                fill.setdefault(9, []).append(('wait', (tagp, 'd', st + 1), None))
                A = s.p_reads_A(st + 1, (st + 1) % 3, tagp); B = s.p_reads_B(st + 1, tagp)
                rd = [B[0]] + A[0:2] + B[1:4] + A[2:]
                spread(fill, rd, 10, 25)
            else:
                spread(fill, dm, 2, 31)
            for g, its in ex.get('at', {}).items(): fill.setdefault(g, []).extend(its)
            s.weave(spine, fill)
            s.stamp(f'.{tagp}{st}')

    def kv_dma(s, t):
        pos = KVPOS[(t + 2) & 3]
        return [f"s_add_u32 m0, s{sKVM}, {pos}",
                ('vm', f"buffer_load_dwordx4 v{vE}, {srd(KC)}, s{sKV} offen lds", ('kv', t)),
                ('vm', f"buffer_load_dwordx4 v{vE + 1}, {srd(KC)}, s{sKV} offen offset:1024 lds", ('kv', t)),
                ('vm', f"buffer_load_dwordx4 v{vE + 2}, {srd(VC)}, s{sKV} offen offset:2048 lds", ('kv', t)),
                ('vm', f"buffer_load_dwordx4 v{vE + 3}, {srd(VC)}, s{sKV} offen offset:3072 lds", ('kv', t)),
                f"s_add_u32 s{sKV}, s{sKV}, 8192"]

    def k_reads(s, t):
        off = KVPOS[(t + 2) & 3] - KVPOS[0]
        return [('lds', f"ds_read_b128 {a(144 + 16 * u + 4 * ds, 4)}, v{vT1 + ds} offset:{off + u * 8192}", ('K', t))
                for u in range(2) for ds in range(4)]

    def v_reads(s, t):
        off = KVPOS[(t + 2) & 3] - KVPOS[0]
        return [('lds', f"ds_read_b64_tr_b16 {a(176 + 4 * dt + 2 * jh, 2)}, v{vT0 + dt} offset:{off + jh * 8192}", ('V', t))
                for dt in range(8) for jh in range(2)]

    def qk_spine(s, cinit):
        sp = []
        for qt in range(4):
            for u in range(2):
                d = v(vS_ + 8 * qt + 4 * u, 4)
                for ds in range(4):
                    sp.append(mfma(d, a(144 + 16 * u + 4 * ds, 4), v(vQ + 16 * ds + 4 * qt, 4), d if ds else cinit(qt)))
        return sp

    def pv_spine(s, t):
        sp = []
        for qt in range(4):
            p = v(vP + 16 * (t & 1) + 4 * qt, 4)
            for dt in range(8):
                d = a(16 * dt + 4 * qt, 4)
                sp.append(mfma(d, a(176 + 4 * dt, 4), p, "0" if t == 0 else d))
            d = a(128 + 4 * qt, 4)
            sp.append(mfma(d, a(208, 4), p, "0" if t == 0 else d))
        return sp

    def job(s, t, qt):
        b = vS_ + 8 * qt
        E = [f"v_exp_f32 v{b + i}, v{b + i}" for i in range(8)]
        C = [f"v_cvt_pk_bf16_f32 v{vP + 16 * (t & 1) + 4 * qt + i}, v{b + 2 * i}, v{b + 2 * i + 1}" for i in range(4)]
        return E, C

    def place_job(s, fill, t, qt, g0, n):
        E, C = s.job(t, qt)
        step = n // 8
        for i, e in enumerate(E): fill.setdefault(g0 + i * step, []).append(e)
        for i, c in enumerate(C): fill.setdefault(min(g0 + n - 1, g0 + (2 * i + 1) * step + 1), []).append(c)

    def build(s):
        s("s_cmp_ge_u32 s2, 256", "s_cbranch_scc1 L_end")
        s.stamp('start')
        s("s_load_dwordx16 s[64:79], s[0:1], 0", "s_load_dwordx8 s[80:87], s[0:1], 64", "s_load_dwordx2 s[88:89], s[0:1], 96")
        s(f"v_and_b32 v{vL}, 63, v0", f"v_lshrrev_b32 v{vX}, 6, v0", f"v_readfirstlane_b32 s{sW}, v{vX}")
        s(f"s_and_b32 s{sT0}, s2, 7", f"s_lshr_b32 s{sT1}, s2, 3")
        if s.amap == 1:
            s(f"s_mov_b32 s{sG}, s{sT0}", f"s_mov_b32 s{sTB}, s{sT1}")
        elif s.amap == 2:
            s(f"s_and_b32 s{sG}, s{sT0}, 3", f"s_lshl_b32 s{sG}, s{sG}, 1", f"s_and_b32 s{sT2}, s{sT1}, 1", f"s_add_u32 s{sG}, s{sG}, s{sT2}")
            s(f"s_lshr_b32 s{sTB}, s{sT1}, 1", f"s_lshl_b32 s{sTB}, s{sTB}, 1", f"s_lshr_b32 s{sT2}, s{sT0}, 2", f"s_add_u32 s{sTB}, s{sTB}, s{sT2}")
        elif s.amap == 4:
            s(f"s_and_b32 s{sG}, s{sT0}, 1", f"s_lshl_b32 s{sG}, s{sG}, 2", f"s_and_b32 s{sT2}, s{sT1}, 3", f"s_add_u32 s{sG}, s{sG}, s{sT2}")
            s(f"s_lshr_b32 s{sTB}, s{sT1}, 2", f"s_lshl_b32 s{sTB}, s{sTB}, 2", f"s_lshr_b32 s{sT2}, s{sT0}, 1", f"s_add_u32 s{sTB}, s{sTB}, s{sT2}")
        else:
            s(f"s_and_b32 s{sG}, s{sT1}, 7", f"s_lshr_b32 s{sTB}, s{sT1}, 3", f"s_lshl_b32 s{sTB}, s{sTB}, 3", f"s_add_u32 s{sTB}, s{sTB}, s{sT0}")
        s(f"s_and_b32 s{sTH}, s{sW}, 1", f"s_lshr_b32 s{sCH}, s{sW}, 1")
        s(f"v_lshrrev_b32 v{vX}, 2, v0", f"v_lshlrev_b32 v{vX}, 10, v{vX}", f"v_and_b32 v{vY}, 3, v0", f"v_lshl_add_u32 v{vU + 4}, v{vY}, 4, v{vX}")
        s(f"s_lshl_b32 s{sOFF}, s{sTB}, 16")
        s(f"s_lshr_b32 s{sJJ}, s2, {3 + int(math.log2(s.amap))}")
        s(f"s_lshl_b32 s{sT0}, s{sG}, 10", f"s_lshl_b32 s{sT1}, s{sW}, 8", f"s_add_u32 s{sT3}, s{sT0}, s{sT1}")
        s(f"v_lshrrev_b32 v{vX}, 1, v{vL}", f"v_lshlrev_b32 v{vX}, 13, v{vX}", f"v_and_b32 v{vY}, 1, v{vL}", f"v_lshl_add_u32 v{vX1 + 1}, v{vY}, 7, v{vX}")
        s("s_waitcnt lgkmcnt(0)")
        s.mk_srd(X, 64, 0x200000)
        for m in range(16):
            s.vmem(f"buffer_load_dwordx4 {v(vRAW + 4 * m, 4)}, v{vU + 4}, {srd(X)}, s{sOFF} offen offset:{m * 64}", ('x', m // 4))
        s.mk_srd(WQ, 70, 0x400000, sT3)
        pf = s.opt.get('pf', 1)
        pff = s.opt.get('pff', '')
        if s.opt.get('cpf', 1):
            L = s.label('cpf')
            s(f"s_cmp_lg_u32 s{sW}, 3", f"s_cbranch_scc1 {L}")
            s(f"s_getpc_b64 s[{sT2}:{sT3}]")
            s("L_pcbase:")
            s(f"s_lshr_b32 s{sT0}, s2, 3", f"s_mul_i32 s{sT0}, s{sT0}, CPF_N", f"v_add_u32 v{vX}, s{sT0}, v{vL}", f"v_lshlrev_b32 v{vX}, 7, v{vX}",
              f"v_min_u32 v{vX}, L_end-L_pcbase, v{vX}", f"v_mov_b32 v{vY}, s{sT3}", f"v_add_co_u32 v{vX}, vcc, s{sT2}, v{vX}", f"v_addc_co_u32 v{vY}, vcc, 0, v{vY}, vcc")
            s(f"v_cmp_gt_u32 vcc, CPF_N, v{vL}", f"s_and_b64 exec, exec, vcc")
            s.vmem(f"global_load_dword a{aDUMMY}, v[{vX}:{vY}], off", None, cond=True)
            s("s_mov_b64 exec, -1")
            s(f"{L}:")

        def touch_wq():
            if not pf: return []
            rows = 16 * s.amap
            g = [f"s_mul_i32 s{sB1}, s{sJJ}, {rows * 8192}"]
            if rows < 32: g += [f"v_cmp_gt_u32 vcc, {2 * rows}, v{vL}", f"v_cndmask_b32 v{vX1 + 1}, -1, v{vX1 + 1}, vcc"]
            for k in range(max(1, rows // 32)):
                g += [('vm', f"buffer_load_dword a{aDUMMY}, v{vX1 + 1}, {srd(WQ)}, s{sB1} offen {pff}", None), f"s_add_u32 s{sB1}, s{sB1}, {32 * 8192}"]
            return [g]
        s(f"s_lshl_b32 s{sT1}, s{sG}, 7")
        s.mk_srd(W1, 76, 0x80000, sT1)
        s.mk_srd(W2, 78, 0x80000, sT1)
        s.mk_srd(W4, 82, 0x1c0000, sT1)
        s(f"s_lshl_b32 s{sRING}, s{sW}, 13", f"s_add_u32 s{sRING}, s{sRING}, {SLOT[0]}")
        s.d128(vE, 1024, True)
        s.d256(vD, 8192, True)
        s(f"s_lshl_b32 s{sT0}, s{sG}, 19", f"s_add_u32 s{sT3}, s{sT0}, {1536 * 256}")
        s.mk_srd(KC, 66, 0x400000, sT3)
        s(f"s_sub_u32 s{sT3}, s{sT3}, 2048")
        s.mk_srd(VC, 68, 0x400000, sT3)
        s(f"s_lshl_b32 s{sT1}, s{sW}, 8", f"s_add_u32 s{sT3}, s{sT0}, s{sT1}")
        s.mk_srd(WO, 72, 0x400000, sT3)
        s(f"s_mul_i32 s{sT0}, s{sG}, 448", f"s_lshl_b32 s{sT1}, s{sW}, 7", f"s_add_u32 s{sT3}, s{sT0}, s{sT1}")
        s.mk_srd(W3, 80, 0x1c0000, sT3)
        s.mk_srd(OUT, 84, 0x200000)
        s.mk_srd(DBG, 86, 256)
        s.mk_srd(WS, 88, 0x10000000)
        s(f"s_mov_b32 s{sONE2}, 0x3f803f80", f"s_mov_b32 s{sLO}, 0x00003f80", f"s_mov_b32 s{sHI}, 0x3f800000")
        s(f"s_lshl_b32 s{sKVM}, s{sW}, 12", f"s_mov_b32 s{sKV}, 0", f"s_mov_b32 s{sPASS}, 0")
        s(f"v_lshrrev_b32 v{vX}, 4, v{vL}", f"v_lshlrev_b32 v{vY}, 1, v{vX}", f"v_and_b32 v{vB}, 15, v{vL}", f"v_xor_b32 v{vB}, v{vB}, v{vY}",
          f"v_lshl_add_u32 v{vB}, v{vX}, 4, v{vB}", f"v_lshlrev_b32 v{vB}, 4, v{vB}")
        s(f"s_lshl_b32 s{sT0}, s{sTH}, 15", f"v_add_u32 v{vB2}, s{sT0}, v{vB}")
        s.t256(vT0, base_s=sRING)
        for nt in range(8): s(f"v_add_u32 v{vT1 + nt}, 0x10000, v{vT0 + nt}")
        s.t128(vS, ('s', sCH), base_imm=SLOT[1])
        vLW = vX1 + 7
        s(f"v_and_b32 v{vX}, 3, v{vL}", f"v_lshrrev_b32 v{vY}, 2, v{vL}", f"v_lshlrev_b32 v{vU}, 1, v{vX}", f"v_xor_b32 v{vY}, v{vY}, v{vU}",
          f"v_lshl_add_u32 v{vY}, v{vX}, 4, v{vY}", f"v_lshlrev_b32 v{vY}, 4, v{vY}", f"s_lshl_b32 s{sT0}, s{sW}, 14", f"v_add_u32 v{vLW}, s{sT0}, v{vY}")

        def w12_dma(S, half, tag):
            it = []
            for k in range(2):
                it += [f"s_lshl_b32 s{sB0}, s{sW}, 16", f"s_add_u32 s{sB0}, s{sB0}, {(half * 8 + k) * 32768}"]
                it += s.dma4(vE, S, sB0, sRING, 32768 * (1 + half) + 4096 * k, tag)
            return it

        def touch_kvw2():
            if not pf: return []
            it = []
            nk = 32 * s.amap
            nw = 16 * s.amap
            L = s.label('tk')
            g = [f"v_lshlrev_b32 v{vX1}, 7, v{vL}", f"s_mul_i32 s{sB1}, s{sJJ}, {nk * 128}"]
            if nk < 64: g += [f"v_cmp_gt_u32 vcc, {nk}, v{vL}", f"v_cndmask_b32 v{vX1}, -1, v{vX1}, vcc"]
            g += [f"s_cmp_lg_u32 s{sW}, 0", f"s_cbranch_scc1 {L}a"]
            for k in range(max(1, nk // 64)): g.append(('vm', f"buffer_load_dword a{aDUMMY}, v{vX1}, {srd(KC)}, s{sB1} offen offset:0 {pff}", None, True)); g.append(f"s_add_u32 s{sB1}, s{sB1}, 8192")
            g += [f"{L}a:", f"s_cmp_lg_u32 s{sW}, 1", f"s_cbranch_scc1 {L}b", f"s_add_u32 s{sB1}, s{sB1}, 2048"]
            for k in range(max(1, nk // 64)): g.append(('vm', f"buffer_load_dword a{aDUMMY}, v{vX1}, {srd(VC)}, s{sB1} offen {pff}", None, True)); g.append(f"s_add_u32 s{sB1}, s{sB1}, 8192")
            g += [f"{L}b:", f"s_cmp_lg_u32 s{sW}, 2", f"s_cbranch_scc1 {L}c", f"v_lshlrev_b32 v{vX1}, 10, v{vL}", f"s_mul_i32 s{sB1}, s{sJJ}, {nw * 1024}"]
            if nw < 64: g += [f"v_cmp_gt_u32 vcc, {nw}, v{vL}", f"v_cndmask_b32 v{vX1}, -1, v{vX1}, vcc"]
            g.append(('vm', f"buffer_load_dword a{aDUMMY}, v{vX1}, {srd(W2)}, s{sB1} offen {pff}", None, True))
            g.append(f"{L}c:")
            return [g]
        s.stamp('setup')
        back = w12_dma(W1, 0, 'w1') + w12_dma(W1, 1, 'w1') + touch_wq() + [f"s_mov_b32 s{sOFF}, 0"] + s.dma4(vD, WQ, sOFF, sRING, 0, ('q', 'd', 0)) \
            + [f"s_mov_b32 s{sOFF}, {4 * 8192}"] + s.dma4(vD, WQ, sOFF, sRING, 4096, ('q', 'd', 0), n=3) + touch_kvw2()
        s.bg(s.capture(lambda: s.layernorm(True, vLW, lambda k: ('x', k))), back, 0.05, 0.95)
        s.stamp('ln1')
        s.wait(vm='w1', lg=0)
        s("s_barrier")
        s(f"v_and_b32 v{vX}, 15, v{vL}", f"s_lshl_b32 s{sT0}, s{sTH}, 7", f"s_add_u32 s{sT0}, s{sT0}, {SCR_R2}", f"v_lshl_add_u32 v{vX}, v{vX}, 2, s{sT0}")
        s.lds(f"ds_read_b32 v{vU + 2}, v{vX}", 'r2'); s.lds(f"ds_read_b32 v{vU + 3}, v{vX} offset:64", 'r2')
        s(f"v_lshrrev_b32 v{vX}, 5, v{vL}", f"v_and_b32 v{vY}, 15, v{vL}", f"v_bfe_u32 v{vU}, v{vL}, 4, 1")
        s(f"s_lshl_b32 s{sT0}, s{sG}, 1", f"s_add_u32 s{sT0}, s{sT0}, s{sCH}", f"s_lshl_b32 s{sT0}, s{sT0}, 10", f"s_lshl_b32 s{sT1}, s{sTH}, 15", f"s_add_u32 s{sT0}, s{sT0}, s{sT1}")
        for n in range(2):
            s(f"v_add_u32 v{vU + 1}, {2 * n}, v{vX}", f"v_lshlrev_b32 v{vU + 4}, 1, v{vU + 1}", f"v_xor_b32 v{vU + 4}, v{vU + 4}, v{vY}",
              f"v_lshl_add_u32 v{vU + 4}, v{vU + 1}, 4, v{vU + 4}", f"v_lshlrev_b32 v{vU + 4}, 4, v{vU + 4}", f"v_lshl_add_u32 v{vU + 4}, v{vU}, 3, v{vU + 4}",
              f"v_add_u32 v{vU + 4}, s{sT0}, v{vU + 4}")
            for t in range(2):
                s.lds(f"ds_read_b64 {v(vX1 + 4 * t + 2 * n, 2)}, v{vU + 4} offset:{t * 16384}", 'xs')
        for m in range(3):
            for it in s.stype_reads(m, 'b1'): s.item(it)
        s.wait(lg='r2')
        s("s_barrier")
        s(f"s_add_u32 m0, s{sRING}, 4096", f"s_nop 0")
        s.vmem(f"buffer_load_dwordx4 v{vD + 3}, {srd(WQ)}, s{sOFF} offen offset:3072 lds", ('q', 'd', 0))
        s(f"s_mov_b32 s{sOFF}, {32 * 8192}")
        s.stype_resident('b1')
        s.wait(lg=0)
        s("s_barrier")
        s.stamp('b1')
        s.wait(vm=('q', 'd', 0))
        A = s.p_reads_A(0, 0, 'q'); B = s.p_reads_B(0, 'q')
        for it in B + A: s.item(it)

        def b1_epi():
            s.gelu_consts(vQ)
            for n in range(2):
                for t in range(2):
                    for j in range(2):
                        r = vACC + 8 * n + 4 * t + 2 * j
                        sel = "op_sel_hi:[1,0]" if t == 0 else "op_sel:[0,1] op_sel_hi:[1,1]"
                        s(f"v_pk_mul_f32 {v(r, 2)}, {v(r, 2)}, {v(vU + 2, 2)} {sel}")
            s.gelu_pairs([vACC + 2 * i for i in range(8)], vQ)
            for t in range(2):
                for n in range(2):
                    for j in range(2):
                        r = vACC + 8 * n + 4 * t + 2 * j
                        s(f"v_cvt_pk_bf16_f32 v{vQ + 16 + 4 * t + 2 * n + j}, v{r}, v{r + 1}")
        s.bg(s.capture(b1_epi), s.pstep_dma(WQ, 32 * 8192, 4 * 8192, 1, ('q', 'd', 1)), 0.0, 0.9)
        s(f"v_lshrrev_b32 v{vX}, 4, v{vL}", f"s_mov_b32 s{sT0}, {HPL}", f"v_mul_lo_u32 v{vX}, v{vX}, s{sT0}", f"v_and_b32 v{vY}, 15, v{vL}",
          f"v_lshl_add_u32 v{vX}, v{vY}, 4, v{vX}")
        s(f"s_lshl_b32 s{sT0}, s{sG}, 1", f"s_add_u32 s{sT0}, s{sT0}, s{sCH}", f"s_mul_i32 s{sT0}, s{sT0}, {4 * HPL}", f"s_lshl_b32 s{sT1}, s{sTB}, 10",
          f"s_add_u32 s{sT0}, s{sT0}, s{sT1}", f"s_lshl_b32 s{sT1}, s{sTH}, 9", f"s_add_u32 s{sT0}, s{sT0}, s{sT1}", f"s_add_u32 s{sT0}, s{sT0}, {WS_H + 128}")
        for t in range(2):
            s.vmem(f"buffer_store_dwordx4 {v(vQ + 16 + 4 * t, 4)}, v{vX}, {srd(WS)}, s{sT0} offen offset:{t * 256} sc1", 'hst')
        Lp = s.label('pad')
        s(f"s_cmp_lg_u32 s{sW}, 0", f"s_cbranch_scc1 {Lp}")
        s(f"s_add_u32 s{sT1}, s{sTB}, 1", f"s_and_b32 s{sT1}, s{sT1}, 30", f"s_cmp_lg_u32 s{sT1}, 0", f"s_cbranch_scc1 {Lp}")
        s(f"s_cmp_eq_u32 s{sTB}, 0", f"s_cselect_b32 s{sT1}, 0, {(8 + 2048) * 16}", f"s_mul_i32 s{sT0}, s{sG}, {8 * HPL}", f"s_add_u32 s{sT0}, s{sT0}, s{sT1}",
          f"s_add_u32 s{sT0}, s{sT0}, {WS_H}")
        s(f"v_lshrrev_b32 v{vX}, 3, v{vL}", f"s_mov_b32 s{sT1}, {HPL}", f"v_mul_lo_u32 v{vX}, v{vX}, s{sT1}", f"v_and_b32 v{vY}, 7, v{vL}",
          f"v_lshl_add_u32 v{vX}, v{vY}, 4, v{vX}")
        for i in range(4): s(f"v_mov_b32 v{vQ + 24 + i}, 0")
        s.vmem(f"buffer_store_dwordx4 {v(vQ + 24, 4)}, v{vX}, {srd(WS)}, s{sT0} offen sc1", None, cond=True)
        s(f"{Lp}:")
        s.bg(s.capture(lambda: s.d128(vE, 1024, False)), s.pstep_dma(WQ, 32 * 8192, 4 * 8192, 2, ('q', 'd', 2)))
        s.stamp('b1epi')

        def h_setup():
            return ["s_barrier",
                    f"v_lshrrev_b32 v{vX}, 4, v{vL}", f"v_lshlrev_b32 v{vY}, 1, v{vX}", f"v_and_b32 v{vU}, 15, v{vL}", f"v_xor_b32 v{vY}, v{vY}, v{vU}",
                    f"s_mov_b32 s{sT0}, {HPL}", f"v_mul_lo_u32 v{vX}, v{vX}, s{sT0}", f"v_lshl_add_u32 v{vU + 2}, v{vY}, 4, v{vX}",
                    f"s_lshl_b32 s{sHB}, s{sTB}, 10", f"s_lshl_b32 s{sT0}, s{sW}, 8", f"s_add_u32 s{sHB}, s{sHB}, s{sT0}", f"s_lshl_b32 s{sB1}, s{sW}, 14"]

        def h_dma(lo, hi):
            shift = [1, -1, 2, -2]
            return [[f"s_add_u32 m0, s{sB1}, {m * 1024}", f"s_add_u32 s{sB0}, s{sHB}, {WS_H + m * 4 * HPL + (8 - shift[m >> 2]) * 16}",
                     ('vm', f"buffer_load_dwordx4 v{vU + 2}, {srd(WS)}, s{sB0} offen sc1 lds", 'h')] for m in range(lo, hi)]

        def kv_offsets():
            it = [f"v_lshrrev_b32 v{vX}, 4, v{vL}", f"s_lshl_b32 s{sT0}, s{sW}, 3", f"v_add_u32 v{vX}, s{sT0}, v{vX}"]
            for p in range(2):
                it += [f"v_add_u32 v{vY}, {4 * p}, v{vX}", f"v_and_b32 v{vU}, 15, v{vY}", f"v_xor_b32 v{vU}, v{vU}, v{vL}", f"v_and_b32 v{vU}, 15, v{vU}",
                       f"v_lshlrev_b32 v{vU}, 4, v{vU}", f"v_lshl_add_u32 v{vE + p}, v{vX}, 8, v{vU}"]
                it += [f"v_and_b32 v{vU}, 7, v{vY}", f"v_lshlrev_b32 v{vU}, 1, v{vU}", f"v_xor_b32 v{vU}, v{vU}, v{vL}", f"v_and_b32 v{vU}, 15, v{vU}",
                       f"v_lshlrev_b32 v{vU}, 4, v{vU}", f"v_lshl_add_u32 v{vE + 2 + p}, v{vX}, 8, v{vU}"]
            return it

        def q_extra(st):
            ex = {}
            if st == 2: ex['at'] = {9: ["s_barrier", lambda: s.signal(0)]}
            if st == 11: ex['at'] = {12: s.poll_items(True, 'p1')}
            if st == 13: ex['dma'] = w12_dma(W2, 0, 'w2')
            if st == 14:
                ex['dma'] = w12_dma(W2, 1, 'w2')
                ex['at'] = {9: [lambda: s.poll_check(0, 'p1')]}
            if st == 15: ex['dma'] = h_setup() + h_dma(0, 7)
            return ex
        s.ptype('q', WQ, 32 * 8192, 4 * 8192, q_extra)
        s.stamp('qproj')
        def q_epi():
            for it in kv_offsets(): s.item(it)
            c = 1.4426950408889634 / math.sqrt(128)
            s(f"s_mov_b32 s{sC}, {f2u(c)}", f"s_mov_b32 s{sC + 1}, {f2u(c)}")
            for ds in range(4):
                for tt in range(4):
                    q = vQ + 16 * ds + 4 * tt
                    for u in range(2):
                        for j in range(2):
                            r = 128 + 16 * (2 * ds + u) + 4 * tt + 2 * j
                            s(f"v_pk_mul_f32 {v(r, 2)}, {v(r, 2)}, s[{sC}:{sC + 1}]")
                    for u in range(2):
                        for j in range(2):
                            r = 128 + 16 * (2 * ds + u) + 4 * tt + 2 * j
                            s(f"v_cvt_pk_bf16_f32 v{q + 2 * u + j}, v{r}, v{r + 1}")
                for tt in range(4):
                    q = vQ + 16 * ds + 4 * tt
                    for j in range(2): s(f"v_permlane32_swap_b32 v{q + j}, v{q + 2 + j}")
                for tt in range(4):
                    q = vQ + 16 * ds + 4 * tt
                    for j in range(2): s(f"v_permlane16_swap_b32 v{q + j}, v{q + 2 + j}")
        s.bg(s.capture(q_epi), h_dma(7, 16) + s.kv_dma(0), 0.0, 0.95)
        s.dump('q', [f"v{vQ + i}" for i in range(64)], 0)
        s.stamp('qepi')
        s.wait(vm='h')
        s("s_barrier")
        s.stamp('b2wait')
        for m in range(3):
            for it in s.stype_reads(m, 'b2'): s.item(it)
        s.t256(vT0, base_imm=KVPOS[0] + 2048, kv=True)
        s(f"v_and_b32 v{vX}, 15, v{vL}", f"v_lshrrev_b32 v{vY}, 3, v{vX}", f"v_lshlrev_b32 v{vY}, 12, v{vY}", f"v_and_b32 v{vU}, 7, v{vX}",
          f"v_lshl_add_u32 v{vY}, v{vU}, 8, v{vY}", f"v_add_u32 v{vY}, {KVPOS[0]}, v{vY}", f"v_lshrrev_b32 v{vU}, 4, v{vL}")
        for ds in range(4):
            s(f"v_add_u32 v{vU + 1}, {4 * ds}, v{vU}", f"v_xor_b32 v{vU + 1}, v{vU + 1}, v{vX}", f"v_lshl_add_u32 v{vT1 + ds}, v{vU + 1}, 4, v{vY}")
        fx = {}
        spread(fx, s.kv_dma(1), 1, 20)
        s.stype_resident('b2', extra=fx)
        s.wait(vm=('kv', 1), lg=0)
        s("s_barrier")
        s.stamp('b2')
        for it in s.k_reads(0): s.item(it)
        for t in range(2):
            for n in range(2):
                for j in range(2):
                    xr = vX1 + 4 * t + 2 * n + j; r = vACC + 8 * n + 4 * t + 2 * j
                    s(f"v_dot2_f32_bf16 v{r}, v{xr}, s{sLO}, v{r}", f"v_dot2_f32_bf16 v{r + 1}, v{xr}, s{sHI}, v{r + 1}")
        for t in range(2):
            for n in range(2):
                for j in range(2):
                    xr = vX1 + 4 * t + 2 * n + j; r = vACC + 8 * n + 4 * t + 2 * j
                    s(f"v_cvt_pk_bf16_f32 v{xr}, v{r}, v{r + 1}")
        s(f"v_lshlrev_b32 v{vX}, 4, v{vL}")
        s(f"s_lshl_b32 s{sT0}, s{sTB}, 16", f"s_lshl_b32 s{sT1}, s{sTH}, 15", f"s_add_u32 s{sT0}, s{sT0}, s{sT1}", f"s_lshl_b32 s{sT1}, s{sG}, 11",
          f"s_add_u32 s{sT0}, s{sT0}, s{sT1}", f"s_lshl_b32 s{sT1}, s{sCH}, 10", f"s_add_u32 s{sT0}, s{sT0}, s{sT1}", f"s_add_u32 s{sT0}, s{sT0}, {WS_X1}")
        s.vmem(f"buffer_store_dwordx4 {v(vX1, 4)}, v{vX}, {srd(WS)}, s{sT0} offen sc1", 'x1st')
        s(f"s_add_u32 s{sT0}, s{sT0}, 16384")
        s.vmem(f"buffer_store_dwordx4 {v(vX1 + 4, 4)}, v{vX}, {srd(WS)}, s{sT0} offen sc1", 'x1st')
        def misc():
            for i in range(4): s(f"v_mov_b32 v{vX}, s{sONE2}", f"v_accvgpr_write_b32 a{208 + i}, v{vX}")
            s.d128(vD, 3584, False, oob_w3=True)
        s.bg(s.capture(misc), s.kv_dma(2))
        s(f"s_mov_b32 s{sOFF}, 0")

        s("L_attn:")
        s.wait(lg=0)
        Lsk, Lj = s.label('nomax'), s.label('join')
        s(f"s_cmp_lg_u32 s{sPASS}, 0", f"s_cbranch_scc1 {Lsk}")
        for m_ in s.qk_spine(lambda qt: "0"): s(m_)
        for it in s.k_reads(1): s.item(it)
        for qt in range(4):
            b = vS_ + 8 * qt; r = vACC + 4 * qt
            s(f"v_max3_f32 v{r}, v{b}, v{b + 1}, v{b + 2}", f"v_max3_f32 v{r + 1}, v{b + 3}, v{b + 4}, v{b + 5}", f"v_max3_f32 v{r}, v{r}, v{b + 6}, v{b + 7}",
              f"v_max_f32 v{r}, v{r}, v{r + 1}")
        for qt in range(4): s(f"v_mov_b32 v{vACC + 4 * qt + 1}, v{vACC + 4 * qt}")
        for qt in range(4): s(f"v_permlane32_swap_b32 v{vACC + 4 * qt}, v{vACC + 4 * qt + 1}")
        for qt in range(4): s(f"v_max_f32 v{vACC + 4 * qt}, v{vACC + 4 * qt}, v{vACC + 4 * qt + 1}")
        for qt in range(4): s(f"v_mov_b32 v{vACC + 4 * qt + 1}, v{vACC + 4 * qt}")
        for qt in range(4): s(f"v_permlane16_swap_b32 v{vACC + 4 * qt}, v{vACC + 4 * qt + 1}")
        for qt in range(4): s(f"v_max_f32 v{vACC + 4 * qt}, v{vACC + 4 * qt}, v{vACC + 4 * qt + 1}")
        for qt in range(4):
            r = vACC + 4 * qt
            s(f"v_sub_f32 v{r}, 0, v{r}")
            for i in range(1, 4): s(f"v_mov_b32 v{r + i}, v{r}")
        for qt in range(4):
            for i in range(8): s(f"v_add_f32 v{vS_ + 8 * qt + i}, v{vS_ + 8 * qt + i}, v{vACC + 4 * qt}")
        s(f"s_branch {Lj}")
        s(f"{Lsk}:")
        for m_ in s.qk_spine(lambda qt: v(vACC + 4 * qt, 4)): s(m_)
        for it in s.k_reads(1): s.item(it)
        s("s_nop 7")
        s(f"{Lj}:")
        pro = []
        for qt in range(3):
            E, C = s.job(0, qt)
            pro += E + C
        s.bg(pro, s.kv_dma(3))
        s.wait(lg=0)
        s.stamp('attn_pro')

        def x1_loads(lo, hi):
            it = []
            for m in range(lo, hi):
                if m % 4 == 0: it.append(f"s_add_u32 s{sT0}, s{sHB}, {m * 1024}")
                it.append(('vm', f"buffer_load_dwordx4 {v(vRAW + 4 * m, 4)}, v{vY}, {srd(WS)}, s{sT0} offen offset:{(m & 3) * 1024} sc1", ('x1', m // 4)))
            return it

        def w3_dma(ms):
            it = s.dma4(vD, W3, sOFF, sRING, ((ms + 1) % 3) * 32768, ('c', 'd', ms))
            it.append(f"s_add_u32 s{sOFF}, s{sOFF}, {32 * 3584}")
            it += s.dma4(vD, W3, sOFF, sRING, ((ms + 1) % 3) * 32768 + 4096, ('c', 'd', ms))
            it.append(f"s_add_u32 s{sOFF}, s{sOFF}, {32 * 3584}")
            return it

        def touch2(t):
            rows = 16 * s.amap; fl = pff
            if t == 5:
                n = 14 * s.amap
                return [f"v_lshlrev_b32 v{vY}, 10, v{vL}", f"v_cmp_gt_u32 vcc, {n}, v{vL}", f"s_lshl_b32 s{sB1}, s{sJJ}, 2", f"s_add_u32 s{sB1}, s{sB1}, s{sW}",
                        f"v_cndmask_b32 v{vY}, -1, v{vY}, vcc", f"s_mul_i32 s{sB1}, s{sB1}, {n * 1024}",
                        ('vm', f"buffer_load_dword a{aDUMMY}, v{vY}, {srd(W4)}, s{sB1} offen {fl}", None)]
            RS, S, d = (3584, W3, 127) if t == 1 else (1024, WO, 128)
            it = [f"v_lshrrev_b32 v{vX}, 1, v{vL}", f"v_mul_u32_u24 v{vX}, {RS}, v{vX}", f"v_and_b32 v{vY}, 1, v{vL}", f"v_mul_u32_u24 v{vY}, {d}, v{vY}",
                  f"v_add_u32 v{vY}, v{vX}, v{vY}", f"v_and_b32 v{vY}, -4, v{vY}", f"s_mul_i32 s{sB1}, s{sJJ}, {rows * RS}"]
            if rows < 32: it += [f"v_cmp_gt_u32 vcc, {2 * rows}, v{vL}", "s_nop 1", f"v_cndmask_b32 v{vY}, -1, v{vY}, vcc"]
            for k in range(max(1, rows // 32)):
                it += [('vm', f"buffer_load_dword a{aDUMMY}, v{vY}, {srd(S)}, s{sB1} offen {fl}", None), f"s_add_u32 s{sB1}, s{sB1}, {32 * RS}"]
            return it

        for t in range(16):
            fill = {}
            if t < 15:
                spine = s.qk_spine(lambda qt: v(vACC + 4 * qt, 4))
                s.place_job(fill, t, 3, 0, 16)
                s.place_job(fill, t + 1, 0, 16, 16)
                V = s.v_reads(t)
                for i, it in enumerate(V):
                    g = [1, 3, 3, 5, 7, 7, 9, 11, 11, 13, 15, 17, 19, 21, 23, 25][i]
                    fill.setdefault(g, []).append(it)
                s.weave(spine, fill)
            else:
                V = s.v_reads(t)
                for it in V: s.item(it)
                E, C = s.job(t, 3)
                for e in E: s(e)
                for c_ in C: s(c_)
            if t + 2 < 16: s.wait(vm=('kv', t + 2), lg=0)
            else: s.wait(lg=0)
            if t < 14: s("s_barrier")
            if t == 0: s.signal(1)
            spine = s.pv_spine(t); fill = {}
            if t < 15:
                s.place_job(fill, t + 1, 1, 0, 16)
                s.place_job(fill, t + 1, 2, 18, 16)
            other = []
            if t + 2 < 16: other += s.k_reads(t + 2)
            for i, it in enumerate(other): fill.setdefault([1, 5, 9, 13, 16, 17, 21, 25][i], []).append(it)
            dm = []
            if t + 4 < 16: dm = s.kv_dma(t + 4)
            if pf and t in (1, 3, 5): dm += touch2(t)
            if t == 10: dm += s.poll_items(False, 'p2')
            if t == 12:
                fill.setdefault(-1, []).append(lambda: s.poll_check(1, 'p2'))
                dm = [f"v_lshlrev_b32 v{vY}, 4, v{vL}", f"s_lshl_b32 s{sHB}, s{sTB}, 16", f"s_lshl_b32 s{sT0}, s{sW}, 14", f"s_add_u32 s{sHB}, s{sHB}, s{sT0}",
                      f"s_add_u32 s{sHB}, s{sHB}, {WS_X1}"] + x1_loads(0, 8)
            if t == 13: dm = x1_loads(8, 16)
            if t == 14: dm = w3_dma(0)
            if t == 15: dm = w3_dma(1)
            spread(fill, dm, 3, 35)
            s.weave(spine, fill)
            s.wait(lg=0)
            s.stamp(f'.a{t}')
        s.stamp('attn')
        s("s_nop 7")
        for qt in range(4): s(f"v_accvgpr_read_b32 v{vS_ + qt}, a{128 + 4 * qt}")
        s(f"v_max3_f32 v{vX}, v{vS_}, v{vS_ + 1}, v{vS_ + 2}", f"v_max_f32 v{vX}, v{vX}, v{vS_ + 3}")
        s(f"s_mov_b32 s{sT0}, {f2u(2.0 ** s.thr)}")
        s(f"v_cmp_u_f32 s[{sT2}:{sT3}], v{vS_}, v{vS_ + 1}", f"v_cmp_u_f32 vcc, v{vS_ + 2}, v{vS_ + 3}", f"s_or_b64 s[{sT2}:{sT3}], s[{sT2}:{sT3}], vcc")
        s(f"v_cmp_lt_f32 vcc, s{sT0}, v{vX}", f"s_or_b64 vcc, vcc, s[{sT2}:{sT3}]", "s_cmp_lg_u64 vcc, 0", f"s_cselect_b32 s{sT0}, 1, 0")
        s(f"v_mov_b32 v{vX}, s{sT0}", f"s_lshl_b32 s{sT1}, s{sW}, 2", f"v_mov_b32 v{vU}, s{sT1}")
        s.lds(f"ds_write_b32 v{vU}, v{vX}", None)
        s.wait(lg=0)
        s("s_barrier")
        s(f"v_and_b32 v{vU}, 3, v{vL}", f"v_lshlrev_b32 v{vU}, 2, v{vU}")
        s.lds(f"ds_read_b32 v{vX}, v{vU}", None)
        s.wait(lg=0)
        s(f"v_cmp_ne_u32 vcc, 0, v{vX}", f"s_cmp_eq_u32 s{sPASS}, 0", "s_cselect_b64 s[58:59], -1, 0", "s_and_b64 vcc, vcc, s[58:59]", "s_cbranch_vccnz L_slow")
        def o_epi():
            for qt in range(4): s(f"v_rcp_f32 v{vS_ + 2 * qt + 8}, v{vS_ + qt}")
            for ds in range(4):
                for qt in range(4):
                    T = vP + 8 * (qt & 1)
                    for u in range(2):
                        for i in range(4): s(f"v_accvgpr_read_b32 v{T + 4 * u + i}, a{16 * (2 * ds + u) + 4 * qt + i}")
                    for i in range(4): s(f"v_pk_mul_f32 {v(T + 2 * i, 2)}, {v(T + 2 * i, 2)}, {v(vS_ + 2 * qt + 8, 2)} op_sel_hi:[1,0]")
                    for i in range(4): s(f"v_cvt_pk_bf16_f32 v{vQ + 16 * ds + 4 * qt + i}, v{T + 2 * i}, v{T + 2 * i + 1}")
        s.bg(s.capture(o_epi), w3_dma(2), 0.0, 0.8)
        s.dump('o', [f"v{vQ + i}" for i in range(64)], 1)
        s("s_barrier")
        s.stamp('oepi')
        s(f"s_lshl_b32 s{sT0}, s{sW}, 14", f"v_add_u32 v{vB2}, s{sT0}, v{vB}")
        s.t128(vT0, [0, 1, 2, 3], base_s=sRING)
        for i in range(4): s(f"v_add_u32 v{vT1 + i}, 0x10000, v{vT0 + i}")
        s.layernorm(False, vB2, lambda k: ('x1', k))
        s.wait(vm=('c', 'd', 0), lg=0)
        s("s_barrier")
        s.stamp('ln3')

        def c_reads(ms):
            ab = 32 * (ms & 1); bb = 64 + 32 * (ms & 1)
            slot = (ms + 1) % 3
            base = vT1 if slot == 2 else vT0; off = 32768 if slot == 1 else 0
            A, B = [], []
            for ks in range(2):
                tg = ('c', ms, 'a' if ks == 0 else 'b')
                b_ = [('lds', f"ds_read_b128 {a(bb + 16 * ks + 4 * tt, 4)}, v{vB} offset:{(16 * tt + 2 * ms + ks) * 1024}", tg) for tt in range(4)]
                a_ = [('lds', f"ds_read_b64_tr_b16 {a(ab + 16 * ks + 4 * nt + 2 * jh, 2)}, v{base + nt} offset:{off + ks * 4096 + jh * 2048}", tg)
                      for nt in range(4) for jh in range(2)]
                A += [b_[0]] + a_[0:2] + b_[1:] + a_[2:]
            return A
        for it in c_reads(0): s.item(it)
        s.d256(vE, 1024, False)
        for ms in range(8):
            ab = 32 * (ms & 1); bb = 64 + 32 * (ms & 1)
            spine = []
            for ks in range(2):
                for nt in range(4):
                    for tt in range(4):
                        d = v(128 + 16 * nt + 4 * tt, 4)
                        spine.append(mfma(d, a(ab + 16 * ks + 4 * nt, 4), a(bb + 16 * ks + 4 * tt, 4), "0" if (ms == 0 and ks == 0) else d))
            fill = {-1: [('wait', None, ('c', ms, 'a'))], 1: [('wait', None, 0)]}
            if ms + 3 < 8: dm = w3_dma(ms + 3)
            else:
                k = ms - 5
                dm = ([f"s_mov_b32 s{sOFF}, 0"] if k == 0 else [])
                dm += s.dma4(vE, WO, sOFF, sRING, k * 32768, ('o', 'd', k)) + [f"s_add_u32 s{sOFF}, s{sOFF}, {16 * 1024}"]
                dm += s.dma4(vE, WO, sOFF, sRING, k * 32768 + 4096, ('o', 'd', k)) + [f"s_add_u32 s{sOFF}, s{sOFF}, {16 * 1024}"]
            spread(fill, dm, 2, 8)
            if ms + 1 < 8:
                fill.setdefault(8, []).append(('wait', ('c', 'd', ms + 1), None))
                spread(fill, c_reads(ms + 1), 9, 26)
            s.weave(spine, fill)
        s("s_barrier")
        s.stamp('b3')
        s(f"s_lshl_b32 s{sT0}, s{sW}, 12", f"v_add_u32 v{vB2}, s{sT0}, v{vB}")
        ow = [('lds', f"ds_write_b128 v{vB2}, {v(vQ + 16 * ds + 4 * qt, 4)} offset:{qt * 16384 + ds * 1024}", 'ow') for ds in range(4) for qt in range(4)]
        for i in range(4): s(f"v_mov_b32 v{vD + i}, v{vE + i}")
        s.t256(vT0, base_s=sRING)
        for nt in range(8): s(f"v_add_u32 v{vT1 + nt}, 0x10000, v{vT0 + nt}")
        s.gelu_consts(192)
        s(f"v_lshlrev_b32 v{vX}, 4, v{vL}")
        s(f"s_mul_i32 s{sHB}, s{sTB}, 229376", f"s_mul_i32 s{sT0}, s{sG}, {7 * 4096}", f"s_add_u32 s{sHB}, s{sHB}, s{sT0}", f"s_lshl_b32 s{sT0}, s{sW}, 13",
          f"s_add_u32 s{sHB}, s{sHB}, s{sT0}", f"s_add_u32 s{sHB}, s{sHB}, {WS_H2}")
        Lw3 = s.label('w3skip')

        def c_epi(b):
            for tt in range(4):
                s.gelu_pairs([128 + 16 * (2 * b + n) + 4 * tt + 2 * j for n in range(2) for j in range(2)], 192)
                for n in range(2):
                    for j in range(2):
                        r = 128 + 16 * (2 * b + n) + 4 * tt + 2 * j
                        s(f"v_cvt_pk_bf16_f32 v{208 + 16 * b + 4 * tt + 2 * n + j}, v{r}, v{r + 1}")
                s.vmem(f"buffer_store_dwordx4 {v(208 + 16 * b + 4 * tt, 4)}, v{vX}, {srd(WS)}, s{sHB} offen offset:{tt * 1024} sc1", 'h2st', cond=(b == 1))
        s.bg(s.capture(lambda: c_epi(0)), ow + [('wait', ('o', 'd', 0), None)] + s.p_reads_A(0, 0, 'o'), 0.0, 0.98)
        s(f"s_cmp_eq_u32 s{sW}, 3", f"s_cbranch_scc1 {Lw3}", f"s_add_u32 s{sHB}, s{sHB}, 4096")
        c_epi(1)
        s(f"{Lw3}:")
        s.wait(lg=0)
        s("s_barrier")
        for it in s.p_reads_B(0, 'o'): s.item(it)
        s.d128(vE, 1024, False)
        s.stamp('b3epi')

        def b4_dma(c, with_h2=True, with_w4=True):
            slot = B4SLOT[c]if c < 5 else B4SLOT[c % 5]
            it = []
            if with_w4:
                it += [f"s_lshl_b32 s{sB0}, s{sW}, 15", f"s_add_u32 s{sB0}, s{sB0}, {c * 4 * 32768}", f"s_lshl_b32 s{sB1}, s{sW}, 13"]
                it += s.dma4(vE, W4, sB0, sB1, slot + 4096, ('y', c))
            if with_h2:
                it += [f"s_lshl_b32 s{sB1}, s{sW}, 13", f"s_add_u32 m0, s{sB1}, {slot}", f"s_add_u32 s{sB0}, s{sHB}, {c * 4 * 4096}"]
                for tt in range(4):
                    it.append(('vm', f"buffer_load_dwordx4 v{vB2}, {srd(WS)}, s{sB0} offen offset:{tt * 1024} sc1 lds", ('y', c)))
            return it

        def o_extra(st):
            ex = {}
            if st == 2: ex['at'] = {9: ["s_barrier", lambda: s.signal(2)]}
            if st == 11:
                ex['at'] = {12: s.poll_items(False, 'p3') + [f"v_lshlrev_b32 v{vB2}, 4, v{vL}", f"s_mul_i32 s{sHB}, s{sTB}, 229376", f"s_lshl_b32 s{sT0}, s{sW}, 12",
                                                             f"s_add_u32 s{sHB}, s{sHB}, s{sT0}", f"s_add_u32 s{sHB}, s{sHB}, {WS_H2}"]}
            if st == 13:
                ex['early'] = {1: [lambda: s.poll_check(2, 'p3')]}
                ex['dma'] = b4_dma(0)
            if st == 14: ex['dma'] = b4_dma(1)
            if st == 15: ex['dma'] = b4_dma(2) + ["s_barrier"]
            return ex
        s.ptype('o', WO, 32 * 1024, 16 * 1024, o_extra)
        s.stamp('oproj')
        def sp_cvt():
            s(f"v_lshlrev_b32 v{vD}, 4, v{vL}")
            s(f"s_lshl_b32 s{sOFF}, s{sTB}, 19", f"s_lshl_b32 s{sT0}, s{sW}, 17", f"s_add_u32 s{sOFF}, s{sOFF}, s{sT0}", f"s_lshl_b32 s{sT0}, s{sG}, 10",
              f"s_add_u32 s{sOFF}, s{sOFF}, s{sT0}", f"s_add_u32 s{sOFF}, s{sOFF}, {WS_SP}")
            for b in range(4):
                for tt in range(4):
                    for n in range(2):
                        for j in range(2):
                            r = 128 + 16 * (2 * b + n) + 4 * tt + 2 * j
                            s(f"v_cvt_pk_bf16_f32 v{vQ + 16 * b + 4 * tt + 2 * n + j}, v{r}, v{r + 1}")

        def sp_store(b, tt):
            return [f"s_add_u32 s{sB0}, s{sOFF}, {b * 32768 + tt * 8192}",
                    ('vm', f"buffer_store_dwordx4 {v(vQ + 16 * b + 4 * tt, 4)}, v{vD}, {srd(WS)}, s{sB0} offen sc1", 'spst')]
        nsp = s.opt.get('nsp', 4)
        s.bg(s.capture(sp_cvt), b4_dma(3), 0.1, 1.0)
        s.t128(vT0, ('s', sCH), base_imm=4096)
        s(f"s_lshl_b32 s{sT0}, s{sTH}, 11", f"v_add_u32 v{vT0 + 2}, s{sT0}, v{vB2}")
        for wdw in (1, 2):
            for i in range(3): s(f"v_add_u32 v{vT0 + 4 * wdw + i}, {0x10000 * wdw}, v{vT0 + i}")
        s.stamp('spst')

        def y_reads(c, j):
            slot = B4SLOT[c % 5]
            base = vT0 + 4 * (slot >> 16); off = (slot & 0xffff) + j * 8192
            buf = 16 * j
            it = []
            for i in range(2):
                it.append(('lds', f"ds_read_b128 {a(buf + 8 + 4 * i, 4)}, v{base + 2} offset:{off + i * 1024}", ('y', c, j)))
                for jh in range(2):
                    it.append(('lds', f"ds_read_b64_tr_b16 {a(buf + 4 * i + 2 * jh, 2)}, v{base + i} offset:{off + jh * 2048}", ('y', c, j)))
            return it

        def sp_loads(t):
            it = []
            for src in range(8):
                if src % 4 == 0: it.append(f"s_add_u32 s{sT0}, s{sOFF}, {t * 8192 + src * 1024}")
                it.append(('vm', f"buffer_load_dwordx4 {v(vQ + 32 * t + 4 * src, 4)}, v{vB2}, {srd(WS)}, s{sT0} offen offset:{(src & 3) * 1024} sc1", ('sp', t)))
            return it
        for c in range(14):
            s.wait(vm=('y', c))
            s("s_barrier")
            if c == s.opt.get('csig', 5): s.wait(vm='spst'); s("s_barrier"); s.signal(3)
            for it in y_reads(c, 0) + y_reads(c, 1): s.item(it)
            spine = []; fill = {}
            for j in range(4):
                for n in range(2):
                    for t in range(2):
                        d = v(vACC + 8 * n + 4 * t, 4)
                        spine.append(mfma(d, a(16 * j + 4 * n, 4), a(16 * j + 8 + 4 * t, 4), "0" if (c == 0 and j == 0) else d))
                fill.setdefault(4 * j - 1, []).append(('wait', None, ('y', c, j)))
                if j + 2 < 4: spread(fill, y_reads(c, j + 2), 4 * j, 4 * j + 3)
            its = [sp_store(k // 4, k % 4) for k in range(c * nsp, min(16, (c + 1) * nsp))]
            if c + 4 < 14: its += b4_dma(c + 4)
            spread(fill, its, 4, 15)
            if c == s.opt.get('cpoll', 9):
                spread(fill, s.poll_items(False, 'p4') + [
                    f"s_lshl_b32 s{sOFF}, s{sTB}, 19", f"s_lshl_b32 s{sT0}, s{sG}, 16", f"s_add_u32 s{sOFF}, s{sOFF}, s{sT0}", f"s_lshl_b32 s{sT0}, s{sCH}, 15",
                    f"s_add_u32 s{sOFF}, s{sOFF}, s{sT0}", f"s_lshl_b32 s{sT0}, s{sTH}, 14", f"s_add_u32 s{sOFF}, s{sOFF}, s{sT0}", f"s_add_u32 s{sOFF}, s{sOFF}, {WS_SP}"], 0, 7)
            if c == s.opt.get('cload', 11):
                fill.setdefault(7, []).append(lambda: s.poll_check(3, 'p4'))
                spread(fill, sp_loads(0) + sp_loads(1), 8, 15)
            if c == 12:
                its = [f"v_and_b32 v{vX}, 15, v{vL}", f"v_lshlrev_b32 v{vX}, 10, v{vX}", f"v_lshrrev_b32 v{vY}, 4, v{vL}", f"v_lshl_add_u32 v{vD}, v{vY}, 4, v{vX}",
                       f"s_lshl_b32 s{sHB}, s{sTB}, 16", f"s_lshl_b32 s{sT0}, s{sTH}, 15", f"s_add_u32 s{sHB}, s{sHB}, s{sT0}", f"s_lshl_b32 s{sT0}, s{sG}, 7",
                       f"s_add_u32 s{sHB}, s{sHB}, s{sT0}", f"s_lshl_b32 s{sT0}, s{sCH}, 6", f"s_add_u32 s{sHB}, s{sHB}, s{sT0}", f"s_add_u32 s{sT1}, s{sHB}, 16384",
                       ('vm', f"buffer_load_dwordx4 {v(192, 4)}, v{vD}, {srd(X)}, s{sHB} offen", 'xf'),
                       ('vm', f"buffer_load_dwordx4 {v(196, 4)}, v{vD}, {srd(X)}, s{sT1} offen", 'xf')]
                spread(fill, its, 8, 15)
            s.weave(spine, fill)
            s.stamp(f'.y{c}')
        s.stamp('b4')
        for t in range(2):
            for n in range(2):
                for j in range(2):
                    xr = vX1 + 4 * t + 2 * n + j; r = vACC + 8 * n + 4 * t + 2 * j
                    s(f"v_dot2_f32_bf16 v{r}, v{xr}, s{sLO}, v{r}", f"v_dot2_f32_bf16 v{r + 1}, v{xr}, s{sHI}, v{r + 1}")
        s(f"s_mov_b32 s{sC}, {f2u(-1.4426950408889634)}", f"s_mov_b32 s{sC + 1}, {f2u(-1.4426950408889634)}")
        T = 128
        for i in range(8): s(f"v_pk_mul_f32 {v(T + 2 * i, 2)}, {v(vACC + 2 * i, 2)}, s[{sC}:{sC + 1}]")
        for i in range(16): s(f"v_exp_f32 v{T + i}, v{T + i}")
        for i in range(8): s(f"v_pk_add_f32 {v(T + 2 * i, 2)}, {v(T + 2 * i, 2)}, 1.0 op_sel_hi:[1,0]")
        for i in range(16): s(f"v_rcp_f32 v{T + i}, v{T + i}")
        for i in range(8): s(f"v_pk_mul_f32 {v(vACC + 2 * i, 2)}, {v(vACC + 2 * i, 2)}, {v(T + 2 * i, 2)}")
        for t in range(2):
            s.wait(vm=('sp', t))
            for src in range(8):
                for n in range(2):
                    for j in range(2):
                        pr = vQ + 32 * t + 4 * src + 2 * n + j; r = T + 8 * n + 4 * t + 2 * j
                        c0 = "0" if src == 0 else f"v{r}"; c1 = "0" if src == 0 else f"v{r + 1}"
                        s(f"v_dot2_f32_bf16 v{r}, v{pr}, s{sLO}, {c0}", f"v_dot2_f32_bf16 v{r + 1}, v{pr}, s{sHI}, {c1}")
        for i in range(8): s(f"v_pk_mul_f32 {v(T + 2 * i, 2)}, {v(T + 2 * i, 2)}, {v(vACC + 2 * i, 2)}")
        for t in range(2):
            for i in range(4): s(f"v_permlane32_swap_b32 v{T + 4 * t + i}, v{T + 8 + 4 * t + i}")
        for t in range(2):
            for i in range(4): s(f"v_permlane16_swap_b32 v{T + 4 * t + i}, v{T + 8 + 4 * t + i}")
        s.wait(vm='xf')
        for t in range(2):
            for h in range(2):
                for j in range(2):
                    r = T + 8 * h + 4 * t + 2 * j; xr = 192 + 4 * t + 2 * h + j
                    s(f"v_dot2_f32_bf16 v{r}, v{xr}, s{sLO}, v{r}", f"v_dot2_f32_bf16 v{r + 1}, v{xr}, s{sHI}, v{r + 1}")
        for t in range(2):
            for h in range(2):
                for j in range(2):
                    r = T + 8 * h + 4 * t + 2 * j
                    s(f"v_cvt_pk_bf16_f32 v{200 + 4 * t + 2 * h + j}, v{r}, v{r + 1}")
        s.vmem(f"buffer_store_dwordx4 {v(200, 4)}, v{vD}, {srd(OUT)}, s{sHB} offen", None)
        s.vmem(f"buffer_store_dwordx4 {v(204, 4)}, v{vD}, {srd(OUT)}, s{sT1} offen", None)
        if s.stamps:
            s.stamp('end')
            s(f"s_lshl_b32 s{sT0}, s2, 2", f"s_add_u32 s{sT0}, s{sT0}, s{sW}", f"s_lshl_b32 s{sT0}, s{sT0}, 9", f"s_add_u32 s{sT0}, s{sT0}, {WS_STAMP}")
            s(f"v_mov_b32 v{vX}, 0", "s_mov_b64 exec, 1")
            for i in range(2 * s.nstamp):
                s(f"v_accvgpr_read_b32 v{vY}, a{212 + i}")
                s.vmem(f"buffer_store_dword v{vY}, v{vX}, {srd(WS)}, s{sT0} offen offset:{4 * i}", None)
                s("s_waitcnt vmcnt(0)")
        s("s_endpgm")

        s("L_slow:")
        s("s_waitcnt vmcnt(0) lgkmcnt(0)", "s_barrier")
        for i in range(16): s(f"v_mov_b32 v{vACC + i}, 0xff800000")
        s(f"s_mov_b32 s{sKV}, 0", f"s_mov_b32 s{sPASS}, 0")
        s("L_slow_loop:")
        s(f"s_add_u32 m0, s{sKVM}, {KVPOS[2]}", "s_nop 0")
        s(f"buffer_load_dwordx4 v{vE}, {srd(KC)}, s{sKV} offen lds", f"buffer_load_dwordx4 v{vE + 1}, {srd(KC)}, s{sKV} offen offset:1024 lds")
        s(f"s_add_u32 s{sKV}, s{sKV}, 8192", "s_waitcnt vmcnt(0)", "s_barrier")
        for it in s.k_reads(0): s(it[1])
        s("s_waitcnt lgkmcnt(0)", "s_barrier")
        for m_ in s.qk_spine(lambda qt: "0"): s(m_)
        s("s_nop 7")
        for qt in range(4):
            b = vS_ + 8 * qt; r = vACC + 4 * qt
            for i in range(4): s(f"v_max3_f32 v{r}, v{r}, v{b + 2 * i}, v{b + 2 * i + 1}")
        s(f"s_add_u32 s{sPASS}, s{sPASS}, 1", f"s_cmp_lt_u32 s{sPASS}, 16", "s_cbranch_scc1 L_slow_loop")
        for qt in range(4):
            r = vACC + 4 * qt
            s.xsum(r, r + 1, op="v_max_f32")
            s(f"v_sub_f32 v{r}, 0, v{r}")
            for i in range(1, 4): s(f"v_mov_b32 v{r + i}, v{r}")
        s(f"s_mov_b32 s{sKV}, 0", f"s_mov_b32 s{sOFF}, 0")
        for t in range(3):
            for it in s.kv_dma(t): s(it if isinstance(it, str) else it[1])
        s("s_waitcnt vmcnt(0)", "s_barrier")
        for it in s.k_reads(0): s(it[1])
        s("s_branch L_attn")
        s("L_end:", "s_endpgm")
        return s.text()


HEADER = """; Fused kernel: x + attention(LN(x)) * silu(mixer-MLP(LN(x))), one persistent workgroup per CU.
; @launch grid=(256,1,1) block=(256,1,1) lds=163840
.amdgcn_target "amdgcn-amd-amdhsa--gfx950"
.text
.globl {n}
.p2align 8
.type {n},@function
{n}:
"""
FOOTER = """.section .rodata,"a"
.p2align 6
.amdhsa_kernel {n}
  .amdhsa_next_free_vgpr 512
  .amdhsa_next_free_sgpr 102
  .amdhsa_accum_offset 256
  .amdhsa_group_segment_fixed_size 0
  .amdhsa_kernarg_size 104
  .amdhsa_user_sgpr_count 2
  .amdhsa_user_sgpr_kernarg_segment_ptr 1
  .amdhsa_system_sgpr_workgroup_id_x 1
  .amdhsa_float_denorm_mode_32 3
.end_amdhsa_kernel
"""


def generate(**kw):
    g = Gen(**kw)
    body = g.build()
    body = body.replace("CPF_N", str(kw.get('cpfn', 18)))
    return HEADER.format(n=NAME) + body + FOOTER.format(n=NAME), g


if __name__ == "__main__":
    import argparse
    ap = argparse.ArgumentParser()
    ap.add_argument("-o", default="k.s"); ap.add_argument("--amap", type=int, default=2)
    ap.add_argument("--opts", default="")
    ap.add_argument("--dumps", default=""); ap.add_argument("--stamps", action="store_true"); ap.add_argument("--thr", type=int, default=30)
    A_ = ap.parse_args()
    txt, g = generate(amap=A_.amap, dumps=[d for d in A_.dumps.split(",") if d], stamps=A_.stamps, thr_log2=A_.thr, **eval('dict(%s)' % A_.opts))
    open(A_.o, "w").write(txt)
    print("lines", txt.count("\n"), "pads", g.npad, "stamps", getattr(g, 'stamp_names', None))
```

```python
import sys, math
from emit import K, spread

NAME = "recurrent_scan__sliding_block_cached__mixer_s_mlp__prompt_kernel"

HPL = 33024
WS_H, WS_X1, WS_H2, WS_SP, WS_DUMP = 0, 0x400000, 0x800000, 0x1000000, 0x4000000
WS_STAMP = 0x8000000
WS_FLAG = 0x300000
SLOT = [65536, 98304, 131072]
SCR_R2 = 65536 + 3 * 8192 + 7 * 1024
KVPOS = [32768, 49152, 65536, 81920]
B4SLOT = [98304, 131072, 65536, 0, 32768]
sW, sTB, sG, sTH, sCH = 3, 4, 5, 6, 7
X, KC, VC, WQ, WO, W1, W2, W3, W4, OUT, DBG, WS = [8 + 4 * i for i in range(12)]
sT0, sT1, sT2, sT3 = 56, 57, 58, 59
sOFF = 60
sRING = 61
sKV = 62
sKVM = 63
sONE2, sLO, sHI = 64, 65, 66
sC = 68
sINV = 70
sPASS = 72
sSPIN = 73
sHB = 74
sB0, sB1 = 94, 95
sJJ = 96
aDUMMY = 255
sFLG = 97
sTC, sJ, sJC = 98, 99, 100
sFLC = 101
aONE, aSEL = 208, 212
STAMP0 = 218
vL, vB, vB2 = 1, 2, 3
vT0, vT1 = 4, 12
vD = 20
vE = 24
vS = 28
vX, vY = 30, 31
vX1 = 32
vU = 40
vACC = 48
vQ = 64
vTQ = 126
vS_ = 128
vP = 160
vRAW = 192


def srd(r): return f"s[{r}:{r + 3}]"
def v(b, n=1): return f"v{b}" if n == 1 else f"v[{b}:{b + n - 1}]"
def a(b, n=1): return f"a{b}" if n == 1 else f"a[{b}:{b + n - 1}]"
def mfma(d, A, B, C): return f"v_mfma_f32_16x16x32_bf16 {d}, {A}, {B}, {C}"
def f2u(x):
    import struct
    return struct.unpack('<I', struct.pack('<f', x))[0]


class Gen(K):
    def __init__(s, amap=2, dumps=(), stamps=False, thr_log2=30, only=None, **opt):
        super().__init__()
        s.amap = amap; s.dumps = set(dumps); s.stamps = stamps; s.nstamp = 0; s.thr = thr_log2; s.only = only; s.opt = opt

    def stamp(s, name):
        if not s.stamps: return
        if s.only is None:
            if name[0] == '.': return
        elif name not in s.only: return
        i = s.nstamp; s.nstamp += 1
        assert i < 18
        s.stamp_names = getattr(s, 'stamp_names', []) + [name]
        tmp = vX1 + 2 if name in ('start', 'setup', '.k', '.xi', '.x0', '.x3', 'ln1') else 0
        s("s_memtime s[90:91]", "s_memrealtime s[92:93]", "s_waitcnt lgkmcnt(0)")
        s(f"v_mov_b32 v{tmp}, s90", f"v_accvgpr_write_b32 a{STAMP0 + 2 * i}, v{tmp}", f"v_mov_b32 v{tmp}, s92", f"v_accvgpr_write_b32 a{STAMP0 + 1 + 2 * i}, v{tmp}")

    def mk_srd(s, r, ptr, size, off=None):
        if off is None:
            s(f"s_mov_b32 s{r}, s{ptr}", f"s_mov_b32 s{r + 1}, s{ptr + 1}", f"s_mov_b32 s{r + 2}, {size}")
        else:
            s(f"s_add_u32 s{r}, s{ptr}, s{off}", f"s_addc_u32 s{r + 1}, s{ptr + 1}, 0", f"s_sub_u32 s{r + 2}, {size}, s{off}")
        s(f"s_mov_b32 s{r + 3}, 0x20000")

    def dump(s, name, regs, slot):
        if name not in s.dumps: return
        s("s_waitcnt vmcnt(0) lgkmcnt(0)", "s_nop 7", "s_nop 7")
        s(f"s_lshl_b32 s{sT0}, s{sTB}, 5", f"s_lshl_b32 s{sT1}, s{sG}, 2", f"s_add_u32 s{sT0}, s{sT0}, s{sT1}", f"s_add_u32 s{sT0}, s{sT0}, s{sW}")
        s(f"s_mul_i32 s{sT0}, s{sT0}, {len(regs) * 256}", f"s_add_u32 s{sT0}, s{sT0}, {WS_DUMP + slot * 0x1000000}")
        s(f"v_lshlrev_b32 v{vX}, 2, v{vL}")
        for i, r in enumerate(regs):
            if r[0] == 'a':
                s(f"v_accvgpr_read_b32 v{vY}, {r}"); r = f"v{vY}"
            s(f"buffer_store_dword {r}, v{vX}, {srd(WS)}, s{sT0} offen", f"s_add_u32 s{sT0}, s{sT0}, 256")
            s("s_waitcnt vmcnt(0)")

    def t256(s, dst, base_s=None, base_imm=0, kv=False):
        s(f"v_lshrrev_b32 v{vX}, 4, v{vL}", f"v_bfe_u32 v{vY}, v{vL}, 2, 2")
        s(f"v_and_b32 v{vU}, 1, v{vX}", f"v_lshl_add_u32 v{vU}, v{vU}, 2, v{vY}")
        if kv:
            s(f"v_lshrrev_b32 v{vX}, 1, v{vX}", f"v_lshlrev_b32 v{vX}, 12, v{vX}", f"v_lshl_add_u32 v{vU + 1}, v{vU}, 8, v{vX}")
        else:
            s(f"v_lshl_add_u32 v{vX}, v{vX}, 2, v{vY}", f"v_lshlrev_b32 v{vU + 1}, 8, v{vX}")
        s(f"v_and_b32 v{vY}, 3, v{vL}", f"v_lshl_add_u32 v{vU + 1}, v{vY}, 3, v{vU + 1}")
        if base_s is not None: s(f"v_add_u32 v{vU + 1}, s{base_s}, v{vU + 1}")
        if base_imm: s(f"v_add_u32 v{vU + 1}, {base_imm}, v{vU + 1}")
        for nt in range(8):
            s(f"v_xor_b32 v{vX}, {nt}, v{vU}", f"v_lshl_add_u32 v{dst + nt}, v{vX}, 5, v{vU + 1}")

    def t128(s, dst, nts, base_s=None, base_imm=0):
        s(f"v_lshrrev_b32 v{vX}, 4, v{vL}", f"v_bfe_u32 v{vY}, v{vL}, 2, 2")
        s(f"v_lshl_add_u32 v{vU + 1}, v{vX}, 2, v{vY}", f"v_lshlrev_b32 v{vU + 1}, 7, v{vU + 1}")
        s(f"v_and_b32 v{vX}, 1, v{vX}", f"v_lshrrev_b32 v{vY}, 1, v{vY}", f"v_lshl_add_u32 v{vU}, v{vX}, 1, v{vY}")
        s(f"v_and_b32 v{vY}, 3, v{vL}", f"v_lshl_add_u32 v{vU + 1}, v{vY}, 3, v{vU + 1}")
        if base_s is not None: s(f"v_add_u32 v{vU + 1}, s{base_s}, v{vU + 1}")
        if base_imm: s(f"v_add_u32 v{vU + 1}, {base_imm}, v{vU + 1}")
        if nts[0] == 's':
            s(f"s_lshl_b32 s{sT0}, s{nts[1]}, 1", f"v_xor_b32 v{vU}, s{sT0}, v{vU}")
            nts = [0, 1]
        for i, nt in enumerate(nts):
            s(f"v_xor_b32 v{vX}, {nt}, v{vU}", f"v_lshl_add_u32 v{dst + i}, v{vX}, 5, v{vU + 1}")

    def d256(s, dst, RS, natural):
        s(f"v_lshrrev_b32 v{vX}, 4, v{vL}")
        s(f"v_bfe_u32 v{vY}, v{vL}, 1, 3", f"v_xor_b32 v{vY}, v{vY}, v{vX}", f"v_lshlrev_b32 v{vY}, 5, v{vY}")
        s(f"v_and_b32 v{vU}, 1, v{vL}", f"v_lshl_add_u32 v{vY}, v{vU}, 4, v{vY}")
        s(f"s_mov_b32 s{sT0}, {RS}", f"v_mul_lo_u32 v{vX}, v{vX}, s{sT0}")
        for p in range(4):
            ro = (8 if natural else 4) * p * RS - 1024 * p
            if p & 1: s(f"v_xor_b32 v{vU}, 0x80, v{vY}", f"v_add_u32 v{vU}, v{vU}, v{vX}")
            else: s(f"v_add_u32 v{vU}, v{vY}, v{vX}")
            s(f"v_add_u32 v{dst + p}, {ro}, v{vU}")

    def d128(s, dst, RS, natural, oob_w3=False):
        s(f"v_lshrrev_b32 v{vX}, 3, v{vL}")
        if natural:
            s(f"v_lshrrev_b32 v{vY}, 2, v{vX}", f"v_and_b32 v{vX}, 3, v{vX}", f"v_lshl_add_u32 v{vX}, v{vY}, 3, v{vX}")
        s(f"s_mov_b32 s{sT0}, {RS}", f"v_mul_lo_u32 v{vX}, v{vX}, s{sT0}")
        s(f"v_bfe_u32 v{vY}, v{vL}, 1, 2", f"v_lshrrev_b32 v{vU}, 4, v{vL}", f"v_xor_b32 v{vY}, v{vY}, v{vU}")
        if oob_w3:
            s(f"s_cmp_eq_u32 s{sW}, 3", f"s_cselect_b32 s{sT0}, 0x20000000, 0", f"v_lshrrev_b32 v{vU}, 1, v{vY}",
              f"v_mul_lo_u32 v{vU}, v{vU}, s{sT0}", f"v_add_u32 v{vX}, v{vX}, v{vU}")
        s(f"v_lshl_add_u32 v{vX}, v{vY}, 5, v{vX}", f"v_and_b32 v{vU}, 1, v{vL}", f"v_lshl_add_u32 v{vX}, v{vU}, 4, v{vX}")
        for q in range(4):
            ro = ((16 * (q & 1) + 4 * (q >> 1)) if natural else 8 * q) * RS - 1024 * q
            s(f"v_add_u32 v{dst + q}, {ro}, v{vX}")

    def dma4(s, vo, S, soff, m0s, m0imm, tag, n=4, first=0):
        fl = s.opt.get('w1f', '') if tag == 'w1' else ''
        it = [f"s_add_u32 m0, s{m0s}, {m0imm}" if m0s is not None else f"s_mov_b32 m0, {m0imm}"]
        for p in range(first, n):
            it.append(('vm', f"buffer_load_dwordx4 v{vo + p}, {srd(S)}, s{soff} offen offset:{1024 * p} {fl} lds", tag))
        return it

    def pstep_dma(s, S, step_bytes, half_bytes, slot, tag):
        it = s.dma4(vD, S, sOFF, sRING, slot * 32768, tag)
        it.append(f"s_add_u32 s{sOFF}, s{sOFF}, {half_bytes}")
        it += s.dma4(vD, S, sOFF, sRING, slot * 32768 + 4096, tag)
        it.append(f"s_add_u32 s{sOFF}, s{sOFF}, {step_bytes - half_bytes}")
        return it

    def signal(s, field):
        L = s.label('sig')
        s(f"s_or_b32 s{sT0}, s{sW}, s{sPASS}" if field == 1 else f"s_mov_b32 s{sT0}, s{sW}", f"s_cmp_lg_u32 s{sT0}, 0", f"s_cbranch_scc1 {L}")
        if field < 2:
            s(f"s_lshl_b32 s{sT0}, s{sTB}, 3", f"v_mov_b32 v{vX}, s{sT0}", f"v_mov_b32 v{vY}, {1 << (8 * field)}")
            s("s_mov_b64 exec, 1")
            s.vmem(f"buffer_atomic_add v{vY}, v{vX}, {srd(DBG)}, 0 offen sc1", None, cond=True)
        else:
            s(f"v_mov_b32 v{vX}, s{sFLC if field == 2 else sFLG}", f"v_mov_b32 v{vY}, 1", "s_mov_b64 exec, 1")
            s.vmem(f"buffer_store_dword v{vY}, v{vX}, {srd(WS)}, 0 offen offset:{(field - 2) * 128} sc1", None, cond=True)
        s("s_mov_b64 exec, -1")
        s(f"{L}:")

    def poll_items(s, field, tag):
        if field == 0:
            it = [f"v_min_u32 v{vU + 6}, 2, v{vL}", f"v_add_u32 v{vU + 6}, s{sTB}, v{vU + 6}", f"v_subrev_u32 v{vU + 6}, 1, v{vU + 6}",
                  f"v_max_i32 v{vU + 6}, 0, v{vU + 6}", f"v_min_i32 v{vU + 6}, 31, v{vU + 6}", f"v_lshlrev_b32 v{vU + 6}, 3, v{vU + 6}"]
        elif field == 1:
            it = [f"s_lshl_b32 s{sT0}, s{sTC}, 3", f"v_mov_b32 v{vU + 6}, s{sT0}"]
        else:
            it = [f"s_andn2_b32 s{sT0}, s{sFLC}, 31", f"v_and_b32 v{vU + 6}, 7, v{vL}", f"v_lshl_add_u32 v{vU + 6}, v{vU + 6}, 2, s{sT0}"]
        it.append(('vm', s.poll_load(field), tag))
        return it

    def poll_load(s, field):
        if field < 2:
            return f"buffer_load_dword v{vU + 7}, v{vU + 6}, {srd(DBG)}, 0 offen sc1"
        return f"buffer_load_dword v{vU + 7}, v{vU + 6}, {srd(WS)}, 0 offen offset:{(field - 2) * 128} sc1"

    def poll_check(s, field, tag):
        Lok, Lsp = s.label('ok'), s.label('spin')
        if field < 2:
            test = [f"v_bfe_u32 v{vU + 7}, v{vU + 7}, {8 * field}, 8", f"v_cmp_gt_u32 vcc, 8, v{vU + 7}"]
        else:
            test = [f"v_cmp_ne_u32 vcc, 1, v{vU + 7}"]
        s.wait(vm=tag)
        s(*test); s(f"s_cbranch_vccz {Lok}")
        s(f"s_mov_b32 s{sSPIN}, 0")
        s(f"{Lsp}:")
        s.vmem(s.poll_load(field), None, cond=True)
        s("s_waitcnt vmcnt(0)")
        s(f"s_add_u32 s{sSPIN}, s{sSPIN}, 1", f"s_cmp_gt_u32 s{sSPIN}, 0x40000", f"s_cbranch_scc1 {Lok}")
        s(*test); s(f"s_cbranch_vccnz {Lsp}")
        s(f"{Lok}:")

    def xsum(s, r, tmp, op="v_add_f32"):
        s(f"v_mov_b32 v{tmp}, v{r}", f"v_permlane32_swap_b32 v{r}, v{tmp}", f"{op} v{r}, v{r}, v{tmp}")
        s(f"v_mov_b32 v{tmp}, v{r}", f"v_permlane16_swap_b32 v{r}, v{tmp}", f"{op} v{r}, v{r}, v{tmp}")

    def ln_stats(s, tagf):
        SUM, SQ = vACC, vACC + 4
        sp, fl = [], {}
        for m in range(16):
            R = v(vRAW + 4 * m, 4)
            if m % 4 == 0: fl[2 * m - 1] = [('wait', tagf(m // 4), None)]
            sp += [mfma(v(SUM, 4), a(aONE, 4), R, "0" if m == 0 else v(SUM, 4)), mfma(v(SQ, 4), R, R, "0" if m == 0 else v(SQ, 4))]
        return sp, fl

    def layernorm(s, first, wr_addr, tagf):
        SUM, SQ, NEG = vACC, vACC + 4, vACC + 8
        R = lambda m: v(vRAW + 4 * m, 4)
        if first:
            sp, fl = s.ln_stats(tagf)
            for g in (-1, 23): fl[g].append(lambda g=g: s.stamp('.x0' if g < 0 else '.x3'))
            for it in s.capture(lambda: s.weave(sp, fl)): s.item(it)
        s(f"v_and_b32 v{vX}, 3, v{vL}", f"v_cmp_eq_u32 s[{sT0}:{sT0 + 1}], 1, v{vX}", f"v_cmp_eq_u32 s[{sT2}:{sT2 + 1}], 2, v{vX}", f"v_cmp_eq_u32 vcc, 3, v{vX}",
          f"v_lshrrev_b32 v{vX}, 4, v{vL}", f"v_bfe_u32 v{vY}, v{vL}, 2, 2")
        for i in range(4): s(f"v_mul_f32 v{NEG + i}, {f2u(-1.0 / 512)}, v{SUM + i}")
        stat = [f"v_cndmask_b32 v{SQ}, v{SQ}, v{SQ + 1}, s[{sT0}:{sT0 + 1}]", f"v_cndmask_b32 v{SQ}, v{SQ}, v{SQ + 2}, s[{sT2}:{sT2 + 1}]",
                f"v_cndmask_b32 v{SQ}, v{SQ}, v{SQ + 3}, vcc", f"v_cmp_eq_u32 vcc, v{vX}, v{vY}", f"v_mul_f32 v{SUM + 1}, v{NEG}, v{NEG}", "s_nop 0",
                f"v_cndmask_b32 v{SQ}, 0, v{SQ}, vcc"]
        stat += s.capture(lambda: s.xsum(SQ, SQ + 1))
        stat += [f"v_fma_f32 v{SQ}, v{SQ}, s{sINV}, -v{SUM + 1}", f"v_max_f32 v{SQ}, 0, v{SQ}", f"v_add_f32 v{SQ + 1}, {f2u(1e-5)}, v{SQ}", f"v_rsq_f32 v{SUM}, v{SQ + 1}",
                 f"v_and_b32 v{vX}, 15, v{vL}", f"s_lshl_b32 s{sT0}, s{sW}, {7 if first else 6}", f"s_add_u32 s{sT0}, s{sT0}, {SCR_R2}",
                 f"v_lshl_add_u32 v{vX}, v{vX}, {3 if first else 2}, s{sT0}"]
        if first:
            stat += [f"v_mul_f32 v{SQ}, v{SQ}, v{SUM}", f"v_mul_f32 v{SQ}, v{SQ}, v{SUM}", f"v_add_f32 v{SQ}, {f2u(1e-5)}, v{SQ}", f"v_rsq_f32 v{SQ}, v{SQ}", "s_nop 0",
                     f"v_mul_f32 v{SUM + 1}, v{SQ}, v{SUM}", ('lds', f"ds_write_b64 v{vX}, {v(SUM, 2)}", 'rw')]
        else:
            stat += [('lds', f"ds_write_b32 v{vX}, v{SUM}", 'rw')]
        spine = []; fill = {}
        for m in range(16):
            for u in range(2):
                spine.append(mfma(v(128 + 8 * (m & 3) + 4 * u, 4), a(aSEL + 2 - 2 * u, 4), R(m), v(NEG, 4)))
        def out(m):
            t = 128 + 8 * (m & 3); p = 160 + 4 * (m & 3)
            return [f"v_cvt_pk_bf16_f32 v{p + i}, v{t + 2 * i}, v{t + 2 * i + 1}" for i in range(4)] + [('lds', f"ds_write_b128 v{wr_addr}, {v(p, 4)} offset:{m * 1024}", 'lnw')]
        for m in range(14):
            o = out(m)
            fill.setdefault(2 * m + 4, []).extend(o[:2]); fill.setdefault(2 * m + 5, []).extend(o[2:])
        spread(fill, stat, 0, 27)
        for it in s.capture(lambda: s.weave(spine, fill)): s.item(it)
        for it in out(14) + out(15): s.item(it)

    def gelu_pairs(s, regs, tmp):
        n = len(regs)
        T = [tmp + 2 * i for i in range(4)]
        for b in range(0, n, 4):
            grp = list(zip(regs[b:b + 4], T))
            for (r, c), t in grp: s(f"v_pk_mul_f32 {v(t, 2)}, {v(r, 2)}, {v(r, 2)}")
            for (r, c), t in grp: s(f"v_pk_fma_f32 {v(t, 2)}, {v(t, 2)}, {v(c, 2)}, {v(c, 2)} op_sel:[0,0,1] op_sel_hi:[1,0,1]")
            for (r, c), t in grp: s(f"v_pk_mul_f32 {v(t, 2)}, {v(t, 2)}, {v(r, 2)}")
            for (r, c), t in grp: s(f"v_exp_f32 v{t}, v{t}", f"v_exp_f32 v{t + 1}, v{t + 1}")
            for (r, c), t in grp: s(f"v_pk_fma_f32 {v(t, 2)}, {v(t, 2)}, {v(c + 2, 2)}, {v(c + 2, 2)} op_sel_hi:[1,0,0]")
            for (r, c), t in grp: s(f"v_rcp_f32 v{t}, v{t}", f"v_rcp_f32 v{t + 1}, v{t + 1}")
            for (r, c), t in grp: s(f"v_pk_mul_f32 {v(r, 2)}, {v(t, 2)}, {v(r, 2)}")

    def gelu_consts(s, dst, r):
        kk = 2 * 0.7978845608028654 * 1.4426950408889634
        s(f"v_mul_f32 v{dst}, v{r}, v{r}", f"v_mul_f32 v{dst + 1}, {f2u(-kk)}, v{r}", f"v_rcp_f32 v{dst + 2}, v{r}",
          f"v_mul_f32 v{dst}, v{dst}, v{dst + 1}", f"v_mul_f32 v{dst}, {f2u(0.044715)}, v{dst}")

    def stype_reads(s, m, tagp):
        buf = 16 * (m & 3)
        it = []
        for i in range(2):
            it.append(('lds', f"ds_read_b128 {a(buf + 8 + 4 * i, 4)}, v{vB2} offset:{(16 * i + m) * 1024}", (tagp, m)))
            for jh in range(2):
                it.append(('lds', f"ds_read_b64_tr_b16 {a(buf + 4 * i + 2 * jh, 2)}, v{vS + i} offset:{m * 4096 + jh * 2048}", (tagp, m)))
        return it

    def stype_resident(s, tagp, pre_done=3, extra=None):
        spine = []; fill = {}
        for m in range(16):
            buf = 16 * (m & 3)
            for n in range(2):
                for t in range(2):
                    d = v(vACC + 8 * n + 4 * t, 4)
                    spine.append(mfma(d, a(buf + 4 * n, 4), a(buf + 8 + 4 * t, 4), "0" if m == 0 else d))
            fill.setdefault(4 * m - 1, []).append(('wait', None, (tagp, m)))
            if m + pre_done < 16:
                spread(fill, s.stype_reads(m + pre_done, tagp), 4 * m, 4 * m + 2)
        if extra:
            for g, its in extra.items(): fill.setdefault(g, []).extend(its)
        s.weave(spine, fill)

    def p_reads_A(s, st, slot, tagp):
        buf = 32 * (st & 1)
        base = vT1 if slot == 2 else vT0
        off = 32768 if slot == 1 else 0
        it = []
        for nt in range(8):
            for jh in range(2):
                it.append(('lds', f"ds_read_b64_tr_b16 {a(buf + 4 * nt + 2 * jh, 2)}, v{base + nt} offset:{off + jh * 4096}", (tagp, st, 'a' if nt < 4 else 'b')))
        return it

    def p_reads_B(s, st, tagp):
        buf = 64 + 16 * (st & 1)
        return [('lds', f"ds_read_b128 {a(buf + 4 * tt, 4)}, v{vB} offset:{(16 * tt + st) * 1024}", (tagp, st, 'a')) for tt in range(4)]

    def ptype(s, tagp, S, step_bytes, half_bytes, extra):
        for st in range(16):
            ab = 32 * (st & 1); bb = 64 + 16 * (st & 1)
            spine = []
            for nt in range(8):
                for tt in range(4):
                    d = v(128 + 16 * nt + 4 * tt, 4)
                    spine.append(mfma(d, a(ab + 4 * nt, 4), a(bb + 4 * tt, 4), "0" if st == 0 else d))
            ex = extra(st)
            fill = {-1: [('wait', None, (tagp, st, 'a'))], 1: [('wait', None, 0)]}
            for g, its in ex.get('early', {}).items(): fill.setdefault(g, []).extend(its)
            if st + 3 < 16: dm = s.pstep_dma(S, step_bytes, half_bytes, st % 3, (tagp, 'd', st + 3))
            else: dm = ex.get('dma', [])
            if st + 1 < 16:
                spread(fill, dm, 2, 9)
                fill.setdefault(9, []).append(('wait', (tagp, 'd', st + 1), None))
                A = s.p_reads_A(st + 1, (st + 1) % 3, tagp); B = s.p_reads_B(st + 1, tagp)
                rd = [B[0]] + A[0:2] + B[1:4] + A[2:]
                spread(fill, rd, 10, 25)
            else:
                spread(fill, dm, 2, 31)
            for g, its in ex.get('at', {}).items(): fill.setdefault(g, []).extend(its)
            s.weave(spine, fill)
            s.stamp(f'.{tagp}{st}')

    def kv_dma(s, t):
        pos = KVPOS[(t + 2) & 3]
        return [f"s_add_u32 m0, s{sKVM}, {pos}",
                ('vm', f"buffer_load_dwordx4 v{vE}, {srd(KC)}, s{sKV} offen lds", ('kv', t)),
                ('vm', f"buffer_load_dwordx4 v{vE + 1}, {srd(KC)}, s{sKV} offen offset:1024 lds", ('kv', t)),
                ('vm', f"buffer_load_dwordx4 v{vE + 2}, {srd(VC)}, s{sKV} offen offset:2048 lds", ('kv', t)),
                ('vm', f"buffer_load_dwordx4 v{vE + 3}, {srd(VC)}, s{sKV} offen offset:3072 lds", ('kv', t)),
                f"s_add_u32 s{sKV}, s{sKV}, 8192"]

    def k_reads(s, t):
        off = KVPOS[(t + 2) & 3] - KVPOS[0]
        return [('lds', f"ds_read_b128 {a(144 + 16 * u + 4 * ds, 4)}, v{vT1 + ds} offset:{off + u * 8192}", ('K', t))
                for u in range(2) for ds in range(4)]

    def v_reads(s, t):
        off = KVPOS[(t + 2) & 3] - KVPOS[0]
        return [('lds', f"ds_read_b64_tr_b16 {a(176 + 4 * dt + 2 * jh, 2)}, v{vT0 + dt} offset:{off + jh * 8192}", ('V', t))
                for dt in range(8) for jh in range(2)]

    def qk_spine(s, cinit):
        sp = []
        for qt in range(4):
            order = [(u, ds) for u in range(2) for ds in range(4)] if s.opt.get('qk', 'chain') == 'chain' else [(u, ds) for ds in range(4) for u in range(2)]
            for u, ds in order:
                d = v(vS_ + 8 * qt + 4 * u, 4)
                sp.append(mfma(d, a(144 + 16 * u + 4 * ds, 4), v(vQ + 16 * ds + 4 * qt, 4), d if ds else cinit(qt)))
        return sp

    def pv_spine(s, t):
        sp = []
        for qt in range(4):
            p = v(vP + 16 * (t & 1) + 4 * qt, 4)
            for dt in range(8):
                d = a(16 * dt + 4 * qt, 4)
                sp.append(mfma(d, a(176 + 4 * dt, 4), p, "0" if t == 0 else d))
            d = a(128 + 4 * qt, 4)
            sp.append(mfma(d, a(aONE, 4), p, "0" if t == 0 else d))
        return sp

    def job(s, t, qt):
        b = vS_ + 8 * qt
        E = [f"v_exp_f32 v{b + i}, v{b + i}" for i in range(8)]
        C = [f"v_cvt_pk_bf16_f32 v{vP + 16 * (t & 1) + 4 * qt + i}, v{b + 2 * i}, v{b + 2 * i + 1}" for i in range(4)]
        return E, C

    def place_job(s, fill, t, qt, g0, n):
        E, C = s.job(t, qt)
        step = n // 8
        if s.opt.get('noexp'): E = []
        if s.opt.get('nocvt'): C = []
        for i, e in enumerate(E): fill.setdefault(g0 + i * step, []).append(e)
        for i, c in enumerate(C): fill.setdefault(min(g0 + n - 1, g0 + (2 * i + 1) * step + 1), []).append(c)

    def build(s):
        s("s_cmp_ge_u32 s2, 256", "s_cbranch_scc1 L_end")
        s.stamp('start')
        s("s_load_dwordx16 s[64:79], s[0:1], 0", "s_load_dwordx8 s[80:87], s[0:1], 64", "s_load_dwordx2 s[88:89], s[0:1], 96")
        s(f"v_and_b32 v{vL}, 63, v0", f"v_lshrrev_b32 v{vX}, 6, v0", f"v_readfirstlane_b32 s{sW}, v{vX}")
        s(f"s_and_b32 s{sT0}, s2, 7", f"s_lshr_b32 s{sT1}, s2, 3")
        def mapping(am, rT, rG):
            if am == 1: s(f"s_mov_b32 s{rG}, s{sT0}", f"s_mov_b32 s{rT}, s{sT1}")
            elif am == 8: s(f"s_and_b32 s{rG}, s{sT1}, 7", f"s_andn2_b32 s{rT}, s{sT1}, 7", f"s_add_u32 s{rT}, s{rT}, s{sT0}")
            else:
                lg = int(math.log2(am))
                s(f"s_and_b32 s{rG}, s{sT0}, {8 // am - 1}", f"s_lshl_b32 s{rG}, s{rG}, {lg}", f"s_and_b32 s{sT2}, s{sT1}, {am - 1}", f"s_add_u32 s{rG}, s{rG}, s{sT2}")
                s(f"s_andn2_b32 s{rT}, s{sT1}, {am - 1}", f"s_lshr_b32 s{sT2}, s{sT0}, {3 - lg}", f"s_add_u32 s{rT}, s{rT}, s{sT2}")
        mapping(s.amap, sTB, sG)
        s.cmap = s.opt.get('cmap', 4)
        mapping(s.cmap, sTC, sJ)
        s(f"s_lshr_b32 s{sJC}, s{sT1}, {int(math.log2(s.cmap))}")
        s(f"s_and_b32 s{sTH}, s{sW}, 1", f"s_lshr_b32 s{sCH}, s{sW}, 1")
        s(f"v_and_b32 v{vX}, 15, v{vL}", f"s_lshl_b32 s{sT0}, s{sW}, 4", f"v_add_u32 v{vX}, s{sT0}, v{vX}", f"v_lshlrev_b32 v{vX}, 10, v{vX}",
          f"v_lshrrev_b32 v{vY}, 4, v{vL}", f"v_lshl_add_u32 v{vU + 4}, v{vY}, 4, v{vX}")
        s(f"s_lshl_b32 s{sOFF}, s{sTB}, 16")
        s.pa = s.opt.get('pa', s.amap)
        if s.pa == s.amap: s(f"s_lshr_b32 s{sJJ}, s2, {3 + int(math.log2(s.amap))}")
        else: s(f"s_lshr_b32 s{sJJ}, s{sTB}, {int(math.log2(s.pa))}")
        s(f"s_lshl_b32 s{sT0}, s{sG}, 10", f"s_lshl_b32 s{sT1}, s{sW}, 8", f"s_add_u32 s{sT3}, s{sT0}, s{sT1}")
        s("s_waitcnt lgkmcnt(0)")
        s.stamp('.k')
        pt = s.opt.get('pt', 0)
        if pt:
            L = s.label('pt')
            if pt == 2: s(f"s_cmp_lg_u32 s{sW}, 0", f"s_cbranch_scc1 {L}")
            ent = [(76, None), (70, None), (70, 0x200000), (70, 0x3ffffc), (66, 'kv'), (68, 'kv'), (78, None), (72, 'wo'), (80, None), (82, None)]
            s(f"s_lshl_b32 s{sB0}, s{sG}, 19", f"s_add_u32 s{sB1}, s{sB0}, {1536 * 256}")
            s(f"v_mov_b32 v{vX}, s64", f"v_mov_b32 v{vY}, s65")
            for i, (p, o) in enumerate(ent):
                if o is None: lo, hi = p, p + 1
                else:
                    oo = {'kv': f"s{sB1}", 'wo': f"s{sB0}"}.get(o, o)
                    s(f"s_add_u32 s{sT0}, s{p}, {oo}", f"s_addc_u32 s{sT1}, s{p + 1}, 0"); lo, hi = sT0, sT1
                s(f"v_writelane_b32 v{vX}, s{lo}, {i + 1}", f"v_writelane_b32 v{vY}, s{hi}, {i + 1}")
            s(f"s_mov_b64 exec, {(1 << (len(ent) + 1)) - 1}")
            s.vmem(f"global_load_dword a{aDUMMY}, v[{vX}:{vY}], off", None, cond=True)
            s("s_mov_b64 exec, -1")
            s(f"{L}:")
        s.mk_srd(X, 64, 0x200000)
        for m in range(16):
            s.vmem(f"buffer_load_dwordx4 {v(vRAW + 4 * m, 4)}, v{vU + 4}, {srd(X)}, s{sOFF} offen offset:{m * 64} {s.opt.get('xf', '')}", ('x', m // 4))
        s.stamp('.xi')
        s.mk_srd(WQ, 70, 0x400000, sT3)
        pf = s.opt.get('pf', 1)
        pff = s.opt.get('pff', '')
        if s.opt.get('cpf', 1):
            L = s.label('cpf')
            s(f"s_cmp_lg_u32 s{sW}, 3", f"s_cbranch_scc1 {L}")
            s(f"s_getpc_b64 s[{sT2}:{sT3}]")
            s("L_pcbase:")
            s(f"s_lshr_b32 s{sT0}, s2, 3", f"s_mul_i32 s{sT0}, s{sT0}, CPF_N", f"v_add_u32 v{vX}, s{sT0}, v{vL}", f"v_lshlrev_b32 v{vX}, 7, v{vX}",
              f"v_min_u32 v{vX}, L_end-L_pcbase, v{vX}", f"v_mov_b32 v{vY}, s{sT3}", f"v_add_co_u32 v{vX}, vcc, s{sT2}, v{vX}", f"v_addc_co_u32 v{vY}, vcc, 0, v{vY}, vcc")
            s(f"v_cmp_gt_u32 vcc, CPF_N, v{vL}", f"s_and_b64 exec, exec, vcc")
            s.vmem(f"global_load_dword a{aDUMMY}, v[{vX}:{vY}], off", None, cond=True)
            s("s_mov_b64 exec, -1")
            s(f"{L}:")

        def touch_wq():
            if not pf: return []
            return [[f"s_mov_b32 s{sB1}, {(k * (32 // s.pa) + 1) * 32 * 8192}",
                     ('vm', f"buffer_load_dword a{aDUMMY}, v{vTQ}, {srd(WQ)}, s{sB1} offen {s.opt.get('pfq', pff)}", None)] for k in range(-(-15 // (32 // s.pa)))]
        s(f"s_lshl_b32 s{sT1}, s{sG}, 7")
        s.mk_srd(W1, 76, 0x80000, sT1)
        s.mk_srd(W2, 78, 0x80000, sT1)
        s(f"s_lshl_b32 s{sT1}, s{sJ}, 7")
        s.mk_srd(W4, 82, 0x1c0000, sT1)
        s(f"s_lshl_b32 s{sRING}, s{sW}, 13", f"s_add_u32 s{sRING}, s{sRING}, {SLOT[0]}")
        s.d128(vE, 1024, True)
        def w12_dma(S, half, tag):
            it = []
            for k in range(2):
                it += [f"s_lshl_b32 s{sB0}, s{sW}, 16", f"s_add_u32 s{sB0}, s{sB0}, {(half * 8 + k) * 32768}"]
                it += s.dma4(vE, S, sB0, sRING, 32768 * (1 + half) + 4096 * k, tag)
            return it

        up = s.opt.get('w1up', 2)
        w1items = w12_dma(W1, 0, 'w1') + w12_dma(W1, 1, 'w1')
        for it in w1items[:7 * up]: s.item(it)
        w1items = w1items[7 * up:]
        s.d256(vD, 8192, True)
        lg = int(math.log2(s.pa))
        s(f"v_lshrrev_b32 v{vX}, {lg + 1}, v{vL}", f"v_lshlrev_b32 v{vX}, 18, v{vX}", f"v_bfe_u32 v{vY}, v{vL}, 1, {lg}" if lg else f"v_mov_b32 v{vY}, 0",
          f"s_lshl_b32 s{sT0}, s{sJJ}, {lg}", f"v_add_u32 v{vY}, s{sT0}, v{vY}", f"v_lshl_add_u32 v{vX}, v{vY}, 13, v{vX}", f"v_and_b32 v{vY}, 1, v{vL}",
          f"v_lshl_add_u32 v{vTQ}, v{vY}, 7, v{vX}")
        s(f"s_lshl_b32 s{sT0}, s{sG}, 19", f"s_add_u32 s{sT3}, s{sT0}, {1536 * 256}")
        s.mk_srd(KC, 66, 0x400000, sT3)
        s(f"s_sub_u32 s{sT3}, s{sT3}, 2048")
        s.mk_srd(VC, 68, 0x400000, sT3)
        s(f"s_lshl_b32 s{sT1}, s{sW}, 8", f"s_add_u32 s{sT3}, s{sT0}, s{sT1}")
        s.mk_srd(WO, 72, 0x400000, sT3)
        s(f"s_mul_i32 s{sT0}, s{sJ}, 448", f"s_lshl_b32 s{sT1}, s{sW}, 7", f"s_add_u32 s{sT3}, s{sT0}, s{sT1}")
        s.mk_srd(W3, 80, 0x1c0000, sT3)
        s.mk_srd(OUT, 84, 0x200000)
        s.mk_srd(DBG, 86, 256)
        s.mk_srd(WS, 88, 0x10000000)
        s(f"s_mov_b32 s{sONE2}, 0x3f803f80", f"s_mov_b32 s{sLO}, 0x00003f80", f"s_mov_b32 s{sHI}, 0x3f800000")
        s(f"s_lshl_b32 s{sKVM}, s{sW}, 12", f"s_mov_b32 s{sKV}, 0", f"s_mov_b32 s{sPASS}, 0")
        s(f"v_lshrrev_b32 v{vX}, 4, v{vL}", f"v_lshlrev_b32 v{vY}, 1, v{vX}", f"v_and_b32 v{vB}, 15, v{vL}", f"v_xor_b32 v{vB}, v{vB}, v{vY}",
          f"v_lshl_add_u32 v{vB}, v{vX}, 4, v{vB}", f"v_lshlrev_b32 v{vB}, 4, v{vB}")
        s(f"s_lshl_b32 s{sT0}, s{sTH}, 15", f"v_add_u32 v{vB2}, s{sT0}, v{vB}")
        s.t256(vT0, base_s=sRING)
        for nt in range(8): s(f"v_add_u32 v{vT1 + nt}, 0x10000, v{vT0 + nt}")
        s.t128(vS, ('s', sCH), base_imm=SLOT[1])
        vLW = vX1 + 7
        s(f"s_lshl_b32 s{sT0}, s{sW}, 14", f"v_add_u32 v{vLW}, s{sT0}, v{vB}", f"s_mov_b32 s{sINV}, {f2u(1.0 / 512)}")
        s(f"v_mov_b32 v{vX}, s{sONE2}", f"v_mov_b32 v{vY}, 0")
        for i in range(4): s(f"v_accvgpr_write_b32 a{aONE + i}, v{vX}")
        for i in (0, 1, 4, 5): s(f"v_accvgpr_write_b32 a{aSEL + i}, v{vY}")
        s(f"v_and_b32 v{vX}, 1, v{vL}", f"v_lshlrev_b32 v{vX}, 4, v{vX}", f"v_lshlrev_b32 v{vX}, v{vX}, s{sLO}" if False else f"v_mov_b32 v{vU}, s{sLO}",
          f"v_lshlrev_b32 v{vU}, v{vX}, v{vU}", f"v_lshrrev_b32 v{vX}, 4, v{vL}", f"v_bfe_u32 v{vY}, v{vL}, 2, 2", f"v_cmp_eq_u32 vcc, v{vX}, v{vY}", f"v_and_b32 v{vX}, 2, v{vL}",
          f"v_cndmask_b32 v{vU}, 0, v{vU}, vcc", f"v_cmp_eq_u32 vcc, 0, v{vX}", "s_nop 1", f"v_cndmask_b32 v{vY}, 0, v{vU}, vcc", f"v_cndmask_b32 v{vX}, v{vU}, 0, vcc" if False else f"v_sub_u32 v{vX}, v{vU}, v{vY}",
          f"v_accvgpr_write_b32 a{aSEL + 2}, v{vY}", f"v_accvgpr_write_b32 a{aSEL + 3}, v{vX}")

        def touch_kvw2(part, nparts):
            if not pf: return []
            nk = 32 * s.pa // nparts
            nw = 16 * s.pa // nparts
            L = s.label('tk')
            g = [f"v_lshlrev_b32 v{vTQ + 1}, 7, v{vL}", f"s_mul_i32 s{sB1}, s{sJJ}, {nk * nparts * 128}", f"v_cmp_gt_u32 vcc, {nk}, v{vL}",
                 f"s_add_u32 s{sB1}, s{sB1}, {part * nk * 128}", f"s_cmp_lg_u32 s{sW}, 0", f"v_cndmask_b32 v{vTQ + 1}, -1, v{vTQ + 1}, vcc", f"s_cbranch_scc1 {L}a",
                 ('vm', f"buffer_load_dword a{aDUMMY}, v{vTQ + 1}, {srd(KC)}, s{sB1} offen {pff}", None, True),
                 f"{L}a:", f"s_cmp_lg_u32 s{sW}, 1", f"s_cbranch_scc1 {L}b",
                 ('vm', f"buffer_load_dword a{aDUMMY}, v{vTQ + 1}, {srd(VC)}, s{sB1} offen offset:2048 {pff}", None, True),
                 f"{L}b:", f"s_cmp_lg_u32 s{sW}, 2", f"s_cbranch_scc1 {L}c", f"v_lshlrev_b32 v{vTQ + 1}, 10, v{vL}", f"s_mul_i32 s{sB1}, s{sJJ}, {nw * nparts * 1024}",
                 f"v_cmp_gt_u32 vcc, {nw}, v{vL}", f"s_add_u32 s{sB1}, s{sB1}, {part * nw * 1024}", f"v_cndmask_b32 v{vTQ + 1}, -1, v{vTQ + 1}, vcc",
                 ('vm', f"buffer_load_dword a{aDUMMY}, v{vTQ + 1}, {srd(W2)}, s{sB1} offen {pff}", None, True), f"{L}c:"]
            return [g]
        s.stamp('setup')
        back = w1items + [f"s_mov_b32 s{sOFF}, 0"] + s.dma4(vD, WQ, sOFF, sRING, 0, ('q', 'd', 0)) \
            + [f"s_mov_b32 s{sOFF}, {4 * 8192}"] + s.dma4(vD, WQ, sOFF, sRING, 4096, ('q', 'd', 0), n=3) + touch_wq()
        tkm = s.opt.get('tkm', 'q1')
        if tkm == 'ln': back += touch_kvw2(0, 1)
        s.bg(s.capture(lambda: s.layernorm(True, vLW, lambda k: ('x', k))), back, s.opt.get('lnlo', 0.05), s.opt.get('lnhi', 0.95))
        s.stamp('ln1')
        s.wait(vm='w1', lg=0)
        s.stamp('.w1')
        s("s_barrier")
        vR = 96
        s(f"v_and_b32 v{vX}, 15, v{vL}", f"v_lshlrev_b32 v{vX}, 3, v{vX}", f"v_add_u32 v{vX}, {SCR_R2}, v{vX}", f"s_lshl_b32 s{sT0}, s{sTH}, 8", f"v_add_u32 v{vY}, s{sT0}, v{vX}")
        for tt in range(4): s.lds(f"ds_read_b64 {v(vR + 2 * tt, 2)}, v{vX} offset:{tt * 128}", 'r2')
        for t in range(2): s.lds(f"ds_read_b64 {v(vR + 8 + 2 * t, 2)}, v{vY} offset:{t * 128}", 'r2')
        s(f"v_lshrrev_b32 v{vX}, 5, v{vL}", f"v_and_b32 v{vY}, 15, v{vL}", f"v_bfe_u32 v{vU}, v{vL}, 4, 1")
        s(f"s_lshl_b32 s{sT0}, s{sG}, 1", f"s_add_u32 s{sT0}, s{sT0}, s{sCH}", f"s_lshl_b32 s{sT0}, s{sT0}, 10", f"s_lshl_b32 s{sT1}, s{sTH}, 15", f"s_add_u32 s{sT0}, s{sT0}, s{sT1}")
        for n in range(2):
            s(f"v_add_u32 v{vU + 1}, {2 * n}, v{vX}", f"v_lshlrev_b32 v{vU + 4}, 1, v{vU + 1}", f"v_xor_b32 v{vU + 4}, v{vU + 4}, v{vY}",
              f"v_lshl_add_u32 v{vU + 4}, v{vU + 1}, 4, v{vU + 4}", f"v_lshlrev_b32 v{vU + 4}, 4, v{vU + 4}", f"v_lshl_add_u32 v{vU + 4}, v{vU}, 3, v{vU + 4}",
              f"v_add_u32 v{vU + 4}, s{sT0}, v{vU + 4}")
            for t in range(2):
                s.lds(f"ds_read_b64 {v(vX1 + 4 * t + 2 * n, 2)}, v{vU + 4} offset:{t * 16384}", 'xs')
        for m in range(3):
            for it in s.stype_reads(m, 'b1'): s.item(it)
        s.wait(lg='r2')
        s("s_barrier")
        s(f"s_add_u32 m0, s{sRING}, 4096", f"s_nop 0")
        s.vmem(f"buffer_load_dwordx4 v{vD + 3}, {srd(WQ)}, s{sOFF} offen offset:3072 lds", ('q', 'd', 0))
        s(f"s_mov_b32 s{sOFF}, {32 * 8192}")
        s.stype_resident('b1', extra=({2: touch_kvw2(0, 1)} if tkm == 'b1' else None))
        s.wait(lg=0)
        s("s_barrier")
        s.stamp('b1')
        s.wait(vm=('q', 'd', 0))
        A = s.p_reads_A(0, 0, 'q'); B = s.p_reads_B(0, 'q')
        for it in B + A: s.item(it)

        def b1_epi():
            for t in range(2): s.gelu_consts(vR + 12 + 4 * t, vR + 9 + 2 * t)
            s.gelu_pairs([(vACC + 8 * n + 4 * t + 2 * j, vR + 12 + 4 * t) for n in range(2) for t in range(2) for j in range(2)], vQ)
            for t in range(2):
                for n in range(2):
                    for j in range(2):
                        r = vACC + 8 * n + 4 * t + 2 * j
                        s(f"v_cvt_pk_bf16_f32 v{vQ + 16 + 4 * t + 2 * n + j}, v{r}, v{r + 1}")
            c = 1.4426950408889634 / math.sqrt(128)
            for tt in range(4): s(f"v_mul_f32 v{vACC + 2 * tt}, {f2u(c)}, v{vR + 2 * tt}")
            for i in range(8): s(f"v_lshlrev_b32 v{vQ + 2 * i}, 16, v{vX1 + i}", f"v_and_b32 v{vQ + 2 * i + 1}, 0xffff0000, v{vX1 + i}")
            for i in range(8): s(f"v_pk_mul_f32 {v(vQ + 2 * i, 2)}, {v(vQ + 2 * i, 2)}, {v(vR + 8 + 2 * (i >> 2), 2)} op_sel_hi:[1,0]")
            for i in range(8): s(f"v_cvt_pk_bf16_f32 v{vX1 + i}, v{vQ + 2 * i}, v{vQ + 2 * i + 1}")
        s.bg(s.capture(b1_epi), s.pstep_dma(WQ, 32 * 8192, 4 * 8192, 1, ('q', 'd', 1)), 0.0, 0.9)
        s(f"v_lshrrev_b32 v{vX}, 4, v{vL}", f"s_mov_b32 s{sT0}, {HPL}", f"v_mul_lo_u32 v{vX}, v{vX}, s{sT0}", f"v_and_b32 v{vY}, 15, v{vL}",
          f"v_lshl_add_u32 v{vX}, v{vY}, 4, v{vX}")
        s(f"s_lshl_b32 s{sT0}, s{sG}, 1", f"s_add_u32 s{sT0}, s{sT0}, s{sCH}", f"s_mul_i32 s{sT0}, s{sT0}, {4 * HPL}", f"s_lshl_b32 s{sT1}, s{sTB}, 10",
          f"s_add_u32 s{sT0}, s{sT0}, s{sT1}", f"s_lshl_b32 s{sT1}, s{sTH}, 9", f"s_add_u32 s{sT0}, s{sT0}, s{sT1}", f"s_add_u32 s{sT0}, s{sT0}, {WS_H + 128}")
        for t in range(2):
            s.vmem(f"buffer_store_dwordx4 {v(vQ + 16 + 4 * t, 4)}, v{vX}, {srd(WS)}, s{sT0} offen offset:{t * 256} sc1", 'hst')
        Lp = s.label('pad')
        s(f"s_lshl_b32 s{sFLG}, s{sTB}, 8", f"s_lshl_b32 s{sT0}, s{sG}, 2", f"s_add_u32 s{sFLG}, s{sFLG}, s{sT0}", f"s_add_u32 s{sFLG}, s{sFLG}, {WS_FLAG}")
        s(f"s_lshl_b32 s{sFLC}, s{sTC}, 8", f"s_lshl_b32 s{sT0}, s{sJ}, 2", f"s_add_u32 s{sFLC}, s{sFLC}, s{sT0}", f"s_add_u32 s{sFLC}, s{sFLC}, {WS_FLAG}")
        s(f"s_cmp_lg_u32 s{sW}, 0", f"s_cbranch_scc1 {Lp}")
        s(f"v_lshl_add_u32 v{vX}, v{vL}, 7, s{sFLG}", f"v_mov_b32 v{vY}, 0", "s_mov_b64 exec, 3")
        s.vmem(f"buffer_store_dword v{vY}, v{vX}, {srd(WS)}, 0 offen sc1", None, cond=True)
        s("s_mov_b64 exec, -1")
        s(f"s_add_u32 s{sT1}, s{sTB}, 1", f"s_and_b32 s{sT1}, s{sT1}, 30", f"s_cmp_lg_u32 s{sT1}, 0", f"s_cbranch_scc1 {Lp}")
        s(f"s_cmp_eq_u32 s{sTB}, 0", f"s_cselect_b32 s{sT1}, 0, {(8 + 2048) * 16}", f"s_mul_i32 s{sT0}, s{sG}, {8 * HPL}", f"s_add_u32 s{sT0}, s{sT0}, s{sT1}",
          f"s_add_u32 s{sT0}, s{sT0}, {WS_H}")
        s(f"v_lshrrev_b32 v{vX}, 3, v{vL}", f"s_mov_b32 s{sT1}, {HPL}", f"v_mul_lo_u32 v{vX}, v{vX}, s{sT1}", f"v_and_b32 v{vY}, 7, v{vL}",
          f"v_lshl_add_u32 v{vX}, v{vY}, 4, v{vX}")
        for i in range(4): s(f"v_mov_b32 v{vQ + 24 + i}, 0")
        s.vmem(f"buffer_store_dwordx4 {v(vQ + 24, 4)}, v{vX}, {srd(WS)}, s{sT0} offen sc1", None, cond=True)
        s(f"{Lp}:")
        s.bg(s.capture(lambda: s.d128(vE, 1024, False)), s.pstep_dma(WQ, 32 * 8192, 4 * 8192, 2, ('q', 'd', 2)))
        s.stamp('b1epi')

        def h_setup():
            return ["s_barrier",
                    f"v_lshrrev_b32 v{vX}, 4, v{vL}", f"v_lshlrev_b32 v{vY}, 1, v{vX}", f"v_and_b32 v{vU}, 15, v{vL}", f"v_xor_b32 v{vY}, v{vY}, v{vU}",
                    f"s_mov_b32 s{sT0}, {HPL}", f"v_mul_lo_u32 v{vX}, v{vX}, s{sT0}", f"v_lshl_add_u32 v{vU + 2}, v{vY}, 4, v{vX}",
                    f"s_lshl_b32 s{sHB}, s{sTB}, 10", f"s_lshl_b32 s{sT0}, s{sW}, 8", f"s_add_u32 s{sHB}, s{sHB}, s{sT0}", f"s_lshl_b32 s{sB1}, s{sW}, 14"]

        def h_dma(lo, hi):
            shift = [1, -1, 2, -2]
            return [[f"s_add_u32 m0, s{sB1}, {m * 1024}", f"s_add_u32 s{sB0}, s{sHB}, {WS_H + m * 4 * HPL + (8 - shift[m >> 2]) * 16}",
                     ('vm', f"buffer_load_dwordx4 v{vU + 2}, {srd(WS)}, s{sB0} offen sc1 lds", 'h')] for m in range(lo, hi)]

        def kv_offsets():
            it = [f"v_lshrrev_b32 v{vX}, 4, v{vL}", f"s_lshl_b32 s{sT0}, s{sW}, 3", f"v_add_u32 v{vX}, s{sT0}, v{vX}"]
            for p in range(2):
                it += [f"v_add_u32 v{vY}, {4 * p}, v{vX}", f"v_and_b32 v{vU}, 15, v{vY}", f"v_xor_b32 v{vU}, v{vU}, v{vL}", f"v_and_b32 v{vU}, 15, v{vU}",
                       f"v_lshlrev_b32 v{vU}, 4, v{vU}", f"v_lshl_add_u32 v{vE + p}, v{vX}, 8, v{vU}"]
                it += [f"v_and_b32 v{vU}, 7, v{vY}", f"v_lshlrev_b32 v{vU}, 1, v{vU}", f"v_xor_b32 v{vU}, v{vU}, v{vL}", f"v_and_b32 v{vU}, 15, v{vU}",
                       f"v_lshlrev_b32 v{vU}, 4, v{vU}", f"v_lshl_add_u32 v{vE + 2 + p}, v{vX}, 8, v{vU}"]
            return it

        def q_extra(st):
            ex = {'at': {}}
            if st == 2: ex['at'][9] = ["s_barrier", lambda: s.signal(0)]
            if st == 11: ex['at'][12] = s.poll_items(0, 'p1')
            k0 = s.opt.get('tk0', 8)
            if tkm == 'q4' and k0 <= st < k0 + 4: ex['at'][29] = touch_kvw2(st - k0, 4)
            if tkm == 'q1' and st == k0: ex['at'][11] = touch_kvw2(0, 1)
            if st == 13: ex['dma'] = w12_dma(W2, 0, 'w2')
            if st == 14:
                ex['dma'] = w12_dma(W2, 1, 'w2')
                ex['at'][9] = [lambda: s.poll_check(0, 'p1')]
            if st == 15: ex['dma'] = h_setup() + h_dma(0, 7)
            return ex
        s.ptype('q', WQ, 32 * 8192, 4 * 8192, q_extra)
        s.stamp('qproj')
        def q_epi():
            for it in kv_offsets(): s.item(it)
            for ds in range(4):
                for tt in range(4):
                    q = vQ + 16 * ds + 4 * tt
                    for u in range(2):
                        for j in range(2):
                            r = 128 + 16 * (2 * ds + u) + 4 * tt + 2 * j
                            s(f"v_pk_mul_f32 {v(r, 2)}, {v(r, 2)}, {v(vACC + 2 * tt, 2)} op_sel_hi:[1,0]")
                    for u in range(2):
                        for j in range(2):
                            r = 128 + 16 * (2 * ds + u) + 4 * tt + 2 * j
                            s(f"v_cvt_pk_bf16_f32 v{q + 2 * u + j}, v{r}, v{r + 1}")
                for tt in range(4):
                    q = vQ + 16 * ds + 4 * tt
                    for j in range(2): s(f"v_permlane32_swap_b32 v{q + j}, v{q + 2 + j}")
                for tt in range(4):
                    q = vQ + 16 * ds + 4 * tt
                    for j in range(2): s(f"v_permlane16_swap_b32 v{q + j}, v{q + 2 + j}")
        s.bg(s.capture(q_epi), h_dma(7, 16) + s.kv_dma(0), 0.0, 0.95)
        s.dump('q', [f"v{vQ + i}" for i in range(64)], 0)
        s.stamp('qepi')
        s.wait(vm='h')
        s("s_barrier")
        s.stamp('.b2wait')
        for m in range(3):
            for it in s.stype_reads(m, 'b2'): s.item(it)
        s.t256(vT0, base_imm=KVPOS[0] + 2048, kv=True)
        s(f"v_and_b32 v{vX}, 15, v{vL}", f"v_lshrrev_b32 v{vY}, 3, v{vX}", f"v_lshlrev_b32 v{vY}, 12, v{vY}", f"v_and_b32 v{vU}, 7, v{vX}",
          f"v_lshl_add_u32 v{vY}, v{vU}, 8, v{vY}", f"v_add_u32 v{vY}, {KVPOS[0]}, v{vY}", f"v_lshrrev_b32 v{vU}, 4, v{vL}")
        for ds in range(4):
            s(f"v_add_u32 v{vU + 1}, {4 * ds}, v{vU}", f"v_xor_b32 v{vU + 1}, v{vU + 1}, v{vX}", f"v_lshl_add_u32 v{vT1 + ds}, v{vU + 1}, 4, v{vY}")
        fx = {}
        spread(fx, s.kv_dma(1), 1, 20)
        s.stype_resident('b2', extra=fx)
        s.wait(vm=('kv', 1), lg=0)
        s("s_barrier")
        s.stamp('b2')
        for it in s.k_reads(0): s.item(it)
        for t in range(2):
            for n in range(2):
                for j in range(2):
                    xr = vX1 + 4 * t + 2 * n + j; r = vACC + 8 * n + 4 * t + 2 * j
                    s(f"v_dot2_f32_bf16 v{r}, v{xr}, s{sLO}, v{r}", f"v_dot2_f32_bf16 v{r + 1}, v{xr}, s{sHI}, v{r + 1}")
        for t in range(2):
            for n in range(2):
                for j in range(2):
                    xr = vX1 + 4 * t + 2 * n + j; r = vACC + 8 * n + 4 * t + 2 * j
                    s(f"v_cvt_pk_bf16_f32 v{xr}, v{r}, v{r + 1}")
        s(f"v_lshlrev_b32 v{vX}, 4, v{vL}")
        s(f"s_lshl_b32 s{sT0}, s{sTB}, 16", f"s_lshl_b32 s{sT1}, s{sTH}, 15", f"s_add_u32 s{sT0}, s{sT0}, s{sT1}", f"s_lshl_b32 s{sT1}, s{sG}, 11",
          f"s_add_u32 s{sT0}, s{sT0}, s{sT1}", f"s_lshl_b32 s{sT1}, s{sCH}, 10", f"s_add_u32 s{sT0}, s{sT0}, s{sT1}", f"s_add_u32 s{sT0}, s{sT0}, {WS_X1}")
        s.vmem(f"buffer_store_dwordx4 {v(vX1, 4)}, v{vX}, {srd(WS)}, s{sT0} offen sc1", 'x1st')
        s(f"s_add_u32 s{sT0}, s{sT0}, 16384")
        s.vmem(f"buffer_store_dwordx4 {v(vX1 + 4, 4)}, v{vX}, {srd(WS)}, s{sT0} offen sc1", 'x1st')
        def misc():
            s.d128(vD, 3584, False, oob_w3=True)
        s.bg(s.capture(misc), s.kv_dma(2))
        s(f"s_mov_b32 s{sOFF}, 0")

        s("L_attn:")
        s.wait(lg=0)
        Lsk, Lj = s.label('nomax'), s.label('join')
        s(f"s_cmp_lg_u32 s{sPASS}, 0", f"s_cbranch_scc1 {Lsk}")
        for m_ in s.qk_spine(lambda qt: "0"): s(m_)
        for it in s.k_reads(1): s.item(it)
        for qt in range(4):
            b = vS_ + 8 * qt; r = vACC + 4 * qt
            s(f"v_max3_f32 v{r}, v{b}, v{b + 1}, v{b + 2}", f"v_max3_f32 v{r + 1}, v{b + 3}, v{b + 4}, v{b + 5}", f"v_max3_f32 v{r}, v{r}, v{b + 6}, v{b + 7}",
              f"v_max_f32 v{r}, v{r}, v{r + 1}")
        for qt in range(4): s(f"v_mov_b32 v{vACC + 4 * qt + 1}, v{vACC + 4 * qt}")
        for qt in range(4): s(f"v_permlane32_swap_b32 v{vACC + 4 * qt}, v{vACC + 4 * qt + 1}")
        for qt in range(4): s(f"v_max_f32 v{vACC + 4 * qt}, v{vACC + 4 * qt}, v{vACC + 4 * qt + 1}")
        for qt in range(4): s(f"v_mov_b32 v{vACC + 4 * qt + 1}, v{vACC + 4 * qt}")
        for qt in range(4): s(f"v_permlane16_swap_b32 v{vACC + 4 * qt}, v{vACC + 4 * qt + 1}")
        for qt in range(4): s(f"v_max_f32 v{vACC + 4 * qt}, v{vACC + 4 * qt}, v{vACC + 4 * qt + 1}")
        for qt in range(4):
            r = vACC + 4 * qt
            s(f"v_sub_f32 v{r}, 0, v{r}")
            for i in range(1, 4): s(f"v_mov_b32 v{r + i}, v{r}")
        for qt in range(4):
            for i in range(8): s(f"v_add_f32 v{vS_ + 8 * qt + i}, v{vS_ + 8 * qt + i}, v{vACC + 4 * qt}")
        s(f"s_branch {Lj}")
        s(f"{Lsk}:")
        for m_ in s.qk_spine(lambda qt: v(vACC + 4 * qt, 4)): s(m_)
        for it in s.k_reads(1): s.item(it)
        s("s_nop 7")
        s(f"{Lj}:")
        pro = []
        for qt in range(3):
            E, C = s.job(0, qt)
            pro += E + C
        s.bg(pro, s.kv_dma(3))
        s.wait(lg=0)
        s.stamp('attn_pro')

        def x1_loads(lo, hi):
            it = []
            for m in range(lo, hi):
                if m % 4 == 0: it.append(f"s_add_u32 s{sT0}, s{sHB}, {m * 1024}")
                it.append(('vm', f"buffer_load_dwordx4 {v(vRAW + 4 * m, 4)}, v{vY}, {srd(WS)}, s{sT0} offen offset:{(m & 3) * 1024} sc1", ('x1', m // 4)))
            return it

        def w3_dma(ms):
            it = s.dma4(vD, W3, sOFF, sRING, ((ms + 1) % 3) * 32768, ('c', 'd', ms))
            it.append(f"s_add_u32 s{sOFF}, s{sOFF}, {32 * 3584}")
            it += s.dma4(vD, W3, sOFF, sRING, ((ms + 1) % 3) * 32768 + 4096, ('c', 'd', ms))
            it.append(f"s_add_u32 s{sOFF}, s{sOFF}, {32 * 3584}")
            return it

        def touch2(which):
            fl = pff
            pa = s.pa if which == 'wo' else s.cmap
            jj = sJJ if which == 'wo' else sJC
            if which == 'w4':
                n = 14 * pa
                it = [f"v_lshlrev_b32 v{vY}, 10, v{vL}", f"s_lshl_b32 s{sB1}, s{jj}, 2", f"s_add_u32 s{sB1}, s{sB1}, s{sW}", f"s_mul_i32 s{sB1}, s{sB1}, {n * 1024}"]
                out = []
                for k in range(-(-n // 64)):
                    if n - 64 * k < 64: it += [f"v_cmp_gt_u32 vcc, {n - 64 * k}, v{vL}", "s_nop 1", f"v_cndmask_b32 v{vY}, -1, v{vY}, vcc"]
                    it += [('vm', f"buffer_load_dword a{aDUMMY}, v{vY}, {srd(W4)}, s{sB1} offen {fl}", None), f"s_add_u32 s{sB1}, s{sB1}, 65536"]
                return it
            rows = 16 * pa
            RS, S, d = (3584, W3, 127) if which == 'w3' else (1024, WO, 128)
            it = [f"v_lshrrev_b32 v{vX}, 1, v{vL}", f"v_mul_u32_u24 v{vX}, {RS}, v{vX}", f"v_and_b32 v{vY}, 1, v{vL}", f"v_mul_u32_u24 v{vY}, {d}, v{vY}",
                  f"v_add_u32 v{vY}, v{vX}, v{vY}", f"v_and_b32 v{vY}, -4, v{vY}", f"s_mul_i32 s{sB1}, s{jj}, {rows * RS}"]
            if rows < 32: it += [f"v_cmp_gt_u32 vcc, {2 * rows}, v{vL}", "s_nop 1", f"v_cndmask_b32 v{vY}, -1, v{vY}, vcc"]
            for k in range(max(1, rows // 32)):
                it += [('vm', f"buffer_load_dword a{aDUMMY}, v{vY}, {srd(S)}, s{sB1} offen {fl}", None), f"s_add_u32 s{sB1}, s{sB1}, {32 * RS}"]
            return it

        P1 = s.opt.get('p1', "E VV E C E VV E C E VV E C E VV E C E VV E C E VV E C E VV E C E VV E C").split()
        P2 = s.opt.get('p2', "E - E C E B E C D E KK E C E D E C D E KK E C E D E C KK E D E C E KK E C D").split()
        assert len(P1) == 32 and len(P2) == 36

        def pattern(P, streams):
            fill = {}; pos = {k: [] for k in streams}
            idx = {k: 0 for k in streams}
            for g, tok in enumerate(P):
                for ch in tok:
                    if ch == '-': continue
                    if ch not in streams: continue
                    if idx[ch] < len(streams[ch]):
                        fill.setdefault(g, []).append(streams[ch][idx[ch]]); pos[ch].append(g); idx[ch] += 1
            left = {k: streams[k][idx[k]:] for k in streams}
            return fill, pos, left

        for t in range(16):
            V = s.v_reads(t)
            V = [(k, x, ('V', t, 'a' if i < 8 else 'b')) for i, (k, x, _) in enumerate(V)]
            EA, CA = s.job(t, 3)
            if t < 15:
                EB, CB = s.job(t + 1, 0)
                spine = s.qk_spine(lambda qt: v(vACC + 4 * qt, 4))
                fill, pos, left = pattern(P1, {'E': EA + EB, 'C': CA + CB, 'V': V})
                assert not any(left.values()), left
                for i in range(8): assert pos['C'][i] >= pos['E'][2 * i + 1]
                assert pos['C'][3] < 24 and pos['E'][8] >= 9
                fill.setdefault(-1, []).append(('wait', None, ('K', t + 1, 'a')) if t else ('wait', None, 0))
                if t: fill.setdefault(3, []).insert(0, ('wait', None, ('K', t + 1, 'b')))
                s.weave(spine, fill)
            else:
                spine, fill = s.ln_stats(lambda k: ('x1', k))
                f2, pos, left = pattern(P1, {'E': EA, 'C': CA, 'V': V})
                for g_, its in f2.items(): fill.setdefault(g_, []).extend(its)
                s.weave(spine, fill)
            spine = s.pv_spine(t)
            EE, CC = [], []
            if t < 15:
                for qt in (1, 2):
                    E_, C_ = s.job(t + 1, qt); EE += E_; CC += C_
            Kr = [(k, x, ('K', t + 2, 'a' if i < 4 else 'b')) for i, (k, x, _) in enumerate(s.k_reads(t + 2))] if t + 2 < 16 else []
            bar = []
            if t < 14:
                bar = [[('wait', ('kv', t + 2), None)] + ([] if s.opt.get('nobar') else ["s_barrier"]) + ([lambda: s.signal(1)] if t == 0 else [])]
            dm = s.kv_dma(t + 4) if t + 4 < 16 else []
            ex = []
            if pf and t in (1, 3, 5): ex += touch2({1: 'w3', 3: 'wo', 5: 'w4'}[t])
            if t == 10: ex += s.poll_items(1, 'p2')
            if t == 12:
                ex = [lambda: s.poll_check(1, 'p2'), f"v_lshlrev_b32 v{vY}, 4, v{vL}", f"s_lshl_b32 s{sHB}, s{sTC}, 16", f"s_lshl_b32 s{sT0}, s{sW}, 14",
                      f"s_add_u32 s{sHB}, s{sHB}, s{sT0}", f"s_add_u32 s{sHB}, s{sHB}, {WS_X1}"] + x1_loads(0, 8)
            if t == 13:
                ex = x1_loads(8, 16) + [f"s_lshl_b32 s{sT0}, s{sTC}, 16", f"s_lshl_b32 s{sB0}, s{sTH}, 15", f"s_add_u32 s{sT0}, s{sT0}, s{sB0}", f"s_lshl_b32 s{sB0}, s{sJ}, 11",
                                        f"s_add_u32 s{sT0}, s{sT0}, s{sB0}", f"s_lshl_b32 s{sB0}, s{sCH}, 10", f"s_add_u32 s{sT0}, s{sT0}, s{sB0}", f"s_add_u32 s{sT0}, s{sT0}, {WS_X1}",
                                        ('vm', f"buffer_load_dwordx4 {v(vX1, 4)}, v{vY}, {srd(WS)}, s{sT0} offen sc1", 'x1s'), f"s_add_u32 s{sT0}, s{sT0}, 16384",
                                        ('vm', f"buffer_load_dwordx4 {v(vX1 + 4, 4)}, v{vY}, {srd(WS)}, s{sT0} offen sc1", 'x1s')]
            if t == 14: ex = w3_dma(0)
            if t == 15: ex = w3_dma(1)
            fill, pos, left = pattern(P2, {'E': EE, 'C': CC, 'K': Kr, 'D': dm, 'B': bar})
            assert not any(left.values()), left
            for i in range(len(CC)): assert pos['C'][i] >= pos['E'][2 * i + 1]
            gb = [g for g, tok in enumerate(P2) if 'B' in tok][0]
            assert all(g > gb for g in pos['K'] + pos['D']) and gb >= 3
            fill.setdefault(-1, []).append(('wait', None, ('V', t, 'a')))
            fill.setdefault(3, []).insert(0, ('wait', None, ('V', t, 'b')))
            spread(fill, ex, gb + 1, 35)
            s.weave(spine, fill)
            s.stamp(f'.a{t}')
        s.stamp('attn')
        s("s_nop 7")
        for qt in range(4): s(f"v_accvgpr_read_b32 v{vS_ + qt}, a{128 + 4 * qt}")
        s(f"v_max3_f32 v{vX}, v{vS_}, v{vS_ + 1}, v{vS_ + 2}", f"v_max_f32 v{vX}, v{vX}, v{vS_ + 3}")
        s(f"s_mov_b32 s{sT0}, {f2u(2.0 ** s.thr)}")
        s(f"v_cmp_u_f32 s[{sT2}:{sT3}], v{vS_}, v{vS_ + 1}", f"v_cmp_u_f32 vcc, v{vS_ + 2}, v{vS_ + 3}", f"s_or_b64 s[{sT2}:{sT3}], s[{sT2}:{sT3}], vcc")
        s(f"v_cmp_lt_f32 vcc, s{sT0}, v{vX}", f"s_or_b64 vcc, vcc, s[{sT2}:{sT3}]", "s_cmp_lg_u64 vcc, 0", f"s_cselect_b32 s{sT0}, 1, 0")
        s(f"v_mov_b32 v{vX}, s{sT0}", f"s_lshl_b32 s{sT1}, s{sW}, 2", f"v_mov_b32 v{vU}, s{sT1}")
        s.lds(f"ds_write_b32 v{vU}, v{vX}", None)
        s.wait(lg=0)
        s("s_barrier")
        s(f"v_and_b32 v{vU}, 3, v{vL}", f"v_lshlrev_b32 v{vU}, 2, v{vU}")
        s.lds(f"ds_read_b32 v{vX}, v{vU}", None)
        s.wait(lg=0)
        s(f"v_cmp_ne_u32 vcc, 0, v{vX}", f"s_cmp_eq_u32 s{sPASS}, 0", "s_cselect_b64 s[58:59], -1, 0", "s_and_b64 vcc, vcc, s[58:59]", "s_cbranch_vccnz L_slow")
        def o_epi():
            for qt in range(4): s(f"v_rcp_f32 v{vS_ + 2 * qt + 8}, v{vS_ + qt}")
            for ds in range(4):
                for qt in range(4):
                    T = vP + 8 * (qt & 1)
                    for u in range(2):
                        for i in range(4): s(f"v_accvgpr_read_b32 v{T + 4 * u + i}, a{16 * (2 * ds + u) + 4 * qt + i}")
                    for i in range(4): s(f"v_pk_mul_f32 {v(T + 2 * i, 2)}, {v(T + 2 * i, 2)}, {v(vS_ + 2 * qt + 8, 2)} op_sel_hi:[1,0]")
                    for i in range(4): s(f"v_cvt_pk_bf16_f32 v{vQ + 16 * ds + 4 * qt + i}, v{T + 2 * i}, v{T + 2 * i + 1}")
        w32 = w3_dma(2)
        s.bg(s.capture(o_epi), w32[:-2], 0.0, 0.8)
        s.dump('o', [f"v{vQ + i}" for i in range(64)], 1)
        s("s_barrier")
        s.stamp('oepi')
        s(f"s_lshl_b32 s{sT0}, s{sW}, 14", f"v_add_u32 v{vB2}, s{sT0}, v{vB}")
        s.t128(vT0, [0, 1, 2, 3], base_s=sRING)
        for i in range(4): s(f"v_add_u32 v{vT1 + i}, 0x10000, v{vT0 + i}")
        s.layernorm(False, vB2, lambda k: ('x1', k))
        s.wait(vm=('c', 'd', 0), lg=0)
        s("s_barrier")
        s.stamp('ln3')

        def c_reads(ms):
            ab = 32 * (ms & 1); bb = 64 + 32 * (ms & 1)
            slot = (ms + 1) % 3
            base = vT1 if slot == 2 else vT0; off = 32768 if slot == 1 else 0
            A, B = [], []
            for ks in range(2):
                tg = ('c', ms, 'a' if ks == 0 else 'b')
                b_ = [('lds', f"ds_read_b128 {a(bb + 16 * ks + 4 * tt, 4)}, v{vB} offset:{(16 * tt + 2 * ms + ks) * 1024}", tg) for tt in range(4)]
                a_ = [('lds', f"ds_read_b64_tr_b16 {a(ab + 16 * ks + 4 * nt + 2 * jh, 2)}, v{base + nt} offset:{off + ks * 4096 + jh * 2048}", tg)
                      for nt in range(4) for jh in range(2)]
                A += [b_[0]] + a_[0:2] + b_[1:] + a_[2:]
            return A
        s(f"v_and_b32 v{vX}, 15, v{vL}", f"v_lshlrev_b32 v{vX}, 2, v{vX}", f"v_add_u32 v{vX}, {SCR_R2}, v{vX}")
        for tt in range(4): s.lds(f"ds_read_b32 v{vACC + 4 * tt + 3}, v{vX} offset:{tt * 64}", 'r3')
        for it in c_reads(0): s.item(it)
        s.wait(lg='r3')
        s("s_barrier")
        for it in w32[-2:]: s.item(it)
        s.d256(vE, 1024, False)
        for ms in range(8):
            ab = 32 * (ms & 1); bb = 64 + 32 * (ms & 1)
            spine = []
            for ks in range(2):
                for nt in range(4):
                    for tt in range(4):
                        d = v(128 + 16 * nt + 4 * tt, 4)
                        spine.append(mfma(d, a(ab + 16 * ks + 4 * nt, 4), a(bb + 16 * ks + 4 * tt, 4), "0" if (ms == 0 and ks == 0) else d))
            fill = {-1: [('wait', None, ('c', ms, 'a'))], 1: [('wait', None, 0)]}
            if ms + 3 < 8: dm = w3_dma(ms + 3)
            else:
                k = ms - 5
                dm = ([f"s_mov_b32 s{sOFF}, 0"] if k == 0 else [])
                dm += s.dma4(vE, WO, sOFF, sRING, k * 32768, ('o', 'd', k)) + [f"s_add_u32 s{sOFF}, s{sOFF}, {16 * 1024}"]
                dm += s.dma4(vE, WO, sOFF, sRING, k * 32768 + 4096, ('o', 'd', k)) + [f"s_add_u32 s{sOFF}, s{sOFF}, {16 * 1024}"]
            spread(fill, dm, 2, 8)
            if ms + 1 < 8:
                fill.setdefault(8, []).append(('wait', ('c', 'd', ms + 1), None))
                spread(fill, c_reads(ms + 1), 9, 26)
            s.weave(spine, fill)
        s("s_barrier")
        s.stamp('b3')
        s(f"s_lshl_b32 s{sT0}, s{sW}, 12", f"v_add_u32 v{vB2}, s{sT0}, v{vB}")
        ow = [('lds', f"ds_write_b128 v{vB2}, {v(vQ + 16 * ds + 4 * qt, 4)} offset:{qt * 16384 + ds * 1024}", 'ow') for ds in range(4) for qt in range(4)]
        for i in range(4): s(f"v_mov_b32 v{vD + i}, v{vE + i}")
        s.t256(vT0, base_s=sRING)
        for nt in range(8): s(f"v_add_u32 v{vT1 + nt}, 0x10000, v{vT0 + nt}")
        for tt in range(4): s.gelu_consts(vACC + 4 * tt, vACC + 4 * tt + 3)
        s(f"v_lshlrev_b32 v{vX}, 4, v{vL}")
        s(f"s_mul_i32 s{sHB}, s{sTC}, 229376", f"s_mul_i32 s{sT0}, s{sJ}, {7 * 4096}", f"s_add_u32 s{sHB}, s{sHB}, s{sT0}", f"s_lshl_b32 s{sT0}, s{sW}, 13",
          f"s_add_u32 s{sHB}, s{sHB}, s{sT0}", f"s_add_u32 s{sHB}, s{sHB}, {WS_H2}")
        Lw3 = s.label('w3skip')

        def c_epi(b):
            for tt in range(4):
                s.gelu_pairs([(128 + 16 * (2 * b + n) + 4 * tt + 2 * j, vACC + 4 * tt) for n in range(2) for j in range(2)], 192)
                for n in range(2):
                    for j in range(2):
                        r = 128 + 16 * (2 * b + n) + 4 * tt + 2 * j
                        s(f"v_cvt_pk_bf16_f32 v{208 + 16 * b + 4 * tt + 2 * n + j}, v{r}, v{r + 1}")
                s.vmem(f"buffer_store_dwordx4 {v(208 + 16 * b + 4 * tt, 4)}, v{vX}, {srd(WS)}, s{sHB} offen offset:{tt * 1024} {'' if s.opt.get('loc') else 'sc1'}", 'h2st', cond=(b == 1))
        s.bg(s.capture(lambda: c_epi(0)), ow + [('wait', ('o', 'd', 0), None)] + s.p_reads_A(0, 0, 'o'), 0.0, 0.98)
        s(f"s_cmp_eq_u32 s{sW}, 3", f"s_cbranch_scc1 {Lw3}", f"s_add_u32 s{sHB}, s{sHB}, 4096")
        c_epi(1)
        s(f"{Lw3}:")
        s.wait(lg=0)
        s("s_barrier")
        for it in s.p_reads_B(0, 'o'): s.item(it)
        s.d128(vE, 1024, False)
        s.stamp('b3epi')

        def b4_dma(c, with_h2=True, with_w4=True):
            slot = B4SLOT[c]if c < 5 else B4SLOT[c % 5]
            it = []
            if with_w4:
                it += [f"s_lshl_b32 s{sB0}, s{sW}, 15", f"s_add_u32 s{sB0}, s{sB0}, {c * 4 * 32768}", f"s_lshl_b32 s{sB1}, s{sW}, 13"]
                it += s.dma4(vE, W4, sB0, sB1, slot + 4096, ('y', c))
            if with_h2:
                it += [f"s_lshl_b32 s{sB1}, s{sW}, 13", f"s_add_u32 m0, s{sB1}, {slot}", f"s_add_u32 s{sB0}, s{sHB}, {c * 4 * 4096}"]
                for tt in range(4):
                    it.append(('vm', f"buffer_load_dwordx4 v{vB2}, {srd(WS)}, s{sB0} offen offset:{tt * 1024} sc1 lds", ('y', c)))
            return it

        def h2_touch(k, n):
            a_ = s.cmap
            per = 1792 // a_ // 4
            it = []
            if k == 0:
                it += [f"v_lshlrev_b32 v{vX}, 7, v{vL}", f"s_lshr_b32 s{sB1}, s2, 3", f"s_and_b32 s{sB1}, s{sB1}, {a_ - 1}", f"s_lshl_b32 s{sB1}, s{sB1}, 2",
                       f"s_add_u32 s{sB1}, s{sB1}, s{sW}", f"s_mul_i32 s{sB1}, s{sB1}, {per * 128}", f"s_mul_i32 s{sT0}, s{sTC}, 229376",
                       f"s_add_u32 s{sB1}, s{sB1}, s{sT0}", f"s_add_u32 s{sB1}, s{sB1}, {WS_H2}"]
            if k == n - 1 and per % 64:
                it += [f"v_cmp_gt_u32 vcc, {per % 64}, v{vL}", "s_nop 1", f"v_cndmask_b32 v{vX}, -1, v{vX}, vcc"]
            it += [('vm', f"buffer_load_dword a{aDUMMY}, v{vX}, {srd(WS)}, s{sB1} offen", None), f"s_add_u32 s{sB1}, s{sB1}, 8192"]
            return it
        h2t = s.opt.get('h2t', 0)
        sp3 = s.opt.get('sp3', 11)
        nt_ = -(-(1792 // s.cmap // 4) // 64)

        def o_extra(st):
            ex = {'at': {}}
            if st == 2: ex['at'][9] = ["s_barrier", lambda: s.signal(2)]
            if st == sp3:
                ex['at'][12] = s.poll_items(2, 'p3') + [f"v_lshlrev_b32 v{vB2}, 4, v{vL}", f"s_mul_i32 s{sHB}, s{sTC}, 229376", f"s_lshl_b32 s{sT0}, s{sW}, 12",
                                                        f"s_add_u32 s{sHB}, s{sHB}, s{sT0}", f"s_add_u32 s{sHB}, s{sHB}, {WS_H2}"]
            if st == sp3 + 2: ex['early'] = {1: [lambda: s.poll_check(2, 'p3')]}
            if h2t:
                steps = list(range(sp3 + 2, 13))
                for k in range(nt_):
                    if steps[k % len(steps)] == st: ex['at'].setdefault(26 + 2 * (k // len(steps)), []).extend(h2_touch(k, nt_))
            if st == 13: ex['dma'] = b4_dma(0)
            if st == 14: ex['dma'] = b4_dma(1)
            if st == 15: ex['dma'] = b4_dma(2) + ["s_barrier"]
            return ex
        s.ptype('o', WO, 32 * 1024, 16 * 1024, o_extra)
        s.stamp('oproj')
        def sp_cvt():
            s(f"v_lshlrev_b32 v{vD}, 4, v{vL}")
            s(f"s_and_b32 s{sKV}, s{sTB}, 15", f"s_lshl_b32 s{sKV}, s{sKV}, 13")
            s(f"s_lshl_b32 s{sOFF}, s{sTB}, 19", f"s_lshl_b32 s{sT0}, s{sW}, 17", f"s_add_u32 s{sOFF}, s{sOFF}, s{sT0}", f"s_lshl_b32 s{sT0}, s{sG}, 10",
              f"s_add_u32 s{sOFF}, s{sOFF}, s{sT0}", f"s_add_u32 s{sOFF}, s{sOFF}, {WS_SP}")
            for b in range(4):
                for tt in range(4):
                    for n in range(2):
                        for j in range(2):
                            r = 128 + 16 * (2 * b + n) + 4 * tt + 2 * j
                            s(f"v_cvt_pk_bf16_f32 v{vQ + 16 * b + 4 * tt + 2 * n + j}, v{r}, v{r + 1}")

        def sp_store(b, tt):
            if s.opt.get('spx', 1):
                return [f"s_xor_b32 s{sB0}, s{sKV}, {b * 32768 + tt * 8192}", f"s_add_u32 s{sB0}, s{sB0}, s{sOFF}",
                        ('vm', f"buffer_store_dwordx4 {v(vQ + 16 * b + 4 * tt, 4)}, v{vD}, {srd(WS)}, s{sB0} offen {'' if s.opt.get('loc') else 'sc1'}", 'spst')]
            return [f"s_add_u32 s{sB0}, s{sOFF}, {b * 32768 + tt * 8192}",
                    ('vm', f"buffer_store_dwordx4 {v(vQ + 16 * b + 4 * tt, 4)}, v{vD}, {srd(WS)}, s{sB0} offen {'' if s.opt.get('loc') else 'sc1'}", 'spst')]
        nsp = s.opt.get('nsp', 8)
        s.bg(s.capture(sp_cvt), b4_dma(3), 0.1, 1.0)
        s.t128(vT0, ('s', sCH), base_imm=4096)
        s(f"s_lshl_b32 s{sT0}, s{sTH}, 11", f"v_add_u32 v{vT0 + 2}, s{sT0}, v{vB2}")
        for wdw in (1, 2):
            for i in range(3): s(f"v_add_u32 v{vT0 + 4 * wdw + i}, {0x10000 * wdw}, v{vT0 + i}")
        s.stamp('spst')

        def y_reads(c, j):
            slot = B4SLOT[c % 5]
            base = vT0 + 4 * (slot >> 16); off = (slot & 0xffff) + j * 8192
            buf = 16 * j
            it = []
            for i in range(2):
                it.append(('lds', f"ds_read_b128 {a(buf + 8 + 4 * i, 4)}, v{base + 2} offset:{off + i * 1024}", ('y', c, j)))
                for jh in range(2):
                    it.append(('lds', f"ds_read_b64_tr_b16 {a(buf + 4 * i + 2 * jh, 2)}, v{base + i} offset:{off + jh * 2048}", ('y', c, j)))
            return it

        def sp_loads(t):
            it = []
            for src in range(8):
                if src % 4 == 0:
                    if True: it += [f"s_xor_b32 s{sT0}, s{sKVM}, {t * 8192}", f"s_add_u32 s{sT0}, s{sT0}, s{sOFF}", f"s_add_u32 s{sT0}, s{sT0}, {src * 1024}"]
                    else: it.append(f"s_add_u32 s{sT0}, s{sOFF}, {t * 8192 + src * 1024}")
                it.append(('vm', f"buffer_load_dwordx4 {v(vQ + 32 * t + 4 * src, 4)}, v{vB2}, {srd(WS)}, s{sT0} offen offset:{(src & 3) * 1024} sc1", ('sp', t)))
            return it
        T = 128

        def sp_sum():
            return [mfma(v(T + 8 * n + 4 * t, 4), a(aSEL + 2 - 2 * n, 4), v(vQ + 32 * t + 4 * src, 4), "0" if src == 0 else v(T + 8 * n + 4 * t, 4))
                    for src in range(8) for t in range(2) for n in range(2)]

        def y_mfma(c, j):
            out = []
            for n in range(2):
                for t in range(2):
                    d = v(vACC + 8 * n + 4 * t, 4)
                    out.append(mfma(d, a(16 * j + 4 * n, 4), a(16 * j + 8 + 4 * t, 4), "0" if (c == 0 and j == 0) else d))
            return out
        csig, cpoll, cearly, clate = s.opt.get('csig', 3), s.opt.get('cpoll', 8), s.opt.get('cearly', 9), s.opt.get('clate', 10)

        def sp_early():
            L = s.label('spe')
            s.wait(vm='p4')
            s(f"v_cmp_ne_u32 vcc, 1, v{vU + 7}", f"s_mov_b32 s{sPASS}, 0", f"s_cbranch_vccnz {L}", f"s_mov_b32 s{sPASS}, 1")
            for it in sp_loads(0) + sp_loads(1):
                s.item(it if isinstance(it, str) else ('vm', it[1], it[2], True))
            s(f"{L}:")

        def sp_late():
            L = s.label('spl')
            s(f"s_cmp_lg_u32 s{sPASS}, 0", f"s_cbranch_scc1 {L}")
            Lsp, Lok = s.label('spin'), s.label('ok')
            s(f"s_mov_b32 s{sSPIN}, 0", f"{Lsp}:")
            s.vmem(s.poll_load(3), None, cond=True)
            s("s_waitcnt vmcnt(0)")
            s(f"s_add_u32 s{sSPIN}, s{sSPIN}, 1", f"s_cmp_gt_u32 s{sSPIN}, 0x40000", f"s_cbranch_scc1 {Lok}")
            s(f"v_cmp_ne_u32 vcc, 1, v{vU + 7}", f"s_cbranch_vccnz {Lsp}", f"{Lok}:")
            for it in sp_loads(0) + sp_loads(1):
                s.item(it if isinstance(it, str) else ('vm', it[1], it[2], True))
            s(f"{L}:")

        for c in range(14):
            s.wait(vm=('y', c), lg=0)
            if c == csig: s.wait(vm='spst')
            s("s_barrier")
            if c == csig: s.signal(3)
            fill = {}
            if c == 0:
                for it in y_reads(c, 0) + y_reads(c, 1): s.item(it)
                spine = y_mfma(c, 0) + y_mfma(c, 1) + y_mfma(c, 2); o = 0
            else:
                spine = y_mfma(c - 1, 3) + y_mfma(c, 0) + y_mfma(c, 1) + y_mfma(c, 2); o = 4
                fill[-1] = y_reads(c, 0)[:3]
                spread(fill, y_reads(c, 0)[3:] + y_reads(c, 1), 0, 3)
            for j in range(3): fill.setdefault(o + 4 * j - 1, []).append(('wait', None, ('y', c, j)))
            spread(fill, y_reads(c, 2), o, o + 3)
            spread(fill, y_reads(c, 3), o + 4, o + 7)
            if c == 13:
                spine += y_mfma(c, 3); fill.setdefault(o + 11, []).append(('wait', None, ('y', c, 3)))
                spine += [mfma(v(vACC + 8 * n + 4 * t, 4), a(aSEL + 2 - 2 * n, 4), v(vX1 + 4 * t, 4), v(vACC + 8 * n + 4 * t, 4)) for n in range(2) for t in range(2)]
            last = len(spine) - 1
            its = [sp_store(k // 4, k % 4) for k in range(c * nsp, min(16, (c + 1) * nsp))]
            if c + 4 < 14: its += b4_dma(c + 4)
            spread(fill, its, 2, last)
            if c == cpoll:
                spread(fill, s.poll_items(3, 'p4') + [
                    f"s_lshl_b32 s{sOFF}, s{sTC}, 19", f"s_lshl_b32 s{sT0}, s{sJ}, 16", f"s_add_u32 s{sOFF}, s{sOFF}, s{sT0}", f"s_lshl_b32 s{sT0}, s{sCH}, 15",
                    f"s_add_u32 s{sOFF}, s{sOFF}, s{sT0}", f"s_lshl_b32 s{sT0}, s{sTH}, 14", f"s_add_u32 s{sOFF}, s{sOFF}, s{sT0}", f"s_add_u32 s{sOFF}, s{sOFF}, {WS_SP}",
                    f"s_and_b32 s{sKVM}, s{sOFF}, 0x1e000", f"s_andn2_b32 s{sOFF}, s{sOFF}, 0x1e000", f"s_and_b32 s{sT0}, s{sTC}, 15", f"s_lshl_b32 s{sT0}, s{sT0}, 13",
                    f"s_xor_b32 s{sKVM}, s{sKVM}, s{sT0}"], 0, 1)
            if c == cearly: fill.setdefault(last, []).append(sp_early)
            if c == clate: fill.setdefault(last, []).append(sp_late)
            if c == 10:
                its = [f"v_and_b32 v{vX}, 15, v{vL}", f"v_lshlrev_b32 v{vX}, 10, v{vX}", f"v_lshrrev_b32 v{vY}, 4, v{vL}", f"v_lshl_add_u32 v{vD}, v{vY}, 4, v{vX}",
                       f"s_lshl_b32 s{sHB}, s{sTC}, 16", f"s_lshl_b32 s{sT0}, s{sTH}, 15", f"s_add_u32 s{sHB}, s{sHB}, s{sT0}", f"s_lshl_b32 s{sT0}, s{sJ}, 7",
                       f"s_add_u32 s{sHB}, s{sHB}, s{sT0}", f"s_lshl_b32 s{sT0}, s{sCH}, 6", f"s_add_u32 s{sHB}, s{sHB}, s{sT0}", f"s_add_u32 s{sT1}, s{sHB}, 16384",
                       ('vm', f"buffer_load_dwordx4 {v(192, 4)}, v{vD}, {srd(X)}, s{sHB} offen", 'xf'),
                       ('vm', f"buffer_load_dwordx4 {v(196, 4)}, v{vD}, {srd(X)}, s{sT1} offen", 'xf')]
                spread(fill, its, 4, last)
            s.weave(spine, fill)
            s.stamp(f'.y{c}')
        s.stamp('b4')
        s(f"s_mov_b32 s{sC}, {f2u(-1.4426950408889634)}", f"s_mov_b32 s{sC + 1}, {f2u(-1.4426950408889634)}")
        U = 144
        s.wait(vm=0)
        ss = sp_sum()
        silu = [f"v_mul_f32 v{U + i}, s{sC}, v{vACC + i}" for i in range(16)] + [f"v_exp_f32 v{U + i}, v{U + i}" for i in range(16)] \
            + [f"v_add_f32 v{U + i}, 1.0, v{U + i}" for i in range(16)] + [f"v_rcp_f32 v{U + i}, v{U + i}" for i in range(16)] \
            + [f"v_mul_f32 v{vACC + i}, v{vACC + i}, v{U + i}" for i in range(16)]
        fill = {}
        spread(fill, silu[:64], 3, 31)
        s.weave(ss, fill)
        for it in silu[64:]: s(it)
        for i in range(8): s(f"v_pk_mul_f32 {v(T + 2 * i, 2)}, {v(T + 2 * i, 2)}, {v(vACC + 2 * i, 2)}")
        for t in range(2):
            for i in range(4): s(f"v_permlane32_swap_b32 v{T + 4 * t + i}, v{T + 8 + 4 * t + i}")
        for t in range(2):
            for i in range(4): s(f"v_permlane16_swap_b32 v{T + 4 * t + i}, v{T + 8 + 4 * t + i}")
        for t in range(2):
            for h in range(2):
                for j in range(2):
                    r = T + 8 * h + 4 * t + 2 * j; xr = 192 + 4 * t + 2 * h + j
                    s(f"v_dot2_f32_bf16 v{r}, v{xr}, s{sLO}, v{r}", f"v_dot2_f32_bf16 v{r + 1}, v{xr}, s{sHI}, v{r + 1}")
        for t in range(2):
            for h in range(2):
                for j in range(2):
                    r = T + 8 * h + 4 * t + 2 * j
                    s(f"v_cvt_pk_bf16_f32 v{200 + 4 * t + 2 * h + j}, v{r}, v{r + 1}")
        s.vmem(f"buffer_store_dwordx4 {v(200, 4)}, v{vD}, {srd(OUT)}, s{sHB} offen {s.opt.get('outf', '')}", None)
        s.vmem(f"buffer_store_dwordx4 {v(204, 4)}, v{vD}, {srd(OUT)}, s{sT1} offen {s.opt.get('outf', '')}", None)
        if s.stamps and s.opt.get('dbgstamp'):
            s.stamp('end')
            L = s.label('ds')
            s(f"s_cmp_lg_u32 s{sW}, 0", f"s_cbranch_scc1 {L}", "s_mov_b64 exec, 1", f"v_mov_b32 v{vX}, 0")
            s(f"v_accvgpr_read_b32 v{vU}, a{STAMP0 + 1}", f"v_accvgpr_read_b32 v{vY}, a{STAMP0 + 1 + 2 * (s.nstamp - 1)}", f"v_not_b32 v{vU + 1}, v{vU}")
            s.vmem(f"buffer_atomic_umax v{vY}, v{vX}, {srd(DBG)}, 0 offen offset:4 sc1", None)
            s.vmem(f"buffer_atomic_umax v{vU + 1}, v{vX}, {srd(DBG)}, 0 offen offset:12 sc1", None)
            s("s_waitcnt vmcnt(0)", f"s_cmp_lg_u32 s2, {s.opt['dbgstamp'] - 1}", f"s_cbranch_scc1 {L}")
            for i in range(1, min(7, s.nstamp)):
                s(f"v_accvgpr_read_b32 v{vY}, a{STAMP0 + 1 + 2 * i}", f"v_sub_u32 v{vY}, v{vY}, v{vU}")
                s.vmem(f"buffer_store_dword v{vY}, v{vX}, {srd(DBG)}, 0 offen offset:{12 + 8 * i} sc1", None)
                s("s_waitcnt vmcnt(0)")
            s(f"{L}:")
        elif s.stamps:
            s.stamp('end')
            s(f"s_lshl_b32 s{sT0}, s2, 2", f"s_add_u32 s{sT0}, s{sT0}, s{sW}", f"s_lshl_b32 s{sT0}, s{sT0}, 9", f"s_add_u32 s{sT0}, s{sT0}, {WS_STAMP}")
            s(f"v_mov_b32 v{vX}, 0", "s_mov_b64 exec, 1")
            for i in range(2 * s.nstamp):
                s(f"v_accvgpr_read_b32 v{vY}, a{STAMP0 + i}")
                s.vmem(f"buffer_store_dword v{vY}, v{vX}, {srd(WS)}, s{sT0} offen offset:{4 * i}", None)
                s("s_waitcnt vmcnt(0)")
        s("s_endpgm")

        s("L_slow:")
        s("s_waitcnt vmcnt(0) lgkmcnt(0)", "s_barrier")
        for i in range(16): s(f"v_mov_b32 v{vACC + i}, 0xff800000")
        s(f"s_mov_b32 s{sKV}, 0", f"s_mov_b32 s{sPASS}, 0")
        s("L_slow_loop:")
        s(f"s_add_u32 m0, s{sKVM}, {KVPOS[2]}", "s_nop 0")
        s(f"buffer_load_dwordx4 v{vE}, {srd(KC)}, s{sKV} offen lds", f"buffer_load_dwordx4 v{vE + 1}, {srd(KC)}, s{sKV} offen offset:1024 lds")
        s(f"s_add_u32 s{sKV}, s{sKV}, 8192", "s_waitcnt vmcnt(0)", "s_barrier")
        for it in s.k_reads(0): s(it[1])
        s("s_waitcnt lgkmcnt(0)", "s_barrier")
        for m_ in s.qk_spine(lambda qt: "0"): s(m_)
        s("s_nop 7")
        for qt in range(4):
            b = vS_ + 8 * qt; r = vACC + 4 * qt
            for i in range(4): s(f"v_max3_f32 v{r}, v{r}, v{b + 2 * i}, v{b + 2 * i + 1}")
        s(f"s_add_u32 s{sPASS}, s{sPASS}, 1", f"s_cmp_lt_u32 s{sPASS}, 16", "s_cbranch_scc1 L_slow_loop")
        for qt in range(4):
            r = vACC + 4 * qt
            s.xsum(r, r + 1, op="v_max_f32")
            s(f"v_sub_f32 v{r}, 0, v{r}")
            for i in range(1, 4): s(f"v_mov_b32 v{r + i}, v{r}")
        s(f"s_mov_b32 s{sKV}, 0", f"s_mov_b32 s{sOFF}, 0")
        for t in range(3):
            for it in s.kv_dma(t): s(it if isinstance(it, str) else it[1])
        s("s_waitcnt vmcnt(0)", "s_barrier")
        for it in s.k_reads(0): s(it[1])
        s("s_branch L_attn")
        s("L_end:", "s_endpgm")
        return s.text()


HEADER = """; Fused kernel: x + attention(LN(x)) * silu(mixer-MLP(LN(x))), one persistent workgroup per CU.
; @launch grid=(256,1,1) block=(256,1,1) lds=163840
.amdgcn_target "amdgcn-amd-amdhsa--gfx950"
.text
.globl {n}
.p2align 8
.type {n},@function
{n}:
"""
FOOTER = """.section .rodata,"a"
.p2align 6
.amdhsa_kernel {n}
  .amdhsa_next_free_vgpr 512
  .amdhsa_next_free_sgpr 102
  .amdhsa_accum_offset 256
  .amdhsa_group_segment_fixed_size 0
  .amdhsa_kernarg_size 104
  .amdhsa_user_sgpr_count 2
  .amdhsa_user_sgpr_kernarg_segment_ptr 1
  .amdhsa_system_sgpr_workgroup_id_x 1
  .amdhsa_float_denorm_mode_32 3
.end_amdhsa_kernel
"""


def generate(**kw):
    g = Gen(**kw)
    body = g.build()
    body = body.replace("CPF_N", str(kw.get('cpfn', 18)))
    return HEADER.format(n=NAME) + body + FOOTER.format(n=NAME), g


if __name__ == "__main__":
    import argparse
    ap = argparse.ArgumentParser()
    ap.add_argument("-o", default="k.s"); ap.add_argument("--amap", type=int, default=2)
    ap.add_argument("--opts", default="")
    ap.add_argument("--dumps", default=""); ap.add_argument("--stamps", action="store_true"); ap.add_argument("--thr", type=int, default=30)
    A_ = ap.parse_args()
    txt, g = generate(amap=A_.amap, dumps=[d for d in A_.dumps.split(",") if d], stamps=A_.stamps, thr_log2=A_.thr, **eval('dict(%s)' % A_.opts))
    open(A_.o, "w").write(txt)
    print("lines", txt.count("\n"), "pads", g.npad, "stamps", getattr(g, 'stamp_names', None))
```

```python
import math, struct
from emit import K, spread

NAME = "recurrent_scan__sliding_block_cached__mixer_s_mlp__prompt_kernel"

HPL = 33024
WS_H, WS_FLAG, WS_X1, WS_H2, WS_SP = 0, 0x300000, 0x400000, 0x800000, 0x1000000
WS_DUMP, WS_STAMP = 0x4000000, 0x8000000
SLOT = [65536, 98304, 131072]
SCR = 65536 + 3 * 8192 + 7 * 1024
KVPOS = [32768, 49152, 65536, 81920]
UNIT = [b + h * 4096 for b in (98304, 131072, 65536, 0, 32768) for h in (0, 1)]
sW, sTB, sG, sTH, sCH = 3, 4, 5, 6, 7
X, KC, VC, WQ, WO, W1, W2, W3, W4, OUT, DBG, WS = [8 + 4 * i for i in range(12)]
sT0, sT1, sT2, sT3 = 56, 57, 58, 59
sOFF, sRING, sKV, sKVM = 60, 61, 62, 63
sONE2, sLO, sHI, sINV = 64, 65, 66, 67
sC = 68
sHST, sHLD, sX1ST, sX1LD, sX1S, sH2ST, sH2LD, sSPST, sSPX, sSPLD, sSPY, sXF, sFLG, sFLC = range(76, 90)
sTC, sJ, sJJ, sJC, sB0, sB1, sPASS, sSPIN = range(94, 102)
vL16, vL, vB, vB2 = 0, 1, 2, 3
vT0, vT1 = 4, 12
vD, vE = 20, 24
vS = 28
vX, vY = 30, 31
vX1 = 32
vU, vH, vW4, vPA, vPV = 40, 41, 42, 46, 47
vACC = 48
vQ = 64
vR = 96
vEA = 116
vS_, vP, vRAW = 128, 160, 192
vT3 = 192
aONE, aSEL, STAMP0, aDUMMY = 208, 212, 218, 255


def srd(r): return f"s[{r}:{r + 3}]"
def v(b, n=1): return f"v{b}" if n == 1 else f"v[{b}:{b + n - 1}]"
def a(b, n=1): return f"a{b}" if n == 1 else f"a[{b}:{b + n - 1}]"
def mfma(d, A, B, C): return f"v_mfma_f32_16x16x32_bf16 {d}, {A}, {B}, {C}"
def f2u(x): return struct.unpack('<I', struct.pack('<f', x))[0]
def sel(n): return a(aSEL + 2 - 2 * n, 4)
def merge(fill, other):
    for g, its in other.items(): fill.setdefault(g, []).extend(its)


class Gen(K):
    def __init__(s, amap=2, dumps=(), stamps=False, thr_log2=30, only=None, **opt):
        super().__init__()
        s.amap = amap; s.dumps = set(dumps); s.stamps = stamps; s.nstamp = 0; s.thr = thr_log2; s.only = only; s.opt = opt
        s.stamp_names = []

    def stamp(s, name):
        if not s.stamps: return
        if s.only is None:
            if name[0] == '.': return
        elif name not in s.only: return
        i = s.nstamp; s.nstamp += 1
        assert i < 18
        s.stamp_names.append(name)
        s("s_memtime s[90:91]", "s_memrealtime s[92:93]", "s_waitcnt lgkmcnt(0)")
        s(f"v_accvgpr_write_b32 a{STAMP0 + 2 * i}, s90", f"v_accvgpr_write_b32 a{STAMP0 + 1 + 2 * i}, s92")

    def dump(s, name, regs, slot):
        if name not in s.dumps: return
        s("s_waitcnt vmcnt(0) lgkmcnt(0)", "s_nop 7", "s_nop 7")
        s(f"s_lshl_b32 s{sT0}, s{sTB}, 5", f"s_lshl_b32 s{sT1}, s{sG}, 2", f"s_add_u32 s{sT0}, s{sT0}, s{sT1}", f"s_add_u32 s{sT0}, s{sT0}, s{sW}")
        s(f"s_mul_i32 s{sT0}, s{sT0}, {len(regs) * 256}", f"s_add_u32 s{sT0}, s{sT0}, {WS_DUMP + slot * 0x1000000}")
        s(f"v_lshlrev_b32 v{vX}, 2, v{vL}")
        for r in regs:
            s(f"buffer_store_dword {r}, v{vX}, {srd(WS)}, s{sT0} offen", f"s_add_u32 s{sT0}, s{sT0}, 256", "s_waitcnt vmcnt(0)")

    def mk_srd(s, r, ptr, size, off=None):
        if off is None:
            s(f"s_mov_b32 s{r}, s{ptr}", f"s_mov_b32 s{r + 1}, s{ptr + 1}", f"s_mov_b32 s{r + 2}, {size}")
        else:
            s(f"s_add_u32 s{r}, s{ptr}, s{off}", f"s_addc_u32 s{r + 1}, s{ptr + 1}, 0", f"s_sub_u32 s{r + 2}, {size}, s{off}")
        s(f"s_mov_b32 s{r + 3}, 0x20000")

    def lin(s, dst, const, *terms):
        (r0, m0), rest = terms[0], terms[1:]
        mul = lambda d, r, m: f"s_lshl_b32 s{d}, s{r}, {int(math.log2(m))}" if m & (m - 1) == 0 else f"s_mul_i32 s{d}, s{r}, {m}"
        s(mul(dst, r0, m0))
        for r, m in rest: s(mul(sT0, r, m), f"s_add_u32 s{dst}, s{dst}, s{sT0}")
        if const: s(f"s_add_u32 s{dst}, s{dst}, {const}")

    def t256(s, dst, base_s=None, base_imm=0, kv=False):
        s(f"v_lshrrev_b32 v{vX}, 4, v{vL}", f"v_bfe_u32 v{vY}, v{vL}, 2, 2", f"v_and_b32 v{vU}, 1, v{vX}", f"v_lshl_add_u32 v{vU}, v{vU}, 2, v{vY}")
        if kv: s(f"v_lshrrev_b32 v{vX}, 1, v{vX}", f"v_lshlrev_b32 v{vX}, 12, v{vX}", f"v_lshl_add_u32 v{dst}, v{vU}, 8, v{vX}")
        else: s(f"v_lshl_add_u32 v{vX}, v{vX}, 2, v{vY}", f"v_lshlrev_b32 v{dst}, 8, v{vX}")
        s(f"v_and_b32 v{vY}, 3, v{vL}", f"v_lshl_add_u32 v{dst}, v{vY}, 3, v{dst}", f"v_lshl_add_u32 v{dst}, v{vU}, 5, v{dst}")
        if base_s is not None: s(f"v_add_u32 v{dst}, s{base_s}, v{dst}")
        if base_imm: s(f"v_add_u32 v{dst}, {base_imm}, v{dst}")
        for nt in range(1, 8): s(f"v_xor_b32 v{dst + nt}, {nt << 5}, v{dst}")

    def t128(s, dst, n, base_s=None, base_imm=0, pair_s=None):
        s(f"v_lshrrev_b32 v{vX}, 4, v{vL}", f"v_bfe_u32 v{vY}, v{vL}, 2, 2", f"v_lshl_add_u32 v{vU}, v{vX}, 2, v{vY}", f"v_lshlrev_b32 v{dst}, 7, v{vU}",
          f"v_bfe_u32 v{vU}, v{vU}, 1, 2", f"v_lshl_add_u32 v{dst}, v{vU}, 5, v{dst}", f"v_and_b32 v{vY}, 3, v{vL}", f"v_lshl_add_u32 v{dst}, v{vY}, 3, v{dst}")
        if base_s is not None: s(f"v_add_u32 v{dst}, s{base_s}, v{dst}")
        if base_imm: s(f"v_add_u32 v{dst}, {base_imm}, v{dst}")
        if pair_s is not None: s(f"s_lshl_b32 s{sT0}, s{pair_s}, 6", f"v_xor_b32 v{dst}, s{sT0}, v{dst}")
        for nt in range(1, n): s(f"v_xor_b32 v{dst + nt}, {nt << 5}, v{dst}")

    def d256(s, dst, RS, natural):
        s(f"v_lshrrev_b32 v{vX}, 4, v{vL}", f"v_lshlrev_b32 v{vY}, 5, v{vX}", f"v_and_b32 v{vU}, 0xf0, v{vL16}", f"v_xor_b32 v{vY}, v{vY}, v{vU}",
          f"v_mul_u32_u24 v{vX}, {RS}, v{vX}", f"v_add_u32 v{dst}, v{vX}, v{vY}", f"v_xor_b32 v{vY}, 0x80, v{vY}", f"v_add_u32 v{vX}, v{vX}, v{vY}")
        ro = lambda p: (8 if natural else 4) * p * RS - 1024 * p
        s(f"v_add_u32 v{dst + 1}, {ro(1)}, v{vX}", f"v_add_u32 v{dst + 2}, {ro(2)}, v{dst}", f"v_add_u32 v{dst + 3}, {ro(3)}, v{vX}")

    def d128(s, dst, RS, natural, oob_w3=False):
        s(f"v_lshrrev_b32 v{vX}, 3, v{vL}")
        if natural: s(f"v_lshrrev_b32 v{vY}, 2, v{vX}", f"v_and_b32 v{vX}, 3, v{vX}", f"v_lshl_add_u32 v{vX}, v{vY}, 3, v{vX}")
        s(f"v_mul_u32_u24 v{vX}, {RS}, v{vX}", f"v_lshrrev_b32 v{vY}, 4, v{vL}", f"v_lshlrev_b32 v{vY}, 5, v{vY}", f"v_and_b32 v{vU}, 0x70, v{vL16}", f"v_xor_b32 v{vY}, v{vY}, v{vU}",
          f"v_add_u32 v{dst}, v{vX}, v{vY}")
        if oob_w3:
            s(f"s_cmp_eq_u32 s{sW}, 3", f"s_cselect_b32 s{sT0}, 23, 31", f"v_and_b32 v{vY}, 64, v{vY}", f"v_lshlrev_b32 v{vY}, s{sT0}, v{vY}", f"v_add_u32 v{dst}, v{dst}, v{vY}")
        for q in range(1, 4):
            ro = ((16 * (q & 1) + 4 * (q >> 1)) if natural else 8 * q) * RS - 1024 * q
            s(f"v_add_u32 v{dst + q}, {ro}, v{dst}")

    def dma4(s, vo, S, soff, m0s, m0imm, tag, n=4):
        return [f"s_add_u32 m0, s{m0s}, {m0imm}"] + [('vm', f"buffer_load_dwordx4 v{vo + p}, {srd(S)}, s{soff} offen offset:{1024 * p} lds", tag) for p in range(n)]

    def pstep_dma(s, vo, S, step_bytes, half_bytes, slot, tag):
        return s.dma4(vo, S, sOFF, sRING, slot * 32768, tag) + [f"s_add_u32 s{sOFF}, s{sOFF}, {half_bytes}"] \
            + s.dma4(vo, S, sOFF, sRING, slot * 32768 + 4096, tag) + [f"s_add_u32 s{sOFF}, s{sOFF}, {step_bytes - half_bytes}"]

    def w12_dma(s, S, half, tag):
        it = []
        for k in range(2):
            it += [f"s_lshl_b32 s{sB0}, s{sW}, 16", f"s_add_u32 s{sB0}, s{sB0}, {(half * 8 + k) * 32768}"] + s.dma4(vE, S, sB0, sRING, 32768 * (1 + half) + 4096 * k, tag)
        return it

    def kv_dma(s, t):
        ld = lambda i, S: ('vm', f"buffer_load_dwordx4 v{vE + i}, {srd(S)}, s{sKV} offen offset:{1024 * i} lds", ('kv', t))
        return [f"s_add_u32 m0, s{sKVM}, {KVPOS[(t + 2) & 3]}", ld(0, KC), ld(1, KC), ld(2, VC), ld(3, VC), f"s_add_u32 s{sKV}, s{sKV}, 8192"]

    def signal(s, field):
        L = s.label('sig')
        s(f"s_or_b32 s{sT0}, s{sW}, s{sPASS}" if field == 1 else f"s_mov_b32 s{sT0}, s{sW}", f"s_cmp_lg_u32 s{sT0}, 0", f"s_cbranch_scc1 {L}")
        if field < 2:
            s(f"s_lshl_b32 s{sT0}, s{sTB}, 3", f"v_mov_b32 v{vX}, s{sT0}", f"v_mov_b32 v{vY}, {1 << (8 * field)}", "s_mov_b64 exec, 1")
            s.vmem(f"buffer_atomic_add v{vY}, v{vX}, {srd(DBG)}, 0 offen sc1", None, cond=True)
        else:
            s(f"v_mov_b32 v{vX}, s{sFLC if field == 2 else sFLG}", f"v_mov_b32 v{vY}, 1", "s_mov_b64 exec, 1")
            s.vmem(f"buffer_store_dword v{vY}, v{vX}, {srd(WS)}, 0 offen offset:{(field - 2) * 128} sc1", None, cond=True)
        s("s_mov_b64 exec, -1", f"{L}:")

    def poll_load(s, field):
        if field < 2: return f"buffer_load_dword v{vPV}, v{vPA}, {srd(DBG)}, 0 offen sc1"
        return f"buffer_load_dword v{vPV}, v{vPA}, {srd(WS)}, 0 offen offset:{(field - 2) * 128} sc1"

    def poll_items(s, field, tag):
        if field == 0:
            it = [f"v_min_u32 v{vPA}, 2, v{vL}", f"v_add_u32 v{vPA}, s{sTB}, v{vPA}", f"v_subrev_u32 v{vPA}, 1, v{vPA}",
                  f"v_max_i32 v{vPA}, 0, v{vPA}", f"v_min_i32 v{vPA}, 31, v{vPA}", f"v_lshlrev_b32 v{vPA}, 3, v{vPA}"]
        elif field == 1: it = [f"s_lshl_b32 s{sT0}, s{sTC}, 3", f"v_mov_b32 v{vPA}, s{sT0}"]
        else: it = [f"s_andn2_b32 s{sT0}, s{sFLC}, 31", f"v_and_b32 v{vPA}, 7, v{vL}", f"v_lshl_add_u32 v{vPA}, v{vPA}, 2, s{sT0}"]
        return it + [('vm', s.poll_load(field), tag)]

    def poll_test(s, field):
        if field < 2: return [f"v_bfe_u32 v{vPV}, v{vPV}, {8 * field}, 8", f"v_cmp_gt_u32 vcc, 8, v{vPV}"]
        return [f"v_cmp_ne_u32 vcc, 1, v{vPV}"]

    def spin(s, field):
        Lsp, Lok = s.label('spin'), s.label('ok')
        s(f"s_mov_b32 s{sSPIN}, 0", f"{Lsp}:")
        s.vmem(s.poll_load(field), None, cond=True)
        s("s_waitcnt vmcnt(0)", f"s_add_u32 s{sSPIN}, s{sSPIN}, 1", f"s_cmp_gt_u32 s{sSPIN}, 0x40000", f"s_cbranch_scc1 {Lok}")
        s(*s.poll_test(field)); s(f"s_cbranch_vccnz {Lsp}", f"{Lok}:")

    def poll_check(s, field, tag):
        L = s.label('rdy')
        s.wait(vm=tag)
        s(*s.poll_test(field)); s(f"s_cbranch_vccz {L}")
        s.spin(field)
        s(f"{L}:")

    def xred(s, r, tmp, op):
        return [f"v_mov_b32 v{tmp}, v{r}", f"v_permlane32_swap_b32 v{r}, v{tmp}", f"{op} v{r}, v{r}, v{tmp}",
                f"v_mov_b32 v{tmp}, v{r}", f"v_permlane16_swap_b32 v{r}, v{tmp}", f"{op} v{r}, v{r}, v{tmp}"]

    def ln_stats(s, tagf):
        SUM, SQ = vACC, vACC + 4
        sp, fl = [], {}
        for m in range(16):
            R = v(vRAW + 4 * m, 4)
            if m % 4 == 0: fl[2 * m - 1] = [('wait', tagf(m // 4), None)]
            sp += [mfma(v(SUM, 4), a(aONE, 4), R, "0" if m == 0 else v(SUM, 4)), mfma(v(SQ, 4), R, R, "0" if m == 0 else v(SQ, 4))]
        return sp, fl

    def ln_centre(s, first, wr_addr):
        SUM, SQ, NEG = vACC, vACC + 4, vACC + 8
        s(f"v_and_b32 v{vX}, 3, v{vL}", f"v_cmp_eq_u32 s[{sT0}:{sT0 + 1}], 1, v{vX}", f"v_cmp_eq_u32 s[{sT2}:{sT2 + 1}], 2, v{vX}", f"v_cmp_eq_u32 vcc, 3, v{vX}",
          f"v_lshrrev_b32 v{vX}, 4, v{vL}", f"v_bfe_u32 v{vY}, v{vL}, 2, 2")
        for i in range(4): s(f"v_mul_f32 v{NEG + i}, {f2u(-1.0 / 512)}, v{SUM + i}")
        stat = [f"v_cndmask_b32 v{SQ}, v{SQ}, v{SQ + 1}, s[{sT0}:{sT0 + 1}]", f"v_cndmask_b32 v{SQ}, v{SQ}, v{SQ + 2}, s[{sT2}:{sT2 + 1}]",
                f"v_cndmask_b32 v{SQ}, v{SQ}, v{SQ + 3}, vcc", f"v_cmp_eq_u32 vcc, v{vX}, v{vY}", f"v_mul_f32 v{SUM + 1}, v{NEG}, v{NEG}", f"v_and_b32 v{vX}, 15, v{vL}",
                f"v_cndmask_b32 v{SQ}, 0, v{SQ}, vcc"]
        stat += s.xred(SQ, SQ + 1, "v_add_f32")
        stat += [f"v_fma_f32 v{SQ}, v{SQ}, s{sINV}, -v{SUM + 1}", f"v_max_f32 v{SQ}, 0, v{SQ}", f"v_add_f32 v{SQ + 1}, {f2u(1e-5)}, v{SQ}", f"v_rsq_f32 v{SUM}, v{SQ + 1}",
                 f"s_lshl_b32 s{sT0}, s{sW}, {7 if first else 6}", f"s_add_u32 s{sT0}, s{sT0}, {SCR}", f"v_lshl_add_u32 v{vX}, v{vX}, {3 if first else 2}, s{sT0}"]
        if first:
            stat += [f"v_mul_f32 v{SQ}, v{SQ}, v{SUM}", f"v_mul_f32 v{SQ}, v{SQ}, v{SUM}", f"v_add_f32 v{SQ}, {f2u(1e-5)}, v{SQ}", f"v_rsq_f32 v{SQ}, v{SQ}", "s_nop 0",
                     f"v_mul_f32 v{SUM + 1}, v{SQ}, v{SUM}", ('lds', f"ds_write_b64 v{vX}, {v(SUM, 2)}", 'rw')]
        else:
            stat += [('lds', f"ds_write_b32 v{vX}, v{SUM}", 'rw')]
        spine = [mfma(v(128 + 8 * (m & 3) + 4 * u, 4), sel(u), v(vRAW + 4 * m, 4), v(NEG, 4)) for m in range(16) for u in range(2)]

        def out(m):
            t = 128 + 8 * (m & 3); p = 160 + 4 * (m & 3)
            return [f"v_cvt_pk_bf16_f32 v{p + i}, v{t + 2 * i}, v{t + 2 * i + 1}" for i in range(4)] + [('lds', f"ds_write_b128 v{wr_addr}, {v(p, 4)} offset:{m * 1024}", 'lnw')]
        fill = {}
        for m in range(14):
            o = out(m)
            fill.setdefault(2 * m + 4, []).extend(o[:2]); fill.setdefault(2 * m + 5, []).extend(o[2:])
        spread(fill, stat, 0, 27)
        s.weave(spine, fill)
        for it in out(14) + out(15): s.item(it)

    def gelu_pairs(s, regs, tmp):
        for b in range(0, len(regs), 4):
            grp = list(zip(regs[b:b + 4], [tmp + 2 * i for i in range(4)]))
            for (r, c), t in grp: s(f"v_pk_mul_f32 {v(t, 2)}, {v(r, 2)}, {v(r, 2)}")
            for (r, c), t in grp: s(f"v_pk_fma_f32 {v(t, 2)}, {v(t, 2)}, {v(c, 2)}, {v(c, 2)} op_sel:[0,0,1] op_sel_hi:[1,0,1]")
            for (r, c), t in grp: s(f"v_pk_mul_f32 {v(t, 2)}, {v(t, 2)}, {v(r, 2)}")
            for (r, c), t in grp: s(f"v_exp_f32 v{t}, v{t}", f"v_exp_f32 v{t + 1}, v{t + 1}")
            for (r, c), t in grp: s(f"v_pk_fma_f32 {v(t, 2)}, {v(t, 2)}, {v(c + 2, 2)}, {v(c + 2, 2)} op_sel_hi:[1,0,0]")
            for (r, c), t in grp: s(f"v_rcp_f32 v{t}, v{t}", f"v_rcp_f32 v{t + 1}, v{t + 1}")
            for (r, c), t in grp: s(f"v_pk_mul_f32 {v(r, 2)}, {v(t, 2)}, {v(r, 2)}")

    def gelu_consts(s, dst, r):
        kk = 2 * 0.7978845608028654 * 1.4426950408889634
        return [f"v_mul_f32 v{dst}, v{r}, v{r}", f"v_mul_f32 v{dst + 1}, {f2u(-kk)}, v{r}", f"v_rcp_f32 v{dst + 2}, v{r}",
                f"v_mul_f32 v{dst}, v{dst}, v{dst + 1}", f"v_mul_f32 v{dst}, {f2u(0.044715)}, v{dst}"]

    def stype_reads(s, m, tagp):
        buf = 16 * (m & 3)
        B = [('lds', f"ds_read_b128 {a(buf + 8 + 4 * i, 4)}, v{vB2} offset:{(16 * i + m) * 1024}", (tagp, m)) for i in range(2)]
        A = [[('lds', f"ds_read_b64_tr_b16 {a(buf + 4 * i + 2 * jh, 2)}, v{vS + i} offset:{m * 4096 + jh * 2048}", (tagp, m)) for jh in range(2)] for i in range(2)]
        return [B, A[0], A[1]]

    def stype(s, tagp, extra):
        spine = []; fill = {}
        for m in range(16):
            buf = 16 * (m & 3)
            for n in range(2):
                for t in range(2):
                    d = v(vACC + 8 * n + 4 * t, 4)
                    spine.append(mfma(d, a(buf + 4 * n, 4), a(buf + 8 + 4 * t, 4), "0" if m == 0 else d))
            if m + 3 < 16:
                for i, grp in enumerate(s.stype_reads(m + 3, tagp)): fill.setdefault(4 * m + i, []).extend(grp)
            fill.setdefault(4 * m - 1, []).append(('wait', None, (tagp, m)))
        merge(fill, extra)
        s.weave(spine, fill)

    def p_reads_A(s, st, tagp):
        buf = 32 * (st & 1); slot = st % 3
        base = vT1 if slot == 2 else vT0; off = 32768 if slot == 1 else 0
        return [[('lds', f"ds_read_b64_tr_b16 {a(buf + 4 * nt + 2 * jh, 2)}, v{base + nt} offset:{off + jh * 4096}", (tagp, st, 'a' if nt < 4 else 'b')) for jh in range(2)]
                for nt in range(8)]

    def p_reads_B(s, st, tagp):
        buf = 64 + 16 * (st & 1)
        B = [('lds', f"ds_read_b128 {a(buf + 4 * tt, 4)}, v{vB} offset:{(16 * tt + st) * 1024}", (tagp, st, 'a')) for tt in range(4)]
        return [B[:2], B[2:]]

    def ptype(s, tagp, vo, S, step_bytes, half_bytes, extra):
        for st in range(16):
            ab = 32 * (st & 1); bb = 64 + 16 * (st & 1)
            spine = [mfma(v(128 + 16 * nt + 4 * tt, 4), a(ab + 4 * nt, 4), a(bb + 4 * tt, 4), "0" if st == 0 else v(128 + 16 * nt + 4 * tt, 4))
                     for nt in range(8) for tt in range(4)]
            ex = extra(st)
            fill = {-1: [('wait', None, (tagp, st, 'a'))], 1: [('wait', None, 0)]}
            merge(fill, ex.get('early', {}))
            dm = s.pstep_dma(vo, S, step_bytes, half_bytes, st % 3, (tagp, 'd', st + 3)) if st + 3 < 16 else ex.get('dma', [])
            if st + 1 < 16:
                spread(fill, dm, 2, 9)
                fill.setdefault(9, []).append(('wait', (tagp, 'd', st + 1), None))
                A = s.p_reads_A(st + 1, tagp); B = s.p_reads_B(st + 1, tagp)
                spread(fill, [B[0], A[0], B[1]] + A[1:], 10, 26)
            else:
                spread(fill, dm, 2, 31)
            merge(fill, ex.get('at', {}))
            if ex.get('alu'): spread(fill, ex['alu'], *ex.get('alug', (2, 31)))
            s.weave(spine, fill)
            s.stamp(f'.{tagp}{st}')

    def k_reads(s, t):
        off = KVPOS[(t + 2) & 3] - KVPOS[0]
        return [('lds', f"ds_read_b128 {a(144 + 16 * u + 4 * ds, 4)}, v{vT1 + ds} offset:{off + u * 8192}", ('K', t, 'ab'[u])) for u in range(2) for ds in range(4)]

    def v_reads(s, t):
        off = KVPOS[(t + 2) & 3] - KVPOS[0]
        return [('lds', f"ds_read_b64_tr_b16 {a(176 + 4 * dt + 2 * jh, 2)}, v{vT0 + dt} offset:{off + jh * 8192}", ('V', t, 'ab'[dt >> 2])) for dt in range(8) for jh in range(2)]

    def qk_spine(s, cinit):
        return [mfma(v(vS_ + 8 * qt + 4 * u, 4), a(144 + 16 * u + 4 * ds, 4), v(vQ + 16 * ds + 4 * qt, 4), v(vS_ + 8 * qt + 4 * u, 4) if ds else cinit(qt))
                for qt in range(4) for u in range(2) for ds in range(4)]

    def pv_spine(s, t, l_first=False):
        pv, L = [], []
        for qt in range(4):
            p = v(vP + 16 * (t & 1) + 4 * qt, 4)
            pv.append([mfma(a(16 * dt + 4 * qt, 4), a(176 + 4 * dt, 4), p, "0" if t == 0 else a(16 * dt + 4 * qt, 4)) for dt in range(8)])
            L.append(mfma(a(128 + 4 * qt, 4), a(aONE, 4), p, "0" if t == 0 else a(128 + 4 * qt, 4)))
        if l_first: return L + sum(pv, [])
        return sum([pv[qt] + [L[qt]] for qt in range(4)], [])

    def job(s, t, qt):
        b = vS_ + 8 * qt
        return ([f"v_exp_f32 v{b + i}, v{b + i}" for i in range(8)],
                [f"v_cvt_pk_bf16_f32 v{vP + 16 * (t & 1) + 4 * qt + i}, v{b + 2 * i}, v{b + 2 * i + 1}" for i in range(4)])

    def build(s):
        o = s.opt
        pa, cmap, pf = o.get('pa', s.amap), o.get('cmap', 4), o.get('pf', 1)
        s("s_cmp_ge_u32 s2, 256", "s_cbranch_scc1 L_end")
        s.stamp('start')
        s("s_load_dwordx16 s[64:79], s[0:1], 0", "s_load_dwordx8 s[80:87], s[0:1], 64", "s_load_dwordx2 s[88:89], s[0:1], 96")
        s(f"v_and_b32 v{vL}, 63, v0", f"v_lshrrev_b32 v{vX}, 6, v0", f"v_readfirstlane_b32 s{sW}, v{vX}")
        if o.get('cpf', 1):
            L = s.label('cpf')
            s(f"s_cmp_lt_u32 s{sW}, 3", f"s_cbranch_scc1 {L}", f"s_getpc_b64 s[{sT2}:{sT3}]", "L_pcbase:")
            s(f"s_lshr_b32 s{sT0}, s2, 3", f"s_mul_i32 s{sT0}, s{sT0}, CPF_N", f"v_add_u32 v{vX}, s{sT0}, v{vL}", f"v_lshlrev_b32 v{vX}, 7, v{vX}",
              f"v_min_u32 v{vX}, L_end-L_pcbase, v{vX}", f"v_mov_b32 v{vY}, s{sT3}", f"v_add_co_u32 v{vX}, vcc, s{sT2}, v{vX}", f"v_addc_co_u32 v{vY}, vcc, 0, v{vY}, vcc",
              "s_mov_b64 exec, (1<<CPF_N)-1")
            s.vmem(f"global_load_dword a{aDUMMY}, v[{vX}:{vY}], off", None, cond=True)
            s("s_mov_b64 exec, -1", f"{L}:")
        s(f"s_and_b32 s{sT0}, s2, 7", f"s_lshr_b32 s{sT1}, s2, 3")

        def mapping(am, rT, rG):
            lg = int(math.log2(am))
            s(f"s_and_b32 s{rG}, s{sT0}, {8 // am - 1}", f"s_lshl_b32 s{rG}, s{rG}, {lg}", f"s_and_b32 s{sT2}, s{sT1}, {am - 1}", f"s_add_u32 s{rG}, s{rG}, s{sT2}")
            s(f"s_andn2_b32 s{rT}, s{sT1}, {am - 1}", f"s_lshr_b32 s{sT2}, s{sT0}, {3 - lg}", f"s_add_u32 s{rT}, s{rT}, s{sT2}")
        mapping(s.amap, sTB, sG)
        s(f"v_and_b32 v{vX}, 15, v{vL}", f"s_lshl_b32 s{sT2}, s{sW}, 4", f"v_add_u32 v{vX}, s{sT2}, v{vX}", f"v_lshlrev_b32 v{vX}, 10, v{vX}",
          f"v_lshrrev_b32 v{vY}, 4, v{vL}", f"v_lshl_add_u32 v{vU}, v{vY}, 4, v{vX}", f"s_lshl_b32 s{sOFF}, s{sTB}, 16")
        s("s_waitcnt lgkmcnt(0)")
        s.stamp('.k')
        s.mk_srd(X, 64, 0x200000)
        for m in range(16):
            s.vmem(f"buffer_load_dwordx4 {v(vRAW + 4 * m, 4)}, v{vU}, {srd(X)}, s{sOFF} offen offset:{m * 64}", ('x', m // 4))
        s.stamp('.xi')
        mapping(cmap, sTC, sJ)
        s(f"s_lshr_b32 s{sJC}, s{sT1}, {int(math.log2(cmap))}")
        s(f"s_lshr_b32 s{sJJ}, s{sT1}, {int(math.log2(s.amap))}" if pa == s.amap else f"s_lshr_b32 s{sJJ}, s{sTB}, {int(math.log2(pa))}")
        s(f"s_and_b32 s{sTH}, s{sW}, 1", f"s_lshr_b32 s{sCH}, s{sW}, 1", f"v_lshlrev_b32 v{vL16}, 4, v{vL}")
        s.lin(sT3, 0, (sG, 1024), (sW, 256)); s.mk_srd(WQ, 70, 0x400000, sT3)
        s.lin(sT3, 0, (sG, 128)); s.mk_srd(W1, 76, 0x80000, sT3); s.mk_srd(W2, 78, 0x80000, sT3)
        s.lin(sT3, 0, (sJ, 128)); s.mk_srd(W4, 82, 0x1c0000, sT3)
        s.lin(sT3, 1536 * 256, (sG, 1 << 19)); s.mk_srd(KC, 66, 0x400000, sT3)
        s(f"s_sub_u32 s{sT3}, s{sT3}, 2048"); s.mk_srd(VC, 68, 0x400000, sT3)
        s.lin(sT3, 0, (sG, 1 << 19), (sW, 256)); s.mk_srd(WO, 72, 0x400000, sT3)
        s.lin(sT3, 0, (sJ, 448), (sW, 128)); s.mk_srd(W3, 80, 0x1c0000, sT3)
        s.mk_srd(OUT, 84, 0x200000); s.mk_srd(DBG, 86, 256); s.mk_srd(WS, 88, 0x10000000)
        s(f"s_mov_b32 s{sONE2}, 0x3f803f80", f"s_mov_b32 s{sLO}, 0x00003f80", f"s_mov_b32 s{sHI}, 0x3f800000", f"s_mov_b32 s{sINV}, {f2u(1.0 / 512)}")
        s(f"s_mov_b32 s{sC}, {f2u(-1.4426950408889634)}", f"s_mov_b32 s{sC + 1}, {f2u(-1.4426950408889634)}")
        s(f"s_lshl_b32 s{sKVM}, s{sW}, 12", f"s_mov_b32 s{sKV}, 0", f"s_mov_b32 s{sPASS}, 0")
        s.lin(sRING, SLOT[0], (sW, 8192))
        s.d128(vE, 1024, True)
        s.d256(vD, 8192, True)
        s.lin(sHST, WS_H + 128, (sG, 8 * HPL), (sCH, 4 * HPL), (sTB, 1024), (sTH, 512))
        s.lin(sHLD, WS_H, (sTB, 1024), (sW, 256))
        s.lin(sX1ST, WS_X1, (sTB, 65536), (sTH, 32768), (sG, 2048), (sCH, 1024))
        s.lin(sX1LD, WS_X1, (sTC, 65536), (sW, 16384))
        s.lin(sX1S, WS_X1, (sTC, 65536), (sTH, 32768), (sJ, 2048), (sCH, 1024))
        s.lin(sH2ST, WS_H2, (sTC, 229376), (sJ, 7 * 4096), (sW, 8192))
        s.lin(sH2LD, WS_H2, (sTC, 229376), (sW, 4096))
        s.lin(sSPST, WS_SP, (sTB, 1 << 19), (sW, 1 << 17), (sG, 1024))
        s(f"s_and_b32 s{sSPX}, s{sTB}, 15", f"s_lshl_b32 s{sSPX}, s{sSPX}, 13")
        s.lin(sSPLD, WS_SP, (sTC, 1 << 19), (sJ, 1 << 16), (sCH, 1 << 15), (sTH, 1 << 14))
        s(f"s_and_b32 s{sSPY}, s{sSPLD}, 0x1e000", f"s_andn2_b32 s{sSPLD}, s{sSPLD}, 0x1e000", f"s_and_b32 s{sT0}, s{sTC}, 15", f"s_lshl_b32 s{sT0}, s{sT0}, 13",
          f"s_xor_b32 s{sSPY}, s{sSPY}, s{sT0}")
        s.lin(sXF, 0, (sTC, 65536), (sTH, 32768), (sJ, 128), (sCH, 64))
        s.lin(sFLG, WS_FLAG, (sTB, 256), (sG, 4)); s.lin(sFLC, WS_FLAG, (sTC, 256), (sJ, 4))
        s(f"v_lshrrev_b32 v{vX}, 4, v{vL}", f"v_lshlrev_b32 v{vY}, 5, v{vX}", f"v_xor_b32 v{vB}, v{vY}, v{vL16}")
        s(f"v_mul_u32_u24 v{vX}, {HPL}, v{vX}", f"v_and_b32 v{vY}, 0xf0, v{vB}", f"v_add_u32 v{vH}, v{vX}, v{vY}", f"v_and_b32 v{vY}, 0xf0, v{vL16}", f"v_add_u32 v{vEA}, v{vX}, v{vY}")
        s(f"s_lshl_b32 s{sT0}, s{sTH}, 15", f"v_add_u32 v{vB2}, s{sT0}, v{vB}", f"s_lshl_b32 s{sT0}, s{sW}, 14", f"v_add_u32 v{vEA + 1}, s{sT0}, v{vB}")
        s.t256(vT0, base_s=sRING)
        for nt in range(8): s(f"v_add_u32 v{vT1 + nt}, 0x10000, v{vT0 + nt}")
        s.t128(vS, 2, base_imm=SLOT[1], pair_s=sCH)
        s(f"v_lshrrev_b32 v{vX}, 1, v{vY}" if False else f"v_and_b32 v{vX}, 15, v{vL}", f"v_lshlrev_b32 v{vX}, 3, v{vX}", f"v_add_u32 v{vEA + 2}, {SCR}, v{vX}", f"s_lshl_b32 s{sT0}, s{sTH}, 8",
          f"v_add_u32 v{vEA + 3}, s{sT0}, v{vEA + 2}")
        s.lin(sT1, 0, (sG, 2048), (sCH, 1024), (sTH, 32768))
        s(f"v_lshrrev_b32 v{vX}, 5, v{vL}", f"v_mul_u32_u24 v{vX}, 0x120, v{vX}", f"v_and_b32 v{vY}, 0xf0, v{vL16}", f"v_xor_b32 v{vX}, v{vX}, v{vY}",
          f"v_bfe_u32 v{vY}, v{vL}, 4, 1", f"v_lshl_add_u32 v{vX}, v{vY}, 3, v{vX}", f"v_add_u32 v{vEA + 4}, s{sT1}, v{vX}", f"v_xor_b32 v{vEA + 5}, 0x240, v{vEA + 4}")
        if pf:
            lg = int(math.log2(pa))
            s(f"v_lshrrev_b32 v{vX}, {lg + 1}, v{vL}", f"v_lshlrev_b32 v{vX}, 18, v{vX}", f"v_bfe_u32 v{vY}, v{vL}, 1, {lg}" if lg else f"v_mov_b32 v{vY}, 0",
              f"s_lshl_b32 s{sT0}, s{sJJ}, {lg}", f"v_add_u32 v{vY}, s{sT0}, v{vY}", f"v_lshl_add_u32 v{vX}, v{vY}, 13, v{vX}", f"v_and_b32 v{vY}, 1, v{vL}",
              f"v_lshl_add_u32 v{vEA + 6}, v{vY}, 7, v{vX}")
        for i in range(4): s(f"v_accvgpr_write_b32 a{aONE + i}, s{sONE2}")
        for i in (0, 1, 4, 5): s(f"v_accvgpr_write_b32 a{aSEL + i}, 0")
        s(f"v_and_b32 v{vX}, 16, v{vL16}", f"v_lshlrev_b32 v{vU}, v{vX}, s{sLO}", f"v_lshrrev_b32 v{vX}, 4, v{vL}", f"v_bfe_u32 v{vY}, v{vL}, 2, 2", f"v_cmp_eq_u32 vcc, v{vX}, v{vY}",
          f"v_and_b32 v{vX}, 2, v{vL}", f"v_cndmask_b32 v{vU}, 0, v{vU}, vcc", f"v_cmp_eq_u32 vcc, 0, v{vX}", "s_nop 1", f"v_cndmask_b32 v{vY}, 0, v{vU}, vcc",
          f"v_sub_u32 v{vX}, v{vU}, v{vY}", f"v_accvgpr_write_b32 a{aSEL + 2}, v{vY}", f"v_accvgpr_write_b32 a{aSEL + 3}, v{vX}")
        touch_wq = [[f"s_mov_b32 s{sB1}, {(k * (32 // pa) + 1) * 32 * 8192}", ('vm', f"buffer_load_dword a{aDUMMY}, v{vEA + 6}, {srd(WQ)}, s{sB1} offen", None)]
                    for k in range(-(-15 // (32 // pa)))] if pf else []
        up = o.get('w1up', 3)
        w1items = s.w12_dma(W1, 0, 'w1') + s.w12_dma(W1, 1, 'w1')
        s.stamp('.alu')
        for it in w1items[:7 * up]: s.item(it)
        s.stamp('setup')

        def ln1():
            sp, fl = s.ln_stats(lambda k: ('x', k))
            s.weave(sp, fl)
            s.ln_centre(True, vEA + 1)
        back = w1items[7 * up:] + [f"s_mov_b32 s{sOFF}, 0"] + s.dma4(vD, WQ, sOFF, sRING, 0, ('q', 'd', 0)) \
            + [f"s_mov_b32 s{sOFF}, {4 * 8192}"] + s.dma4(vD, WQ, sOFF, sRING, 4096, ('q', 'd', 0), n=3) + touch_wq
        s.bg(s.capture(ln1), back, o.get('lnlo', 0.05), o.get('lnhi', 0.95))
        s.stamp('ln1')
        s.wait(vm='w1', lg=0)
        s("s_barrier")

        for tt in range(4): s.lds(f"ds_read_b64 {v(vR + 2 * tt, 2)}, v{vEA + 2} offset:{tt * 128}", 'r2')
        for t in range(2): s.lds(f"ds_read_b64 {v(vR + 8 + 2 * t, 2)}, v{vEA + 3} offset:{t * 128}", 'r2')
        for m in range(3): s.item(s.stype_reads(m, 'b1'))
        for n in range(2):
            for t in range(2): s.lds(f"ds_read_b64 {v(vX1 + 4 * t + 2 * n, 2)}, v{vEA + 4 + n} offset:{t * 16384}", 'xs')
        late = {7: ["s_barrier", f"s_add_u32 m0, s{sRING}, 4096", f"s_mov_b32 s{sB0}, {4 * 8192}",
                    ('vm', f"buffer_load_dwordx4 v{vD + 3}, {srd(WQ)}, s{sB0} offen offset:3072 lds", ('q', 'd', 0)), f"s_mov_b32 s{sOFF}, {32 * 8192}"]}
        s.stype('b1', late)
        s.wait(lg=0)
        s("s_barrier")
        s.stamp('b1')

        def b1_epi():
            for t in range(2): s(*s.gelu_consts(vR + 12 + 4 * t, vR + 9 + 2 * t))
            s.gelu_pairs([(vACC + 8 * n + 4 * t + 2 * j, vR + 12 + 4 * t) for n in range(2) for t in range(2) for j in range(2)], vQ)
            for t in range(2):
                for n in range(2):
                    for j in range(2):
                        r = vACC + 8 * n + 4 * t + 2 * j
                        s(f"v_cvt_pk_bf16_f32 v{vQ + 16 + 4 * t + 2 * n + j}, v{r}, v{r + 1}")
                s.vmem(f"buffer_store_dwordx4 {v(vQ + 16 + 4 * t, 4)}, v{vEA}, {srd(WS)}, s{sHST} offen offset:{t * 256} sc1", 'hst')
            c = 1.4426950408889634 / math.sqrt(128)
            for tt in range(4): s(f"v_mul_f32 v{vACC + 2 * tt}, {f2u(c)}, v{vR + 2 * tt}")
            for i in range(8): s(f"v_lshlrev_b32 v{vQ + 2 * i}, 16, v{vX1 + i}", f"v_and_b32 v{vQ + 2 * i + 1}, 0xffff0000, v{vX1 + i}")
            for i in range(8): s(f"v_pk_mul_f32 {v(vQ + 2 * i, 2)}, {v(vQ + 2 * i, 2)}, {v(vR + 8 + 2 * (i >> 2), 2)} op_sel_hi:[1,0]")
            for i in range(8): s(f"v_cvt_pk_bf16_f32 v{vX1 + i}, v{vQ + 2 * i}, v{vQ + 2 * i + 1}")
        qA = s.p_reads_A(0, 'q')
        s.bg(s.capture(b1_epi), s.pstep_dma(vD, WQ, 32 * 8192, 4 * 8192, 1, ('q', 'd', 1)) + s.pstep_dma(vD, WQ, 32 * 8192, 4 * 8192, 2, ('q', 'd', 2))[:7]
             + s.p_reads_B(0, 'q') + [[('wait', ('q', 'd', 0), None)] + qA[0]] + qA[1:], 0.0, 0.98)
        for it in s.pstep_dma(vD, WQ, 32 * 8192, 4 * 8192, 2, ('q', 'd', 2))[7:]: s.item(it)
        Lp = s.label('pad')
        s(f"s_cmp_lg_u32 s{sW}, 0", f"s_cbranch_scc1 {Lp}")
        s(f"v_lshl_add_u32 v{vX}, v{vL}, 7, s{sFLG}", "s_mov_b64 exec, 3")
        for i in range(4): s(f"v_mov_b32 v{vQ + 24 + i}, 0")
        s.vmem(f"buffer_store_dword v{vQ + 24}, v{vX}, {srd(WS)}, 0 offen sc1", None, cond=True)
        s("s_mov_b64 exec, -1")
        s(f"s_add_u32 s{sT1}, s{sTB}, 1", f"s_and_b32 s{sT1}, s{sT1}, 30", f"s_cmp_lg_u32 s{sT1}, 0", f"s_cbranch_scc1 {Lp}")
        s(f"s_cmp_eq_u32 s{sTB}, 0", f"s_cselect_b32 s{sT1}, {WS_H}, {WS_H + (8 + 2048) * 16}", f"s_mul_i32 s{sT0}, s{sG}, {8 * HPL}", f"s_add_u32 s{sT0}, s{sT0}, s{sT1}")
        s(f"v_lshrrev_b32 v{vX}, 3, v{vL}", f"v_mul_u32_u24 v{vX}, {HPL}, v{vX}", f"v_and_b32 v{vY}, 0x70, v{vL16}", f"v_add_u32 v{vX}, v{vX}, v{vY}")
        for i in range(4): s(f"v_mov_b32 v{vQ + 24 + i}, 0")
        s.vmem(f"buffer_store_dwordx4 {v(vQ + 24, 4)}, v{vX}, {srd(WS)}, s{sT0} offen sc1", None, cond=True)
        s(f"{Lp}:")
        s.stamp('b1epi')

        def h_dma(lo, hi):
            shift = [1, -1, 2, -2]
            return [[f"s_add_u32 m0, s{sB1}, {m * 1024}", f"s_add_u32 s{sB0}, s{sHLD}, {m * 4 * HPL + (8 - shift[m >> 2]) * 16}",
                     ('vm', f"buffer_load_dwordx4 v{vH}, {srd(WS)}, s{sB0} offen sc1 lds", 'h')] for m in range(lo, hi)]

        def kv_offsets():
            s(f"v_lshrrev_b32 v{vX}, 4, v{vL}", f"s_lshl_b32 s{sT0}, s{sW}, 3", f"v_add_u32 v{vX}, s{sT0}, v{vX}", f"v_and_b32 v{vY}, 0xf0, v{vL16}",
              f"v_lshl_add_u32 v{vY}, v{vX}, 8, v{vY}", f"v_and_b32 v{vU}, 15, v{vX}", f"v_lshlrev_b32 v{vU}, 4, v{vU}", f"v_xor_b32 v{vE}, v{vY}, v{vU}",
              f"v_xor_b32 v{vE + 1}, 0x40, v{vE}", f"v_and_b32 v{vU}, 7, v{vX}", f"v_lshlrev_b32 v{vU}, 5, v{vU}", f"v_xor_b32 v{vE + 2}, v{vY}, v{vU}",
              f"v_xor_b32 v{vE + 3}, 0x80, v{vE + 2}")

        def attn_addr():
            s.t256(vT0, base_imm=KVPOS[0] + 2048, kv=True)
            s(f"v_and_b32 v{vX}, 8, v{vL}", f"v_lshlrev_b32 v{vX}, 9, v{vX}", f"v_and_b32 v{vY}, 7, v{vL}", f"v_lshl_add_u32 v{vX}, v{vY}, 8, v{vX}",
              f"v_lshrrev_b32 v{vY}, 4, v{vL}", f"v_and_b32 v{vU}, 15, v{vL}", f"v_xor_b32 v{vY}, v{vY}, v{vU}", f"v_lshl_add_u32 v{vX}, v{vY}, 4, v{vX}",
              f"v_add_u32 v{vT1}, {KVPOS[0]}, v{vX}")
            for ds in range(1, 4): s(f"v_xor_b32 v{vT1 + ds}, {ds << 6}, v{vT1}")
        nh15 = o.get('nh15', 6)

        def q_extra(st):
            ex = {'at': {}}
            if st == 0: ex['alu'] = s.capture(lambda: s.d128(vE, 1024, False)); ex['alug'] = (27, 31)
            if st == 2: ex['at'][9] = ["s_barrier", lambda: s.signal(0)]
            if st == 11: ex['at'][12] = s.poll_items(0, 'p1')
            if st == 12: ex['alu'] = s.capture(lambda: s.d128(vW4, 1024, False)); ex['alug'] = (11, 31)
            if st == 13:
                ex['dma'] = s.w12_dma(W2, 0, 'w2')
                ex['alu'] = s.capture(lambda: s.d128(vD, 3584, False, oob_w3=True)); ex['alug'] = (11, 31)
            if st == 14:
                ex['dma'] = s.w12_dma(W2, 1, 'w2')
                ex['at'][9] = [lambda: s.poll_check(0, 'p1')]
                ex['alu'] = s.capture(kv_offsets); ex['alug'] = (11, 31)
            if st == 15:
                ex['dma'] = ["s_barrier", f"s_lshl_b32 s{sB1}, s{sW}, 14"] + h_dma(0, nh15)
                ex['alu'] = s.capture(attn_addr)
            return ex
        s.ptype('q', vD, WQ, 32 * 8192, 4 * 8192, q_extra)
        s.stamp('qproj')

        def q_epi():
            for ds in range(4):
                for tt in range(4):
                    q = vQ + 16 * ds + 4 * tt
                    rr = [128 + 16 * (2 * ds + u) + 4 * tt + 2 * j for u in range(2) for j in range(2)]
                    for r in rr: s(f"v_pk_mul_f32 {v(r, 2)}, {v(r, 2)}, {v(vACC + 2 * tt, 2)} op_sel_hi:[1,0]")
                    for i, r in enumerate(rr): s(f"v_cvt_pk_bf16_f32 v{q + i}, v{r}, v{r + 1}")
                for op in ("v_permlane32_swap_b32", "v_permlane16_swap_b32"):
                    for tt in range(4):
                        for j in range(2): s(f"{op} v{vQ + 16 * ds + 4 * tt + j}, v{vQ + 16 * ds + 4 * tt + 2 + j}")
        tkv = []
        if pf and o.get('tkv', 1):
            L = s.label('tk'); nk = 32 * pa
            tkv = [[f"v_lshlrev_b32 v{vX}, 7, v{vL}", f"s_mul_i32 s{sT0}, s{sJJ}, {nk * 128}", f"s_cmp_lg_u32 s{sW}, 0", f"s_cbranch_scc1 {L}a"]
                   + [('vm', f"buffer_load_dword a{aDUMMY}, v{vX}, {srd(KC)}, s{sT0} offen", None, True), f"{L}a:", f"s_cmp_lg_u32 s{sW}, 1", f"s_cbranch_scc1 {L}b",
                      ('vm', f"buffer_load_dword a{aDUMMY}, v{vX}, {srd(VC)}, s{sT0} offen offset:2048", None, True), f"{L}b:"]]
            assert nk == 64
        s.bg(s.capture(q_epi), h_dma(nh15, 16) + s.kv_dma(0) + tkv, 0.0, 0.95)
        s.dump('q', [f"v{vQ + i}" for i in range(64)], 0)
        s.stamp('qepi')

        s.wait(vm='h')
        s("s_barrier")
        for m in range(3): s.item(s.stype_reads(m, 'b2'))
        fx = {}
        spread(fx, s.kv_dma(1), 1, 20)
        s.stype('b2', fx)
        s.wait(vm=('kv', 1), lg=0)
        s("s_barrier")
        s.stamp('b2')

        s(f"s_mov_b32 s{sOFF}, 0")
        for it in s.k_reads(0): s.item(it)
        for n in range(2):
            for t in range(2): s(mfma(v(vACC + 8 * n + 4 * t, 4), sel(n), v(vX1 + 4 * t, 4), v(vACC + 8 * n + 4 * t, 4)))
        x1e = []
        for t in range(2):
            for n in range(2):
                for j in range(2):
                    r = vACC + 8 * n + 4 * t + 2 * j
                    x1e.append(f"v_cvt_pk_bf16_f32 v{vX1 + 4 * t + 2 * n + j}, v{r}, v{r + 1}")
        x1e += [('vm', f"buffer_store_dwordx4 {v(vX1, 4)}, v{vL16}, {srd(WS)}, s{sX1ST} offen", 'x1st'), f"s_add_u32 s{sB0}, s{sX1ST}, 16384",
                ('vm', f"buffer_store_dwordx4 {v(vX1 + 4, 4)}, v{vL16}, {srd(WS)}, s{sB0} offen", 'x1st')]
        x1e = [(it[0], it[1] + " sc1", it[2]) if isinstance(it, tuple) else it for it in x1e]

        def rowmax(qt):
            b = vS_ + 8 * qt; r = vACC + 4 * qt
            it = [f"v_max3_f32 v{r}, v{b}, v{b + 1}, v{b + 2}", f"v_max3_f32 v{r + 1}, v{b + 3}, v{b + 4}, v{b + 5}", f"v_max3_f32 v{r}, v{r}, v{b + 6}, v{b + 7}",
                  f"v_max_f32 v{r}, v{r}, v{r + 1}"] + s.xred(r, r + 1, "v_max_f32")
            it += [f"v_sub_f32 v{r}, 0, v{r}"] + [f"v_mov_b32 v{r + i}, v{r}" for i in range(1, 4)]
            return it + [f"v_add_f32 v{b + i}, v{b + i}, v{r}" for i in range(8)]
        fill = {-1: [('wait', None, ('K', 0, 'a'))], 3: [('wait', None, ('K', 0, 'b'))]}
        spread(fill, x1e, 3, 9)
        spread(fill, rowmax(0), 10, 17)
        spread(fill, rowmax(1) + s.kv_dma(2), 18, 25)
        spread(fill, rowmax(2), 26, 31)
        s.weave(s.qk_spine(lambda qt: "0"), fill)
        for it in s.k_reads(1): s.item(it)
        pro = []
        for qt in range(3):
            E, C = s.job(0, qt); pro += E + C
            if qt == 0: pro += rowmax(3)
        s.bg(pro, s.kv_dma(3))
        s.stamp('attn_pro')
        s("L_attn:")

        def x1_loads(lo, hi):
            it = []
            for m in range(lo, hi):
                if m % 4 == 0: it.append(f"s_add_u32 s{sB0}, s{sX1LD}, {m * 1024}")
                it.append(('vm', f"buffer_load_dwordx4 {v(vRAW + 4 * m, 4)}, v{vL16}, {srd(WS)}, s{sB0} offen offset:{(m & 3) * 1024} sc1", ('x1', m // 4)))
            return it

        def w3_dma(ms): return s.pstep_dma(vD, W3, 64 * 3584, 32 * 3584, (ms + 1) % 3, ('c', 'd', ms))

        def touch2(which):
            p_, jj = (pa, sJJ) if which == 'wo' else (cmap, sJC)
            if which == 'w4':
                n = 14 * p_
                it = [f"v_lshlrev_b32 v{vY}, 10, v{vL}", f"s_lshl_b32 s{sB1}, s{jj}, 2", f"s_add_u32 s{sB1}, s{sB1}, s{sW}", f"s_mul_i32 s{sB1}, s{sB1}, {n * 1024}"]
                for k in range(-(-n // 64)):
                    if n - 64 * k < 64: it += [f"v_cmp_gt_u32 vcc, {n - 64 * k}, v{vL}", "s_nop 1", f"v_cndmask_b32 v{vY}, -1, v{vY}, vcc"]
                    it += [('vm', f"buffer_load_dword a{aDUMMY}, v{vY}, {srd(W4)}, s{sB1} offen", None), f"s_add_u32 s{sB1}, s{sB1}, 65536"]
                return it
            rows = 16 * p_
            RS, S, d = (3584, W3, 124) if which == 'w3' else (1024, WO, 128)
            it = [f"v_lshrrev_b32 v{vX}, 1, v{vL}", f"v_mul_u32_u24 v{vX}, {RS}, v{vX}", f"v_and_b32 v{vY}, 1, v{vL}", f"v_mul_u32_u24 v{vY}, {d}, v{vY}",
                  f"v_add_u32 v{vY}, v{vX}, v{vY}", f"s_mul_i32 s{sB1}, s{jj}, {rows * RS}"]
            if rows < 32: it += [f"v_cmp_gt_u32 vcc, {2 * rows}, v{vL}", "s_nop 1", f"v_cndmask_b32 v{vY}, -1, v{vY}, vcc"]
            for k in range(max(1, rows // 32)):
                it += [('vm', f"buffer_load_dword a{aDUMMY}, v{vY}, {srd(S)}, s{sB1} offen", None), f"s_add_u32 s{sB1}, s{sB1}, {32 * RS}"]
            return it

        P1 = o.get('p1', "E VV E C E VV E C E VV E C E VV E C E VV E C E VV E C E VV E C E VV E C").split()
        P2 = o.get('p2', "E - E C E B E C D E KK E C E D E C D E KK E C E D E C KK E D E C E KK E C D").split()
        assert len(P1) == 32 and len(P2) == 36

        def pattern(P, streams):
            fill = {}; pos = {k: [] for k in streams}; idx = {k: 0 for k in streams}
            for g, tok in enumerate(P):
                for ch in tok:
                    if ch in streams and idx[ch] < len(streams[ch]):
                        fill.setdefault(g, []).append(streams[ch][idx[ch]]); pos[ch].append(g); idx[ch] += 1
            assert all(idx[k] == len(streams[k]) for k in streams)
            return fill, pos

        for t in range(16):
            V = s.v_reads(t)
            EA, CA = s.job(t, 3)
            if t < 15:
                EB, CB = s.job(t + 1, 0)
                spine = s.qk_spine(lambda qt: v(vACC + 4 * qt, 4))
                fill, pos = pattern(P1, {'E': EA + EB, 'C': CA + CB, 'V': V})
                for i in range(8): assert pos['C'][i] >= pos['E'][2 * i + 1]
                assert pos['C'][3] < 24 and pos['E'][8] >= 9
                fill.setdefault(-1, []).append(('wait', None, ('K', t + 1, 'a')))
                fill.setdefault(3, []).insert(0, ('wait', None, ('K', t + 1, 'b')))
            else:
                spine, fill = s.ln_stats(lambda k: ('x1', k))
                merge(fill, pattern(P1, {'E': EA, 'C': CA, 'V': V})[0])
            s.weave(spine, fill)
            spine = s.pv_spine(t, l_first=(t == 15))
            if t < 15:
                EE, CC = [sum(x, []) for x in zip(s.job(t + 1, 1), s.job(t + 1, 2))]
                bar = [[('wait', ('kv', t + 2), None), "s_barrier"] + ([lambda: s.signal(1)] if t == 0 else [])] if t < 14 else []
                fill, pos = pattern(P2, {'E': EE, 'C': CC, 'K': s.k_reads(t + 2) if t < 14 else [], 'D': s.kv_dma(t + 4) if t < 12 else [], 'B': bar})
                for i in range(8): assert pos['C'][i] >= pos['E'][2 * i + 1]
                gb = [g for g, tok in enumerate(P2) if 'B' in tok][0]
                assert all(g > gb for g in pos['K'] + pos['D']) and gb >= 3
                fill.setdefault(-1, []).append(('wait', None, ('V', t, 'a')))
                fill.setdefault(3, []).insert(0, ('wait', None, ('V', t, 'b')))
                ex = []
                tx = o.get('tx', 7)
                if pf and t in (1, 3, 5):
                    tl = touch2({1: 'w3', 3: 'wo', 5: 'w4'}[t])
                    nv = [i for i, it in enumerate(tl) if isinstance(it, tuple)][0]
                    spread(fill, tl[:nv], gb + 1, 28); spread(fill, tl[nv:], 30, 35)
                if t == tx - 2: ex = s.poll_items(1, 'p2')
                if t == tx: ex = [lambda: s.poll_check(1, 'p2')] + x1_loads(0, 4)
                if tx < t < tx + 4: ex = x1_loads(4 * (t - tx), 4 * (t - tx) + 4)
                if t == tx + 4:
                    ex = [('vm', f"buffer_load_dwordx4 {v(vX1, 4)}, v{vL16}, {srd(WS)}, s{sX1S} offen sc1", 'x1s'), f"s_add_u32 s{sB0}, s{sX1S}, 16384",
                          ('vm', f"buffer_load_dwordx4 {v(vX1 + 4, 4)}, v{vL16}, {srd(WS)}, s{sB0} offen sc1", 'x1s')]
                if t == 14: ex = w3_dma(0)
                spread(fill, ex, 30 if (t < 12 and t >= tx) else gb + 1, 35)
            else:
                fill = {3: [('wait', None, ('V', t, 'a'))], 7: [('wait', None, ('V', t, 'b'))]}
                chk = [f"v_accvgpr_read_b32 v{vS_ + qt}, a{128 + 4 * qt}" for qt in range(4)]
                chk += [f"v_max3_f32 v{vX}, v{vS_}, v{vS_ + 1}, v{vS_ + 2}", f"s_mov_b32 s{sT0}, {f2u(2.0 ** s.thr)}", f"v_max_f32 v{vX}, v{vX}, v{vS_ + 3}",
                        f"v_cmp_u_f32 s[{sT2}:{sT3}], v{vS_}, v{vS_ + 1}", f"v_cmp_u_f32 vcc, v{vS_ + 2}, v{vS_ + 3}", f"s_lshl_b32 s{sT1}, s{sW}, 2",
                        f"s_or_b64 s[{sT2}:{sT3}], s[{sT2}:{sT3}], vcc", f"v_cmp_lt_f32 vcc, s{sT0}, v{vX}", f"s_add_u32 s{sT1}, s{sT1}, {SCR + 768}",
                        f"s_or_b64 vcc, vcc, s[{sT2}:{sT3}]", "s_cmp_lg_u64 vcc, 0", f"s_cselect_b32 s{sT0}, 1, 0", f"v_mov_b32 v{vU}, s{sT1}", f"v_mov_b32 v{vX}, s{sT0}",
                        ('lds', f"ds_write_b32 v{vU}, v{vX}", 'fw'), f"v_and_b32 v{vU}, 3, v{vL}", f"v_lshlrev_b32 v{vU}, 2, v{vU}", f"v_add_u32 v{vU}, {SCR + 768}, v{vU}"]
                chk += [f"v_rcp_f32 v{vS_ + 2 * qt + 8}, v{vS_ + qt}" for qt in range(4)]
                spread(fill, chk, 8, 19)
                fill.setdefault(21, []).extend([('wait', None, 0), "s_barrier", ('lds', f"ds_read_b32 v{vX}, v{vU}", 'fr')])
                spread(fill, w3_dma(1), 22, 35)
                fill.setdefault(28, []).extend([('wait', None, 0), f"v_cmp_ne_u32 vcc, 0, v{vX}", f"s_cmp_eq_u32 s{sPASS}, 0", "s_cselect_b64 s[58:59], -1, 0"])
                fill.setdefault(30, []).append("s_and_b64 s[58:59], vcc, s[58:59]")
            s.weave(spine, fill)
            s.stamp(f'.a{t}')
        s("s_cmp_lg_u64 s[58:59], 0", "s_cbranch_scc1 L_slow")
        s.stamp('attn')

        def o_epi():
            for ds in range(4):
                for qt in range(4):
                    T = vP + 8 * (qt & 1)
                    for u in range(2):
                        for i in range(4): s(f"v_accvgpr_read_b32 v{T + 4 * u + i}, a{16 * (2 * ds + u) + 4 * qt + i}")
                    for i in range(4): s(f"v_pk_mul_f32 {v(T + 2 * i, 2)}, {v(T + 2 * i, 2)}, {v(vS_ + 2 * qt + 8, 2)} op_sel_hi:[1,0]")
                    for i in range(4): s(f"v_cvt_pk_bf16_f32 v{vQ + 16 * ds + 4 * qt + i}, v{T + 2 * i}, v{T + 2 * i + 1}")
        w32 = w3_dma(2)
        s.bg(s.capture(o_epi), w32[:-2], 0.0, 0.8)
        s.dump('o', [f"v{vQ + i}" for i in range(64)], 1)
        s.stamp('oepi')

        def c_reads(ms):
            ab = 32 * (ms & 1); bb = 64 + 32 * (ms & 1)
            slot = (ms + 1) % 3
            base = vT1 if slot == 2 else vT0; off = 32768 if slot == 1 else 0
            A, B = [], []
            for ks in range(2):
                tg = ('c', ms, 'ab'[ks])
                b_ = [('lds', f"ds_read_b128 {a(bb + 16 * ks + 4 * tt, 4)}, v{vB} offset:{(16 * tt + 2 * ms + ks) * 1024}", tg) for tt in range(4)]
                B.append([b_[:2], b_[2:]])
                A.append([[('lds', f"ds_read_b64_tr_b16 {a(ab + 16 * ks + 4 * nt + 2 * jh, 2)}, v{base + nt} offset:{off + ks * 4096 + jh * 2048}", tg) for jh in range(2)]
                          for nt in range(4)])
            return A, B
        s(f"s_lshl_b32 s{sT0}, s{sW}, 14", f"v_add_u32 v{vB2}, s{sT0}, v{vB}")
        s.t128(vT0, 4, base_s=sRING)
        for i in range(4): s(f"v_add_u32 v{vT1 + i}, 0x10000, v{vT0 + i}")
        s.ln_centre(False, vB2)
        A0, B0 = c_reads(0)
        s.wait(vm=('c', 'd', 0))
        for it in A0[0] + A0[1]: s.item(it)
        s(f"v_and_b32 v{vX}, 15, v{vL}", f"v_lshlrev_b32 v{vX}, 2, v{vX}", f"v_add_u32 v{vX}, {SCR}, v{vX}")
        s.wait(lg=0)
        s("s_barrier")
        s.stamp('ln3')
        for it in B0[0] + B0[1]: s.item(it)
        for tt in range(4): s.lds(f"ds_read_b32 v{vACC + 4 * tt + 3}, v{vX} offset:{tt * 64}", 'r3')
        wo_dma = lambda k: ([f"s_mov_b32 s{sOFF}, 0"] if k == 0 else []) + s.pstep_dma(vE, WO, 32 * 1024, 16 * 1024, k, ('o', 'd', k))
        for ms in range(8):
            ab = 32 * (ms & 1); bb = 64 + 32 * (ms & 1)
            spine = [mfma(v(128 + 16 * nt + 4 * tt, 4), a(ab + 16 * ks + 4 * nt, 4), a(bb + 16 * ks + 4 * tt, 4), "0" if (ms == 0 and ks == 0) else v(128 + 16 * nt + 4 * tt, 4))
                     for ks in range(2) for nt in range(4) for tt in range(4)]
            if ms == 0:
                fill = {-1: [('wait', None, ('c', 0, 'a'))], 1: [('wait', None, 0), "s_barrier"] + w32[-2:]}
            else:
                fill = {-1: [('wait', None, ('c', ms, 'a'))], 1: [('wait', None, 0)]}
            spread(fill, w3_dma(ms + 3) if ms + 3 < 8 else wo_dma(ms - 5), 2, 8)
            if ms + 1 < 8:
                fill.setdefault(8, []).append(('wait', ('c', 'd', ms + 1), None))
                A, B = c_reads(ms + 1)
                spread(fill, [B[0][0], A[0][0], B[0][1]] + A[0][1:] + [B[1][0], A[1][0], B[1][1]] + A[1][1:], 9, 27)
            if ms == 1: spread(fill, s.capture(lambda: s.d256(vE, 1024, False)), 10, 31)
            if ms == 2: spread(fill, sum([s.gelu_consts(vACC + 4 * tt, vACC + 4 * tt + 3) for tt in range(4)], []), 10, 31)
            if ms == 7:
                def oaddr():
                    s.t256(vT0, base_s=sRING)
                    for nt in range(8): s(f"v_add_u32 v{vT1 + nt}, 0x10000, v{vT0 + nt}")
                    s(f"s_lshl_b32 s{sT0}, s{sW}, 12", f"v_add_u32 v{vB2}, s{sT0}, v{vB}")
                spread(fill, s.capture(oaddr), 9, 31)
            s.weave(spine, fill)
            s.stamp(f'.c{ms}')
        s("s_barrier")
        s.stamp('b3')
        ow = [('lds', f"ds_write_b128 v{vB2}, {v(vQ + 16 * ds + 4 * qt, 4)} offset:{qt * 16384 + ds * 1024}", 'ow') for ds in range(4) for qt in range(4)]

        def c_epi(b):
            for tt in range(4):
                s.gelu_pairs([(128 + 16 * (2 * b + n) + 4 * tt + 2 * j, vACC + 4 * tt) for n in range(2) for j in range(2)], 192)
                for n in range(2):
                    for j in range(2):
                        r = 128 + 16 * (2 * b + n) + 4 * tt + 2 * j
                        s(f"v_cvt_pk_bf16_f32 v{208 + 16 * b + 4 * tt + 2 * n + j}, v{r}, v{r + 1}")
                s.vmem(f"buffer_store_dwordx4 {v(208 + 16 * b + 4 * tt, 4)}, v{vL16}, {srd(WS)}, s{sH2ST} offen offset:{tt * 1024} sc1", 'h2st', cond=(b == 1))
        oA = s.p_reads_A(0, 'o')
        s.bg(s.capture(lambda: c_epi(0)), ow + [[('wait', ('o', 'd', 0), None)] + oA[0]] + oA[1:], 0.0, 0.9)
        s.wait(lg=0)
        s("s_barrier")
        s.item(s.p_reads_B(0, 'o'))
        Lw3 = s.label('w3skip')
        s(f"s_cmp_eq_u32 s{sW}, 3", f"s_cbranch_scc1 {Lw3}", f"s_add_u32 s{sH2ST}, s{sH2ST}, 4096")
        c_epi(1)
        s(f"{Lw3}:")
        s.stamp('b3epi')

        hbank = lambda c: 96 + 16 * (c % 7)

        def b4_dma(c):
            return [f"s_lshl_b32 s{sB0}, s{sW}, 15", f"s_add_u32 s{sB0}, s{sB0}, {c * 4 * 32768}", f"s_lshl_b32 s{sB1}, s{sW}, 13"] + s.dma4(vW4, W4, sB0, sB1, UNIT[c % 10], ('yw', c)) \
                + [f"s_add_u32 s{sB0}, s{sH2LD}, {c * 4 * 4096}"] \
                + [('vm', f"buffer_load_dwordx4 {a(hbank(c) + 4 * tt, 4)}, v{vL16}, {srd(WS)}, s{sB0} offen offset:{tt * 1024} sc1", ('y', c)) for tt in range(4)]

        def yaddr():
            s(f"s_lshl_b32 s{sT1}, s{sW}, 13")
            s.t128(vT0, 4, base_s=sT1)
            for wdw in (1, 2):
                for i in range(4): s(f"v_add_u32 v{vT0 + 4 * wdw + i}, {0x10000 * wdw}, v{vT0 + i}")
            s(f"v_and_b32 v{vX}, 15, v{vL}", f"v_lshlrev_b32 v{vX}, 10, v{vX}", f"v_lshrrev_b32 v{vY}, 4, v{vL}", f"v_lshl_add_u32 v{vD}, v{vY}, 4, v{vX}")
            s.lin(sT1, 98304, (sW, 8192)); s(f"v_add_u32 v{vD + 1}, s{sT1}, v{vL16}")
            s.lin(sT1, 98304, (sCH, 32768), (sTH, 4096)); s(f"v_add_u32 v{vD + 2}, s{sT1}, v{vL16}")

        def o_extra(st):
            ex = {'at': {}}
            if st == 2: ex['at'][9] = ["s_barrier", lambda: s.signal(2)]
            if st == 11: ex['at'][12] = s.poll_items(2, 'p3')
            if st == 13:
                ex['early'] = {1: [lambda: s.poll_check(2, 'p3')]}
                ex['dma'] = b4_dma(0)
            if st == 14: ex['dma'] = b4_dma(1)
            if st == 15:
                ex['dma'] = b4_dma(2) + ["s_barrier"]
                ex['alu'] = s.capture(yaddr); ex['alug'] = (2, 24)
            return ex
        s.ptype('o', vE, WO, 32 * 1024, 16 * 1024, o_extra)
        s.stamp('oproj')

        def ka_reads(c):
            b = vT0 + 4 * (UNIT[c % 10] >> 16); o_ = UNIT[c % 10] & 0xffff
            return [[('lds', f"ds_read_b64_tr_b16 {a(16 * (c & 1) + 4 * nt + 2 * jh, 2)}, v{b + nt} offset:{o_ + jh * 2048}", ('ya', c)) for jh in range(2)] for nt in range(4)]

        def sp_store(k):
            b, tt = k // 4, k % 4
            return [f"s_xor_b32 s{sB0}, s{sSPX}, {b * 32768 + tt * 8192}", f"s_add_u32 s{sB0}, s{sB0}, s{sSPST}",
                    ('vm', f"buffer_store_dwordx4 {v(vQ + 16 * b + 4 * tt, 4)}, v{vL16}, {srd(WS)}, s{sB0} offen sc1", 'spst')]
        ns0 = o.get('ns0', 16)
        nsp = o.get('nsp', 16)
        s.wait(vm=('yw', 0))
        s.item(ka_reads(0))
        for k in range(16):
            for n in range(2):
                for j in range(2):
                    r = 128 + 16 * (2 * (k // 4) + n) + 4 * (k % 4) + 2 * j
                    s(f"v_cvt_pk_bf16_f32 v{vQ + 16 * (k // 4) + 4 * (k % 4) + 2 * n + j}, v{r}, v{r + 1}")
            if k < ns0: s.item(sp_store(k))
        s.stamp('spst')

        def sp_loads():
            it = []
            for t in range(2):
                for src in range(8):
                    if src % 4 == 0: it += [f"s_xor_b32 s{sT0}, s{sSPY}, {t * 8192}", f"s_add_u32 s{sT0}, s{sT0}, s{sSPLD}", f"s_add_u32 s{sT0}, s{sT0}, {src * 1024}"]
                    it.append(('vm', f"buffer_load_dwordx4 {v(vQ + 32 * t + 4 * src, 4)}, v{vL16}, {srd(WS)}, s{sT0} offen offset:{(src & 3) * 1024} sc1", None, True))
            return it

        def sp_early():
            L = s.label('spe')
            s.wait(vm='p4')
            s(*s.poll_test(3)); s(f"s_mov_b32 s{sPASS}, 0", f"s_cbranch_vccnz {L}", f"s_mov_b32 s{sPASS}, 1")
            s.item(sp_loads()); s(f"{L}:")

        def sp_late():
            L = s.label('spl')
            s(f"s_cmp_lg_u32 s{sPASS}, 0", f"s_cbranch_scc1 {L}")
            s.spin(3); s.item(sp_loads()); s(f"{L}:")
        csig, cpoll, cearly, clate, D = o.get('csig', 2), o.get('cpoll', 6), o.get('cearly', 7), o.get('clate', 10), o.get('kd', 6)
        x_final = [('vm', f"buffer_load_dwordx4 {v(192, 4)}, v{vD}, {srd(X)}, s{sXF} offen", 'xf'), f"s_add_u32 s{sT1}, s{sXF}, 16384",
                   ('vm', f"buffer_load_dwordx4 {v(196, 4)}, v{vD}, {srd(X)}, s{sT1} offen", 'xf')]
        for c in range(14):
            if c == csig:
                s.wait(vm='spst'); s("s_barrier"); s.signal(3)
            spine = [mfma(v(128 + 16 * nt + 4 * tt, 4), a(16 * (c & 1) + 4 * nt, 4), a(hbank(c) + 4 * tt, 4), "0" if c == 0 else v(128 + 16 * nt + 4 * tt, 4))
                     for nt in range(4) for tt in range(4)]
            fill = {-1: [('wait', ('y', c), ('ya', c))]}
            st_ = [sp_store(k) for k in range(ns0 + c * nsp, min(16, ns0 + (c + 1) * nsp))]
            ld_ = sum([b4_dma(k) for k in (range(3, D + 1) if c == 0 else [c + D]) if k < 14], [])
            spread(fill, st_ + ld_, 0, 8)
            if c + 1 < 14:
                fill.setdefault(9, []).append(('wait', ('yw', c + 1), None))
                spread(fill, ka_reads(c + 1), 9, 12)
            if c == cpoll: spread(fill, s.poll_items(3, 'p4'), 10, 15)
            if c == cearly: fill.setdefault(15, []).append(sp_early)
            if c == clate: fill.setdefault(15, []).append(sp_late)
            if c == 9: spread(fill, x_final, 0, 8)
            s.weave(spine, fill)
            s.stamp(f'.y{c}')
        T, U = 208, 144
        wr = [('lds', f"ds_write_b128 v{vD + 1}, {v(128 + 16 * nt + 4 * tt, 4)} offset:{(nt >> 1) * 32768 + (tt >> 1) * 4096 + ((nt & 1) * 2 + (tt & 1)) * 1024}", None)
              for nt in range(4) for tt in range(4)]
        fill = {-1: wr[:4] + [('wait', 0, None)]}
        spread(fill, wr[4:], 0, 22)
        s.weave([mfma(v(T + 8 * n + 4 * t, 4), sel(n), v(vQ + 32 * t + 4 * src, 4), "0" if src == 0 else v(T + 8 * n + 4 * t, 4))
                 for src in range(8) for t in range(2) for n in range(2)], fill)
        s.wait(lg=0)
        s("s_barrier")
        for sw in range(4):
            for i in range(4): s.lds(f"ds_read_b128 {v(128 + 16 * sw + 4 * i, 4)}, v{vD + 2} offset:{sw * 8192 + i * 1024}", ('red', sw))
        s.wait(lg=('red', 1))
        for i in range(8): s(f"v_pk_add_f32 {v(vACC + 2 * i, 2)}, {v(128 + 2 * i, 2)}, {v(144 + 2 * i, 2)}")
        s.wait(lg=('red', 3))
        for i in range(8): s(f"v_pk_add_f32 {v(160 + 2 * i, 2)}, {v(160 + 2 * i, 2)}, {v(176 + 2 * i, 2)}")
        for i in range(8): s(f"v_pk_add_f32 {v(vACC + 2 * i, 2)}, {v(vACC + 2 * i, 2)}, {v(160 + 2 * i, 2)}")
        for n in range(2):
            for t in range(2): s(mfma(v(vACC + 8 * n + 4 * t, 4), sel(n), v(vX1 + 4 * t, 4), v(vACC + 8 * n + 4 * t, 4)))
        s.stamp('b4')

        for i in range(8): s(f"v_pk_mul_f32 {v(U + 2 * i, 2)}, {v(vACC + 2 * i, 2)}, s[{sC}:{sC + 1}]")
        for i in range(8): s(f"v_pk_mul_f32 {v(T + 2 * i, 2)}, {v(T + 2 * i, 2)}, {v(vACC + 2 * i, 2)}")
        for i in range(16): s(f"v_exp_f32 v{U + i}, v{U + i}")
        for i in range(8): s(f"v_pk_add_f32 {v(U + 2 * i, 2)}, {v(U + 2 * i, 2)}, 1.0 op_sel_hi:[1,0]")
        for i in range(16): s(f"v_rcp_f32 v{U + i}, v{U + i}")
        for i in range(8): s(f"v_pk_mul_f32 {v(T + 2 * i, 2)}, {v(T + 2 * i, 2)}, {v(U + 2 * i, 2)}")
        for t in range(2):
            for op in ("v_permlane32_swap_b32", "v_permlane16_swap_b32"):
                for i in range(4): s(f"{op} v{T + 4 * t + i}, v{T + 8 + 4 * t + i}")
            for h in range(2):
                for j in range(2):
                    r = T + 8 * h + 4 * t + 2 * j; xr = 192 + 4 * t + 2 * h + j
                    s(f"v_dot2_f32_bf16 v{r}, v{xr}, s{sLO}, v{r}", f"v_dot2_f32_bf16 v{r + 1}, v{xr}, s{sHI}, v{r + 1}")
            for h in range(2):
                for j in range(2):
                    r = T + 8 * h + 4 * t + 2 * j
                    s(f"v_cvt_pk_bf16_f32 v{200 + 4 * t + 2 * h + j}, v{r}, v{r + 1}")
            s.vmem(f"buffer_store_dwordx4 {v(200 + 4 * t, 4)}, v{vD}, {srd(OUT)}, s{sT1 if t else sXF} offen", None)
        if s.stamps:
            s.stamp('end')
            s(f"s_lshl_b32 s{sT0}, s2, 2", f"s_add_u32 s{sT0}, s{sT0}, s{sW}", f"s_lshl_b32 s{sT0}, s{sT0}, 9", f"s_add_u32 s{sT0}, s{sT0}, {WS_STAMP}")
            s(f"v_mov_b32 v{vX}, 0", "s_mov_b64 exec, 1")
            for i in range(2 * s.nstamp):
                s(f"v_accvgpr_read_b32 v{vY}, a{STAMP0 + i}", f"buffer_store_dword v{vY}, v{vX}, {srd(WS)}, s{sT0} offen offset:{4 * i}", "s_waitcnt vmcnt(0)")
        s("s_endpgm")

        raw = lambda its: [s(it if isinstance(it, str) else it[1]) for it in its]
        s("L_slow:")
        s("s_waitcnt vmcnt(0) lgkmcnt(0)", "s_barrier")
        for i in range(16): s(f"v_mov_b32 v{vACC + i}, 0xff800000")
        s(f"s_mov_b32 s{sKV}, 0", f"s_mov_b32 s{sPASS}, 0")
        s("L_slow_loop:")
        raw(s.kv_dma(0)[:3] + s.kv_dma(0)[-1:])
        s("s_waitcnt vmcnt(0)", "s_barrier")
        raw(s.k_reads(0))
        s("s_waitcnt lgkmcnt(0)", "s_barrier")
        raw(s.qk_spine(lambda qt: "0"))
        for qt in range(4):
            b = vS_ + 8 * qt; r = vACC + 4 * qt
            for i in range(4): s(f"v_max3_f32 v{r}, v{r}, v{b + 2 * i}, v{b + 2 * i + 1}")
        s(f"s_add_u32 s{sPASS}, s{sPASS}, 1", f"s_cmp_lt_u32 s{sPASS}, 16", "s_cbranch_scc1 L_slow_loop")
        for qt in range(4):
            r = vACC + 4 * qt
            s(*s.xred(r, r + 1, "v_max_f32")); s(f"v_sub_f32 v{r}, 0, v{r}")
            for i in range(1, 4): s(f"v_mov_b32 v{r + i}, v{r}")
        s(f"s_mov_b32 s{sKV}, 0", f"s_mov_b32 s{sOFF}, 0")
        for t in range(4): raw(s.kv_dma(t))
        s("s_waitcnt vmcnt(0)", "s_barrier")
        raw(s.k_reads(0))
        s("s_waitcnt lgkmcnt(0)")
        raw(s.qk_spine(lambda qt: v(vACC + 4 * qt, 4)))
        raw(s.k_reads(1))
        for qt in range(3):
            E, C = s.job(0, qt); raw(E + C)
        s("s_waitcnt lgkmcnt(0)", "s_branch L_attn")
        s("L_end:", "s_endpgm")
        return s.text()


HEADER = """; Fused kernel: x + attention(LN(x)) * silu(mixer-MLP(LN(x))), one persistent workgroup per CU.
; @launch grid=(256,1,1) block=(256,1,1) lds=163840
.amdgcn_target "amdgcn-amd-amdhsa--gfx950"
.text
.globl {n}
.p2align 8
.type {n},@function
{n}:
"""
FOOTER = """.section .rodata,"a"
.p2align 6
.amdhsa_kernel {n}
  .amdhsa_next_free_vgpr 512
  .amdhsa_next_free_sgpr 102
  .amdhsa_accum_offset 256
  .amdhsa_group_segment_fixed_size 0
  .amdhsa_kernarg_size 104
  .amdhsa_user_sgpr_count 2
  .amdhsa_user_sgpr_kernarg_segment_ptr 1
  .amdhsa_system_sgpr_workgroup_id_x 1
  .amdhsa_float_denorm_mode_32 3
.end_amdhsa_kernel
"""


def generate(**kw):
    g = Gen(**kw)
    body = g.build().replace("CPF_N", str(kw.get('cpfn', 17)))
    return HEADER.format(n=NAME) + body + FOOTER.format(n=NAME), g


if __name__ == "__main__":
    import argparse
    ap = argparse.ArgumentParser()
    ap.add_argument("-o", default="k.s"); ap.add_argument("--amap", type=int, default=2); ap.add_argument("--opts", default="")
    ap.add_argument("--dumps", default=""); ap.add_argument("--stamps", action="store_true"); ap.add_argument("--thr", type=int, default=30)
    A_ = ap.parse_args()
    txt, g = generate(amap=A_.amap, dumps=[d for d in A_.dumps.split(",") if d], stamps=A_.stamps, thr_log2=A_.thr, **eval('dict(%s)' % A_.opts))
    open(A_.o, "w").write(txt)
    print("lines", txt.count("\n"), "pads", g.npad, "stamps", g.stamp_names)
```

```python
import math, struct
from emit import K, spread

NAME = "recurrent_scan__sliding_block_cached__mixer_s_mlp__prompt_kernel"

HPL = 33024
WS_H, WS_FLAG, WS_X1, WS_H2, WS_SP = 0, 0x300000, 0x400000, 0x800000, 0x1000000
WS_DUMP, WS_STAMP = 0x4000000, 0x8000000
SLOT = [65536, 98304, 131072]
SCR = 65536 + 3 * 8192 + 7 * 1024
KVPOS = [32768, 49152, 65536, 81920]
UNIT = [b + h * 4096 for b in (98304, 131072, 65536, 0, 32768) for h in (0, 1)]
sW, sTB, sG, sTH, sCH = 3, 4, 5, 6, 7
X, KC, VC, WQ, WO, W1, W2, W3, W4, OUT, DBG, WS = [8 + 4 * i for i in range(12)]
sT0, sT1, sT2, sT3 = 56, 57, 58, 59
sOFF, sRING, sKV, sKVM = 60, 61, 62, 63
sONE2, sLO, sHI, sINV = 64, 65, 66, 67
sC = 68
sHST, sHLD, sX1ST, sX1LD, sX1S, sH2ST, sH2LD, sSPST, sSPX, sSPLD, sSPY, sXF, sFLG, sFLC = range(76, 90)
sTC, sJ, sJJ, sJC, sB0, sB1, sPASS, sSPIN = range(94, 102)
sW14 = 75
sTD, sJD, sFLD = 70, 71, 74
vL16, vL, vB, vB2 = 0, 1, 2, 3
vT0, vT1 = 4, 12
vD, vE = 20, 24
vS = 28
vX, vY = 30, 31
vX1 = 32
vU, vH, vW4, vPA, vPV = 40, 41, 42, 46, 47
vACC = 48
vQ = 64
vR = 96
vEA = 116
vS_, vP, vRAW = 128, 160, 192
vT3 = 192
aONE, aSEL, STAMP0, aDUMMY = 208, 212, 218, 255


def srd(r): return f"s[{r}:{r + 3}]"
def v(b, n=1): return f"v{b}" if n == 1 else f"v[{b}:{b + n - 1}]"
def a(b, n=1): return f"a{b}" if n == 1 else f"a[{b}:{b + n - 1}]"
def mfma(d, A, B, C): return f"v_mfma_f32_16x16x32_bf16 {d}, {A}, {B}, {C}"
def f2u(x): return struct.unpack('<I', struct.pack('<f', x))[0]
def sel(n): return a(aSEL + 2 - 2 * n, 4)
def merge(fill, other):
    for g, its in other.items(): fill.setdefault(g, []).extend(its)


class Gen(K):
    def __init__(s, amap=2, dumps=(), stamps=False, thr_log2=30, only=None, **opt):
        super().__init__()
        s.amap = amap; s.dumps = set(dumps); s.stamps = stamps; s.nstamp = 0; s.thr = thr_log2; s.only = only; s.opt = opt
        s.stamp_names = []

    def stamp(s, name):
        if not s.stamps: return
        if s.only is None:
            if name[0] == '.': return
        elif name not in s.only: return
        i = s.nstamp; s.nstamp += 1
        assert i < 18
        s.stamp_names.append(name)
        s("s_memtime s[90:91]", "s_memrealtime s[92:93]", "s_waitcnt lgkmcnt(0)")
        s(f"v_accvgpr_write_b32 a{STAMP0 + 2 * i}, s90", f"v_accvgpr_write_b32 a{STAMP0 + 1 + 2 * i}, s92")

    def dump(s, name, regs, slot):
        if name not in s.dumps: return
        s("s_waitcnt vmcnt(0) lgkmcnt(0)", "s_nop 7", "s_nop 7")
        s(f"s_lshl_b32 s{sT0}, s{sTB}, 5", f"s_lshl_b32 s{sT1}, s{sG}, 2", f"s_add_u32 s{sT0}, s{sT0}, s{sT1}", f"s_add_u32 s{sT0}, s{sT0}, s{sW}")
        s(f"s_mul_i32 s{sT0}, s{sT0}, {len(regs) * 256}", f"s_add_u32 s{sT0}, s{sT0}, {WS_DUMP + slot * 0x1000000}")
        s(f"v_lshlrev_b32 v{vX}, 2, v{vL}")
        for r in regs:
            s(f"buffer_store_dword {r}, v{vX}, {srd(WS)}, s{sT0} offen", f"s_add_u32 s{sT0}, s{sT0}, 256", "s_waitcnt vmcnt(0)")

    def mk_srd(s, r, ptr, size, off=None):
        if off is None:
            s(f"s_mov_b32 s{r}, s{ptr}", f"s_mov_b32 s{r + 1}, s{ptr + 1}", f"s_mov_b32 s{r + 2}, {size}")
        else:
            s(f"s_add_u32 s{r}, s{ptr}, s{off}", f"s_addc_u32 s{r + 1}, s{ptr + 1}, 0", f"s_sub_u32 s{r + 2}, {size}, s{off}")
        s(f"s_mov_b32 s{r + 3}, 0x20000")

    def lin(s, dst, const, *terms):
        (r0, m0), rest = terms[0], terms[1:]
        mul = lambda d, r, m: f"s_lshl_b32 s{d}, s{r}, {int(math.log2(m))}" if m & (m - 1) == 0 else f"s_mul_i32 s{d}, s{r}, {m}"
        s(mul(dst, r0, m0))
        for r, m in rest: s(mul(sT0, r, m), f"s_add_u32 s{dst}, s{dst}, s{sT0}")
        if const: s(f"s_add_u32 s{dst}, s{dst}, {const}")

    def t256q(s, dst, base_s):
        s(f"v_lshrrev_b32 v{vX}, 4, v{vL}", f"v_bfe_u32 v{vY}, v{vL}, 2, 2", f"v_lshl_add_u32 v{vX}, v{vX}, 2, v{vY}", f"v_lshlrev_b32 v{dst}, 8, v{vX}",
          f"v_lshl_add_u32 v{dst}, v{vY}, 6, v{dst}", f"v_and_b32 v{vY}, 3, v{vL}", f"v_lshl_add_u32 v{dst}, v{vY}, 4, v{dst}", f"v_add_u32 v{dst}, s{base_s}, v{dst}")
        for nt in range(1, 8): s(f"v_xor_b32 v{dst + nt}, {((nt >> 1) << 6) | ((nt & 1) << 3)}, v{dst}")

    def t256(s, dst, base_s=None, base_imm=0, kv=False):
        s(f"v_lshrrev_b32 v{vX}, 4, v{vL}", f"v_bfe_u32 v{vY}, v{vL}, 2, 2", f"v_and_b32 v{vU}, 1, v{vX}", f"v_lshl_add_u32 v{vU}, v{vU}, 2, v{vY}")
        if kv: s(f"v_lshrrev_b32 v{vX}, 1, v{vX}", f"v_lshlrev_b32 v{vX}, 12, v{vX}", f"v_lshl_add_u32 v{dst}, v{vU}, 8, v{vX}")
        else: s(f"v_lshl_add_u32 v{vX}, v{vX}, 2, v{vY}", f"v_lshlrev_b32 v{dst}, 8, v{vX}")
        s(f"v_and_b32 v{vY}, 3, v{vL}", f"v_lshl_add_u32 v{dst}, v{vY}, 3, v{dst}", f"v_lshl_add_u32 v{dst}, v{vU}, 5, v{dst}")
        if base_s is not None: s(f"v_add_u32 v{dst}, s{base_s}, v{dst}")
        if base_imm: s(f"v_add_u32 v{dst}, {base_imm}, v{dst}")
        for nt in range(1, 8): s(f"v_xor_b32 v{dst + nt}, {nt << 5}, v{dst}")

    def t128(s, dst, n, base_s=None, base_imm=0, pair_s=None):
        s(f"v_lshrrev_b32 v{vX}, 4, v{vL}", f"v_bfe_u32 v{vY}, v{vL}, 2, 2", f"v_lshl_add_u32 v{vU}, v{vX}, 2, v{vY}", f"v_lshlrev_b32 v{dst}, 7, v{vU}",
          f"v_bfe_u32 v{vU}, v{vU}, 1, 2", f"v_lshl_add_u32 v{dst}, v{vU}, 5, v{dst}", f"v_and_b32 v{vY}, 3, v{vL}", f"v_lshl_add_u32 v{dst}, v{vY}, 3, v{dst}")
        if base_s is not None: s(f"v_add_u32 v{dst}, s{base_s}, v{dst}")
        if base_imm: s(f"v_add_u32 v{dst}, {base_imm}, v{dst}")
        if pair_s is not None: s(f"s_lshl_b32 s{sT0}, s{pair_s}, 6", f"v_xor_b32 v{dst}, s{sT0}, v{dst}")
        for nt in range(1, n): s(f"v_xor_b32 v{dst + nt}, {nt << 5}, v{dst}")

    def d256(s, dst, RS, natural, blk=False):
        if blk:
            s(f"v_lshrrev_b32 v{vX}, 4, v{vL}", f"v_lshlrev_b32 v{vY}, 6, v{vX}", f"v_and_b32 v{vU}, 0xf0, v{vL16}", f"v_xor_b32 v{vY}, v{vY}, v{vU}",
              f"v_mul_u32_u24 v{vX}, {RS}, v{vX}", f"v_add_u32 v{dst}, v{vX}, v{vY}")
            for p in range(1, 4): s(f"v_add_u32 v{dst + p}, {8 * p * RS - 1024 * p}, v{dst}")
            return
        s(f"v_lshrrev_b32 v{vX}, 4, v{vL}", f"v_lshlrev_b32 v{vY}, 5, v{vX}", f"v_and_b32 v{vU}, 0xf0, v{vL16}", f"v_xor_b32 v{vY}, v{vY}, v{vU}",
          f"v_mul_u32_u24 v{vX}, {RS}, v{vX}", f"v_add_u32 v{dst}, v{vX}, v{vY}", f"v_xor_b32 v{vY}, 0x80, v{vY}", f"v_add_u32 v{vX}, v{vX}, v{vY}")
        ro = lambda p: (8 if natural else 4) * p * RS - 1024 * p
        s(f"v_add_u32 v{dst + 1}, {ro(1)}, v{vX}", f"v_add_u32 v{dst + 2}, {ro(2)}, v{dst}", f"v_add_u32 v{dst + 3}, {ro(3)}, v{vX}")

    def d128(s, dst, RS, natural, oob_w3=False):
        s(f"v_lshrrev_b32 v{vX}, 3, v{vL}")
        if natural: s(f"v_lshrrev_b32 v{vY}, 2, v{vX}", f"v_and_b32 v{vX}, 3, v{vX}", f"v_lshl_add_u32 v{vX}, v{vY}, 3, v{vX}")
        s(f"v_mul_u32_u24 v{vX}, {RS}, v{vX}", f"v_lshrrev_b32 v{vY}, 4, v{vL}", f"v_lshlrev_b32 v{vY}, 5, v{vY}", f"v_and_b32 v{vU}, 0x70, v{vL16}", f"v_xor_b32 v{vY}, v{vY}, v{vU}",
          f"v_add_u32 v{dst}, v{vX}, v{vY}")
        if oob_w3:
            s(f"s_cmp_eq_u32 s{sW}, 3", f"s_cselect_b32 s{sT0}, 23, 31", f"v_and_b32 v{vY}, 64, v{vY}", f"v_lshlrev_b32 v{vY}, s{sT0}, v{vY}", f"v_add_u32 v{dst}, v{dst}, v{vY}")
        for q in range(1, 4):
            ro = ((16 * (q & 1) + 4 * (q >> 1)) if natural else 8 * q) * RS - 1024 * q
            s(f"v_add_u32 v{dst + q}, {ro}, v{dst}")

    def dma4(s, vo, S, soff, m0s, m0imm, tag, n=4):
        return [f"s_add_u32 m0, s{m0s}, {m0imm}"] + [('vm', f"buffer_load_dwordx4 v{vo + p}, {srd(S)}, s{soff} offen offset:{1024 * p} lds", tag) for p in range(n)]

    def pstep_dma(s, vo, S, step_bytes, half_bytes, slot, tag):
        return s.dma4(vo, S, sOFF, sRING, slot * 32768, tag) + [f"s_add_u32 s{sOFF}, s{sOFF}, {half_bytes}"] \
            + s.dma4(vo, S, sOFF, sRING, slot * 32768 + 4096, tag) + [f"s_add_u32 s{sOFF}, s{sOFF}, {step_bytes - half_bytes}"]

    def w12_dma(s, S, half, tag):
        it = []
        for k in range(2):
            it += [f"s_lshl_b32 s{sB0}, s{sW}, 16", f"s_add_u32 s{sB0}, s{sB0}, {(half * 8 + k) * 32768}"] + s.dma4(vE, S, sB0, sRING, 32768 * (1 + half) + 4096 * k, tag)
        return it

    def kv_dma(s, t):
        ld = lambda i, S: ('vm', f"buffer_load_dwordx4 v{vE + i}, {srd(S)}, s{sKV} offen offset:{1024 * i} lds", ('kv', t))
        return [f"s_add_u32 m0, s{sKVM}, {KVPOS[(t + 2) & 3]}", ld(0, KC), ld(1, KC), ld(2, VC), ld(3, VC), f"s_add_u32 s{sKV}, s{sKV}, 8192"]

    def signal(s, field):
        L = s.label('sig')
        s(f"s_or_b32 s{sT0}, s{sW}, s{sPASS}" if field == 1 else f"s_mov_b32 s{sT0}, s{sW}", f"s_cmp_lg_u32 s{sT0}, 0", f"s_cbranch_scc1 {L}")
        if field < 2:
            s(f"s_lshl_b32 s{sT0}, s{sTB}, 3", f"v_mov_b32 v{vX}, s{sT0}", f"v_mov_b32 v{vY}, {1 << (8 * field)}", "s_mov_b64 exec, 1")
            s.vmem(f"buffer_atomic_add v{vY}, v{vX}, {srd(DBG)}, 0 offen sc1", None, cond=True)
        else:
            s(f"v_mov_b32 v{vX}, s{sFLC if field == 2 else sFLG}", f"v_mov_b32 v{vY}, 1", "s_mov_b64 exec, 1")
            s.vmem(f"buffer_store_dword v{vY}, v{vX}, {srd(WS)}, 0 offen offset:{(field - 2) * 128} sc1", None, cond=True)
        s("s_mov_b64 exec, -1", f"{L}:")

    def poll_load(s, field):
        if field < 2: return f"buffer_load_dword v{vPV}, v{vPA}, {srd(DBG)}, 0 offen sc1"
        return f"buffer_load_dword v{vPV}, v{vPA}, {srd(WS)}, 0 offen offset:{(field - 2) * 128} sc1"

    def poll_items(s, field, tag):
        if field == 0:
            it = [f"v_min_u32 v{vPA}, 2, v{vL}", f"v_add_u32 v{vPA}, s{sTB}, v{vPA}", f"v_subrev_u32 v{vPA}, 1, v{vPA}",
                  f"v_max_i32 v{vPA}, 0, v{vPA}", f"v_min_i32 v{vPA}, 31, v{vPA}", f"v_lshlrev_b32 v{vPA}, 3, v{vPA}"]
        elif field == 1:
            it = [f"s_lshl_b32 s{sT0}, s{sTD}, 3", f"v_mov_b32 v{vPA}, s{sT0}", f"s_lshl_b32 s{sT0}, s{sTC}, 3", f"v_writelane_b32 v{vPA}, s{sT0}, 0"]
        else: it = [f"v_and_b32 v{vPA}, 7, v{vL}", f"v_lshl_add_u32 v{vPA}, v{vPA}, 2, s{sFLD}"]
        return it + [('vm', s.poll_load(field), tag)]

    def poll_test(s, field):
        if field < 2: return [f"v_bfe_u32 v{vPV}, v{vPV}, {8 * field}, 8", f"v_cmp_gt_u32 vcc, 8, v{vPV}"]
        return [f"v_cmp_ne_u32 vcc, 1, v{vPV}"]

    def spin(s, field):
        Lsp, Lok = s.label('spin'), s.label('ok')
        s(f"s_mov_b32 s{sSPIN}, 0", f"{Lsp}:")
        s.vmem(s.poll_load(field), None, cond=True)
        s("s_waitcnt vmcnt(0)", f"s_add_u32 s{sSPIN}, s{sSPIN}, 1", f"s_cmp_gt_u32 s{sSPIN}, 0x40000", f"s_cbranch_scc1 {Lok}")
        s(*s.poll_test(field)); s(f"s_cbranch_vccnz {Lsp}", f"{Lok}:")

    def poll_check(s, field, tag):
        L = s.label('rdy')
        s.wait(vm=tag)
        s(*s.poll_test(field)); s(f"s_cbranch_vccz {L}")
        s.spin(field)
        s(f"{L}:")

    def xred(s, r, tmp, op):
        return [f"v_mov_b32 v{tmp}, v{r}", f"v_permlane32_swap_b32 v{r}, v{tmp}", f"{op} v{r}, v{r}, v{tmp}",
                f"v_mov_b32 v{tmp}, v{r}", f"v_permlane16_swap_b32 v{r}, v{tmp}", f"{op} v{r}, v{r}, v{tmp}"]

    def ln_stats(s, tagf):
        SUM, SQ = vACC, vACC + 4
        sp, fl = [], {}
        for m in range(16):
            R = v(vRAW + 4 * m, 4)
            if m % 4 == 0: fl[2 * m - 1] = [('wait', tagf(m // 4), None)]
            sp += [mfma(v(SUM, 4), a(aONE, 4), R, "0" if m == 0 else v(SUM, 4)), mfma(v(SQ, 4), R, R, "0" if m == 0 else v(SQ, 4))]
        return sp, fl

    def ln_centre(s, first, wr_addr):
        SUM, SQ, NEG = vACC, vACC + 4, vACC + 8
        s(f"v_and_b32 v{vX}, 3, v{vL}", f"v_cmp_eq_u32 s[{sT0}:{sT0 + 1}], 1, v{vX}", f"v_cmp_eq_u32 s[{sT2}:{sT2 + 1}], 2, v{vX}", f"v_cmp_eq_u32 vcc, 3, v{vX}",
          f"v_lshrrev_b32 v{vX}, 4, v{vL}", f"v_bfe_u32 v{vY}, v{vL}, 2, 2")
        for i in range(4): s(f"v_mul_f32 v{NEG + i}, {f2u(-1.0 / 512)}, v{SUM + i}")
        stat = [f"v_cndmask_b32 v{SQ}, v{SQ}, v{SQ + 1}, s[{sT0}:{sT0 + 1}]", f"v_cndmask_b32 v{SQ}, v{SQ}, v{SQ + 2}, s[{sT2}:{sT2 + 1}]",
                f"v_cndmask_b32 v{SQ}, v{SQ}, v{SQ + 3}, vcc", f"v_cmp_eq_u32 vcc, v{vX}, v{vY}", f"v_mul_f32 v{SUM + 1}, v{NEG}, v{NEG}", f"v_and_b32 v{vX}, 15, v{vL}",
                f"v_cndmask_b32 v{SQ}, 0, v{SQ}, vcc"]
        stat += s.xred(SQ, SQ + 1, "v_add_f32")
        stat += [f"v_fma_f32 v{SQ}, v{SQ}, s{sINV}, -v{SUM + 1}", f"v_max_f32 v{SQ}, 0, v{SQ}", f"v_add_f32 v{SQ + 1}, {f2u(1e-5)}, v{SQ}", f"v_rsq_f32 v{SUM}, v{SQ + 1}",
                 f"s_lshl_b32 s{sT0}, s{sW}, {7 if first else 6}", f"s_add_u32 s{sT0}, s{sT0}, {SCR}", f"v_lshl_add_u32 v{vX}, v{vX}, {3 if first else 2}, s{sT0}"]
        if first:
            stat += [f"v_mul_f32 v{SQ}, v{SQ}, v{SUM}", f"v_mul_f32 v{SQ}, v{SQ}, v{SUM}", f"v_add_f32 v{SQ}, {f2u(1e-5)}, v{SQ}", f"v_rsq_f32 v{SQ}, v{SQ}", "s_nop 0",
                     f"v_mul_f32 v{SUM + 1}, v{SQ}, v{SUM}", ('lds', f"ds_write_b64 v{vX}, {v(SUM, 2)}", 'rw')]
        else:
            stat += [('lds', f"ds_write_b32 v{vX}, v{SUM}", 'rw')]
        spine = [mfma(v(128 + 8 * (m & 3) + 4 * u, 4), sel(u), v(vRAW + 4 * m, 4), v(NEG, 4)) for m in range(16) for u in range(2)]

        def out(m):
            t = 128 + 8 * (m & 3); p = 160 + 4 * (m & 3)
            return [f"v_cvt_pk_bf16_f32 v{p + i}, v{t + 2 * i}, v{t + 2 * i + 1}" for i in range(4)] + [('lds', f"ds_write_b128 v{wr_addr}, {v(p, 4)} offset:{m * 1024}", 'lnw')]
        fill = {}
        for m in range(14):
            o = out(m)
            fill.setdefault(2 * m + 4, []).extend(o[:2]); fill.setdefault(2 * m + 5, []).extend(o[2:])
        spread(fill, stat, 0, 27)
        s.weave(spine, fill)
        for it in out(14) + out(15): s.item(it)

    def gelu_pairs(s, regs, tmp):
        for b in range(0, len(regs), 4):
            grp = list(zip(regs[b:b + 4], [tmp + 2 * i for i in range(4)]))
            for (r, c), t in grp: s(f"v_pk_mul_f32 {v(t, 2)}, {v(r, 2)}, {v(r, 2)}")
            for (r, c), t in grp: s(f"v_pk_fma_f32 {v(t, 2)}, {v(t, 2)}, {v(c, 2)}, {v(c, 2)} op_sel:[0,0,1] op_sel_hi:[1,0,1]")
            for (r, c), t in grp: s(f"v_pk_mul_f32 {v(t, 2)}, {v(t, 2)}, {v(r, 2)}")
            for (r, c), t in grp: s(f"v_exp_f32 v{t}, v{t}", f"v_exp_f32 v{t + 1}, v{t + 1}")
            for (r, c), t in grp: s(f"v_pk_fma_f32 {v(t, 2)}, {v(t, 2)}, {v(c + 2, 2)}, {v(c + 2, 2)} op_sel_hi:[1,0,0]")
            for (r, c), t in grp: s(f"v_rcp_f32 v{t}, v{t}", f"v_rcp_f32 v{t + 1}, v{t + 1}")
            for (r, c), t in grp: s(f"v_pk_mul_f32 {v(r, 2)}, {v(t, 2)}, {v(r, 2)}")

    def gelu_consts(s, dst, r):
        kk = 2 * 0.7978845608028654 * 1.4426950408889634
        return [f"v_mul_f32 v{dst}, v{r}, v{r}", f"v_mul_f32 v{dst + 1}, {f2u(-kk)}, v{r}", f"v_rcp_f32 v{dst + 2}, v{r}",
                f"v_mul_f32 v{dst}, v{dst}, v{dst + 1}", f"v_mul_f32 v{dst}, {f2u(0.044715)}, v{dst}"]

    def stype_reads(s, m, tagp):
        buf = 16 * (m & 3)
        B = [('lds', f"ds_read_b128 {a(buf + 8 + 4 * i, 4)}, v{vB2} offset:{(16 * i + m) * 1024}", (tagp, m)) for i in range(2)]
        A = [[('lds', f"ds_read_b64_tr_b16 {a(buf + 4 * i + 2 * jh, 2)}, v{vS + i} offset:{m * 4096 + jh * 2048}", (tagp, m)) for jh in range(2)] for i in range(2)]
        return [B, A[0], A[1]]

    def stype(s, tagp, extra):
        spine = []; fill = {}
        for m in range(16):
            buf = 16 * (m & 3)
            for n in range(2):
                for t in range(2):
                    d = v(vACC + 8 * n + 4 * t, 4)
                    spine.append(mfma(d, a(buf + 4 * n, 4), a(buf + 8 + 4 * t, 4), "0" if m == 0 else d))
            if m + 3 < 16:
                for i, grp in enumerate(s.stype_reads(m + 3, tagp)): fill.setdefault(4 * m + i, []).extend(grp)
            fill.setdefault(4 * m - 1, []).append(('wait', None, (tagp, m)))
        merge(fill, extra)
        s.weave(spine, fill)

    def p_reads_A(s, st, tagp):
        buf = 32 * (st & 1); slot = st % 3
        base = vT1 if slot == 2 else vT0; off = 32768 if slot == 1 else 0
        return [[('lds', f"ds_read_b64_tr_b16 {a(buf + 4 * nt + 2 * jh, 2)}, v{base + nt} offset:{off + jh * 4096}", (tagp, st, 'a' if nt < 4 else 'b')) for jh in range(2)]
                for nt in range(8)]

    def p_bbuf(s, st, bpre):
        return 96 + 16 * (st - 14) if (bpre and st >= 14) else 64 + 16 * (st & 1)

    def p_reads_B(s, st, tagp, bpre=False):
        buf = s.p_bbuf(st, bpre)
        B = [('lds', f"ds_read_b128 {a(buf + 4 * tt, 4)}, v{vB} offset:{(16 * tt + st) * 1024}", (tagp, st, 'a')) for tt in range(4)]
        return [B[:2], B[2:]]

    def ptype(s, tagp, vo, S, step_bytes, half_bytes, extra, bpre=False):
        for st in range(16):
            ab = 32 * (st & 1); bb = s.p_bbuf(st, bpre)
            spine = [mfma(v(128 + 16 * nt + 4 * tt, 4), a(ab + 4 * nt, 4), a(bb + 4 * tt, 4), "0" if st == 0 else v(128 + 16 * nt + 4 * tt, 4))
                     for nt in range(8) for tt in range(4)]
            ex = extra(st)
            fill = {-1: [('wait', None, (tagp, st, 'a'))], 1: [('wait', None, 0)]}
            merge(fill, ex.get('early', {}))
            dm = s.pstep_dma(vo, S, step_bytes, half_bytes, st % 3, (tagp, 'd', st + 3)) if st + 3 < 16 else ex.get('dma', [])
            if st + 1 < 16:
                spread(fill, dm, 2, 9)
                fill.setdefault(9, []).append(('wait', (tagp, 'd', st + 1), None))
                A = s.p_reads_A(st + 1, tagp)
                if bpre and st >= 13: rd = A
                else:
                    B = s.p_reads_B(st + 1, tagp); rd = [B[0], A[0], B[1]] + A[1:]
                spread(fill, rd, 10, 26)
                if bpre and st == 12: spread(fill, s.p_reads_B(14, tagp, True) + s.p_reads_B(15, tagp, True), 27, 30)
            else:
                spread(fill, dm, 2, 31)
            merge(fill, ex.get('at', {}))
            if ex.get('alu'): spread(fill, ex['alu'], *ex.get('alug', (2, 31)))
            if ex.get('vm2'): spread(fill, ex['vm2'], 11, 31)
            s.weave(spine, fill)
            s.stamp(f'.{tagp}{st}')

    def k_reads(s, t):
        off = KVPOS[(t + 2) & 3] - KVPOS[0]
        return [('lds', f"ds_read_b128 {a(144 + 16 * u + 4 * ds, 4)}, v{vT1 + ds} offset:{off + u * 8192}", ('K', t, 'ab'[u])) for u in range(2) for ds in range(4)]

    def v_reads(s, t):
        off = KVPOS[(t + 2) & 3] - KVPOS[0]
        return [('lds', f"ds_read_b64_tr_b16 {a(176 + 4 * dt + 2 * jh, 2)}, v{vT0 + dt} offset:{off + jh * 8192}", ('V', t, 'ab'[dt >> 2])) for dt in range(8) for jh in range(2)]

    def qk_spine(s, cinit):
        return [mfma(v(vS_ + 8 * qt + 4 * u, 4), a(144 + 16 * u + 4 * ds, 4), v(vQ + 16 * ds + 4 * qt, 4), v(vS_ + 8 * qt + 4 * u, 4) if ds else cinit(qt))
                for qt in range(4) for u in range(2) for ds in range(4)]

    def pv_spine(s, t, l_first=False):
        pv, L = [], []
        for qt in range(4):
            p = v(vP + 16 * (t & 1) + 4 * qt, 4)
            pv.append([mfma(a(16 * dt + 4 * qt, 4), a(176 + 4 * dt, 4), p, "0" if t == 0 else a(16 * dt + 4 * qt, 4)) for dt in range(8)])
            L.append(mfma(a(128 + 4 * qt, 4), a(aONE, 4), p, "0" if t == 0 else a(128 + 4 * qt, 4)))
        if l_first: return L + sum(pv, [])
        return sum([pv[qt] + [L[qt]] for qt in range(4)], [])

    def job(s, t, qt):
        b = vS_ + 8 * qt
        return ([f"v_exp_f32 v{b + i}, v{b + i}" for i in range(8)],
                [f"v_cvt_pk_bf16_f32 v{vP + 16 * (t & 1) + 4 * qt + i}, v{b + 2 * i}, v{b + 2 * i + 1}" for i in range(4)])

    def build(s):
        o = s.opt
        pa, cmap, pf = o.get('pa', s.amap), o.get('cmap', 4), o.get('pf', 1)
        s("s_cmp_ge_u32 s2, 256", "s_cbranch_scc1 L_end")
        if o.get('perm'):
            s(f"s_mul_i32 s2, s2, {o['perm']}", "s_add_u32 s2, s2, 11", "s_and_b32 s2, s2, 255")
        s.stamp('start')
        s("s_load_dwordx16 s[64:79], s[0:1], 0", "s_load_dwordx8 s[80:87], s[0:1], 64", "s_load_dwordx2 s[88:89], s[0:1], 96")
        s(f"v_and_b32 v{vL}, 63, v0", f"v_lshrrev_b32 v{vX}, 6, v0", f"v_readfirstlane_b32 s{sW}, v{vX}")
        if o.get('cpf', 1):
            L = s.label('cpf')
            s(f"s_cmp_lt_u32 s{sW}, 3", f"s_cbranch_scc1 {L}", f"s_getpc_b64 s[{sT2}:{sT3}]", "L_pcbase:")
            s(f"s_lshr_b32 s{sT0}, s2, 3", f"s_mul_i32 s{sT0}, s{sT0}, CPF_N", f"v_add_u32 v{vX}, s{sT0}, v{vL}", f"v_lshlrev_b32 v{vX}, 7, v{vX}",
              f"v_min_u32 v{vX}, L_end-L_pcbase, v{vX}", f"v_mov_b32 v{vY}, s{sT3}", f"v_add_co_u32 v{vX}, vcc, s{sT2}, v{vX}", f"v_addc_co_u32 v{vY}, vcc, 0, v{vY}, vcc",
              "s_mov_b64 exec, (1<<CPF_N)-1")
            s.vmem(f"global_load_dword a{aDUMMY}, v[{vX}:{vY}], off", None, cond=True)
            s("s_mov_b64 exec, -1", f"{L}:")
        s(f"s_and_b32 s{sT0}, s2, 7", f"s_lshr_b32 s{sT1}, s2, 3")

        def mapping(am, rT, rG):
            lg = int(math.log2(am))
            s(f"s_and_b32 s{rG}, s{sT0}, {8 // am - 1}", f"s_lshl_b32 s{rG}, s{rG}, {lg}", f"s_and_b32 s{sT2}, s{sT1}, {am - 1}", f"s_add_u32 s{rG}, s{rG}, s{sT2}")
            s(f"s_andn2_b32 s{rT}, s{sT1}, {am - 1}", f"s_lshr_b32 s{sT2}, s{sT0}, {3 - lg}", f"s_add_u32 s{rT}, s{rT}, s{sT2}")
        mapping(s.amap, sTB, sG)
        s(f"v_and_b32 v{vX}, 15, v{vL}", f"s_lshl_b32 s{sT2}, s{sW}, 4", f"v_add_u32 v{vX}, s{sT2}, v{vX}", f"v_lshlrev_b32 v{vX}, 10, v{vX}",
          f"v_lshrrev_b32 v{vY}, 4, v{vL}", f"v_lshl_add_u32 v{vU}, v{vY}, 4, v{vX}", f"s_lshl_b32 s{sOFF}, s{sTB}, 16")
        s("s_waitcnt lgkmcnt(0)")
        s.stamp('.k')
        s.mk_srd(X, 64, 0x200000)
        for m in range(16):
            s.vmem(f"buffer_load_dwordx4 {v(vRAW + 4 * m, 4)}, v{vU}, {srd(X)}, s{sOFF} offen offset:{m * 64}", ('x', m // 4))
        s.stamp('.xi')
        mapping(cmap, sTC, sJ)
        s(f"s_lshr_b32 s{sJC}, s{sT1}, {int(math.log2(cmap))}")
        s(f"s_lshr_b32 s{sJJ}, s{sT1}, {int(math.log2(s.amap))}" if pa == s.amap else f"s_lshr_b32 s{sJJ}, s{sTB}, {int(math.log2(pa))}")
        s(f"s_and_b32 s{sTH}, s{sW}, 1", f"s_lshr_b32 s{sCH}, s{sW}, 1", f"v_lshlrev_b32 v{vL16}, 4, v{vL}")
        s.lin(sT3, 0, (sG, 1024), (sW, 256)); s.mk_srd(WQ, 70, 0x400000, sT3)
        s.lin(sT3, 0, (sG, 128)); s.mk_srd(W1, 76, 0x80000, sT3); s.mk_srd(W2, 78, 0x80000, sT3)
        s.lin(sT3, 1536 * 256, (sG, 1 << 19)); s.mk_srd(KC, 66, 0x400000, sT3)
        s(f"s_sub_u32 s{sT3}, s{sT3}, 2048"); s.mk_srd(VC, 68, 0x400000, sT3)
        s.lin(sT3, 0, (sG, 1 << 19), (sW, 256)); s.mk_srd(WO, 72, 0x400000, sT3)
        s.lin(sT3, 0, (sJ, 448), (sW, 128)); s.mk_srd(W3, 80, 0x1c0000, sT3)
        dmap = o.get('dmap', 4)
        s(f"s_and_b32 s{sT0}, s2, 7")
        mapping(dmap, sTD, sJD)
        s.lin(sT3, 0, (sJD, 128)); s.mk_srd(W4, 82, 0x1c0000, sT3)
        s.mk_srd(OUT, 84, 0x200000); s.mk_srd(DBG, 86, 256); s.mk_srd(WS, 88, 0x10000000)
        s(f"s_mov_b32 s{sONE2}, 0x3f803f80", f"s_mov_b32 s{sLO}, 0x00003f80", f"s_mov_b32 s{sHI}, 0x3f800000", f"s_mov_b32 s{sINV}, {f2u(1.0 / 512)}")
        s(f"s_mov_b32 s{sC}, {f2u(-1.4426950408889634)}", f"s_mov_b32 s{sC + 1}, {f2u(-1.4426950408889634)}")
        s(f"s_lshl_b32 s{sKVM}, s{sW}, 12", f"s_mov_b32 s{sKV}, 0", f"s_mov_b32 s{sPASS}, 0")
        s.lin(sRING, SLOT[0], (sW, 8192))
        s.d128(vE, 1024, True)
        noswap = o.get('noswap', 0)
        s.d256(vD, 8192, True, blk=noswap)
        s.lin(sHST, WS_H + 128, (sG, 8 * HPL), (sCH, 4 * HPL), (sTB, 1024), (sTH, 512))
        s.lin(sHLD, WS_H, (sTB, 1024), (sW, 256))
        s.lin(sX1ST, WS_X1, (sTB, 65536), (sTH, 32768), (sG, 2048), (sCH, 1024))
        s.lin(sX1LD, WS_X1, (sTC, 65536), (sW, 16384))
        s.lin(sX1S, WS_X1, (sTD, 65536), (sTH, 32768), (sJD, 2048), (sCH, 1024))
        s.lin(sH2ST, WS_H2, (sTC, 229376), (sJ, 7 * 4096), (sW, 8192))
        s.lin(sH2LD, WS_H2, (sTD, 229376), (sW, 4096))
        s.lin(sSPST, WS_SP, (sTB, 1 << 19), (sW, 1 << 17), (sG, 1024))
        s(f"s_and_b32 s{sSPX}, s{sTB}, 15", f"s_lshl_b32 s{sSPX}, s{sSPX}, 13")
        s.lin(sSPLD, WS_SP, (sTD, 1 << 19), (sJD, 1 << 16), (sCH, 1 << 15), (sTH, 1 << 14))
        s(f"s_and_b32 s{sSPY}, s{sSPLD}, 0x1e000", f"s_andn2_b32 s{sSPLD}, s{sSPLD}, 0x1e000", f"s_and_b32 s{sT0}, s{sTD}, 15", f"s_lshl_b32 s{sT0}, s{sT0}, 13",
          f"s_xor_b32 s{sSPY}, s{sSPY}, s{sT0}")
        s.lin(sXF, 0, (sTD, 65536), (sTH, 32768), (sJD, 128), (sCH, 64))
        s.lin(sFLG, WS_FLAG, (sTB, 256), (sG, 4)); s.lin(sFLC, WS_FLAG, (sTC, 256), (sJ, 4)); s.lin(sFLD, WS_FLAG, (sTD, 256))
        s(f"v_lshrrev_b32 v{vX}, 4, v{vL}", f"v_lshlrev_b32 v{vY}, 5, v{vX}", f"v_xor_b32 v{vB}, v{vY}, v{vL16}")
        s(f"v_mul_u32_u24 v{vX}, {HPL}, v{vX}", f"v_and_b32 v{vY}, 0xf0, v{vB}", f"v_add_u32 v{vH}, v{vX}, v{vY}", f"v_and_b32 v{vY}, 0xf0, v{vL16}", f"v_add_u32 v{vEA}, v{vX}, v{vY}")
        s(f"s_lshl_b32 s{sT0}, s{sTH}, 15", f"v_add_u32 v{vB2}, s{sT0}, v{vB}", f"s_lshl_b32 s{sW14}, s{sW}, 14", f"v_add_u32 v{vEA + 1}, s{sW14}, v{vB}")
        if noswap: s.t256q(vT0, sRING)
        else: s.t256(vT0, base_s=sRING)
        for nt in range(8): s(f"v_add_u32 v{vT1 + nt}, 0x10000, v{vT0 + nt}")
        s.t128(vS, 2, base_imm=SLOT[1], pair_s=sCH)
        s(f"v_lshrrev_b32 v{vX}, 1, v{vY}" if False else f"v_and_b32 v{vX}, 15, v{vL}", f"v_lshlrev_b32 v{vX}, 3, v{vX}", f"v_add_u32 v{vEA + 2}, {SCR}, v{vX}", f"s_lshl_b32 s{sT0}, s{sTH}, 8",
          f"v_add_u32 v{vEA + 3}, s{sT0}, v{vEA + 2}")
        s.lin(sT1, 0, (sG, 2048), (sCH, 1024), (sTH, 32768))
        s(f"v_lshrrev_b32 v{vX}, 5, v{vL}", f"v_mul_u32_u24 v{vX}, 0x120, v{vX}", f"v_and_b32 v{vY}, 0xf0, v{vL16}", f"v_xor_b32 v{vX}, v{vX}, v{vY}",
          f"v_bfe_u32 v{vY}, v{vL}, 4, 1", f"v_lshl_add_u32 v{vX}, v{vY}, 3, v{vX}", f"v_add_u32 v{vEA + 4}, s{sT1}, v{vX}", f"v_xor_b32 v{vEA + 5}, 0x240, v{vEA + 4}")
        if pf:
            lg = int(math.log2(pa))
            s(f"v_lshrrev_b32 v{vX}, {lg + 1}, v{vL}", f"v_lshlrev_b32 v{vX}, 18, v{vX}", f"v_bfe_u32 v{vY}, v{vL}, 1, {lg}" if lg else f"v_mov_b32 v{vY}, 0",
              f"s_lshl_b32 s{sT0}, s{sJJ}, {lg}", f"v_add_u32 v{vY}, s{sT0}, v{vY}", f"v_lshl_add_u32 v{vX}, v{vY}, 13, v{vX}", f"v_and_b32 v{vY}, 1, v{vL}",
              f"v_lshl_add_u32 v{vEA + 6}, v{vY}, 7, v{vX}")
        for i in range(4): s(f"v_accvgpr_write_b32 a{aONE + i}, s{sONE2}")
        for i in (0, 1, 4, 5): s(f"v_accvgpr_write_b32 a{aSEL + i}, 0")
        s(f"v_and_b32 v{vX}, 16, v{vL16}", f"v_lshlrev_b32 v{vU}, v{vX}, s{sLO}", f"v_lshrrev_b32 v{vX}, 4, v{vL}", f"v_bfe_u32 v{vY}, v{vL}, 2, 2", f"v_cmp_eq_u32 vcc, v{vX}, v{vY}",
          f"v_and_b32 v{vX}, 2, v{vL}", f"v_cndmask_b32 v{vU}, 0, v{vU}, vcc", f"v_cmp_eq_u32 vcc, 0, v{vX}", "s_nop 1", f"v_cndmask_b32 v{vY}, 0, v{vU}, vcc",
          f"v_sub_u32 v{vX}, v{vU}, v{vY}", f"v_accvgpr_write_b32 a{aSEL + 2}, v{vY}", f"v_accvgpr_write_b32 a{aSEL + 3}, v{vX}")
        touch_wq = [[f"s_mov_b32 s{sB1}, {(k * (32 // pa) + 1) * 32 * 8192}", ('vm', f"buffer_load_dword a{aDUMMY}, v{vEA + 6}, {srd(WQ)}, s{sB1} offen", None)]
                    for k in range(-(-15 // (32 // pa)))] if pf else []
        up = o.get('w1up', 1)
        w1items = s.w12_dma(W1, 0, 'w1') + s.w12_dma(W1, 1, 'w1')
        s.stamp('.alu')
        for it in w1items[:7 * up]: s.item(it)
        s.stamp('setup')

        def ln1():
            sp, fl = s.ln_stats(lambda k: ('x', k))
            s.weave(sp, fl)
            s.ln_centre(True, vEA + 1)
        back = w1items[7 * up:] + [f"s_mov_b32 s{sOFF}, 0"] + s.dma4(vD, WQ, sOFF, sRING, 0, ('q', 'd', 0)) \
            + [f"s_mov_b32 s{sOFF}, {4 * 8192}"] + s.dma4(vD, WQ, sOFF, sRING, 4096, ('q', 'd', 0), n=3) + touch_wq
        s.bg(s.capture(ln1), back, o.get('lnlo', 0.05), o.get('lnhi', 0.95))
        s.stamp('ln1')
        s.wait(vm='w1', lg=0)
        s("s_barrier")

        for tt in range(4): s.lds(f"ds_read_b64 {v(vR + 2 * tt, 2)}, v{vEA + 2} offset:{tt * 128}", 'r2')
        for t in range(2): s.lds(f"ds_read_b64 {v(vR + 8 + 2 * t, 2)}, v{vEA + 3} offset:{t * 128}", 'r2')
        for m in range(3): s.item(s.stype_reads(m, 'b1'))
        for n in range(2):
            for t in range(2): s.lds(f"ds_read_b64 {v(vX1 + 4 * t + 2 * n, 2)}, v{vEA + 4 + n} offset:{t * 16384}", 'xs')
        late = {7: ["s_barrier", f"s_add_u32 m0, s{sRING}, 4096", f"s_mov_b32 s{sB0}, {4 * 8192}",
                    ('vm', f"buffer_load_dwordx4 v{vD + 3}, {srd(WQ)}, s{sB0} offen offset:3072 lds", ('q', 'd', 0)), f"s_mov_b32 s{sOFF}, {32 * 8192}"]}
        s.stype('b1', late)
        s.wait(lg=0)
        s("s_barrier")
        s.stamp('b1')

        def b1_epi():
            for t in range(2): s(*s.gelu_consts(vR + 12 + 4 * t, vR + 9 + 2 * t))
            s.gelu_pairs([(vACC + 8 * n + 4 * t + 2 * j, vR + 12 + 4 * t) for n in range(2) for t in range(2) for j in range(2)], vQ)
            for t in range(2):
                for n in range(2):
                    for j in range(2):
                        r = vACC + 8 * n + 4 * t + 2 * j
                        s(f"v_cvt_pk_bf16_f32 v{vQ + 16 + 4 * t + 2 * n + j}, v{r}, v{r + 1}")
                s.vmem(f"buffer_store_dwordx4 {v(vQ + 16 + 4 * t, 4)}, v{vEA}, {srd(WS)}, s{sHST} offen offset:{t * 256} sc1", 'hst')
            c = 1.4426950408889634 / math.sqrt(128)
            for tt in range(4): s(f"v_mul_f32 v{vACC + 2 * tt}, {f2u(c)}, v{vR + 2 * tt}")
            for i in range(8): s(f"v_lshlrev_b32 v{vQ + 2 * i}, 16, v{vX1 + i}", f"v_and_b32 v{vQ + 2 * i + 1}, 0xffff0000, v{vX1 + i}")
            for i in range(8): s(f"v_pk_mul_f32 {v(vQ + 2 * i, 2)}, {v(vQ + 2 * i, 2)}, {v(vR + 8 + 2 * (i >> 2), 2)} op_sel_hi:[1,0]")
            for i in range(8): s(f"v_cvt_pk_bf16_f32 v{vX1 + i}, v{vQ + 2 * i}, v{vQ + 2 * i + 1}")
        qA = s.p_reads_A(0, 'q')
        s.bg(s.capture(b1_epi), s.pstep_dma(vD, WQ, 32 * 8192, 4 * 8192, 1, ('q', 'd', 1)) + s.pstep_dma(vD, WQ, 32 * 8192, 4 * 8192, 2, ('q', 'd', 2))[:7]
             + s.p_reads_B(0, 'q') + [[('wait', ('q', 'd', 0), None)] + qA[0]] + qA[1:], 0.0, 0.98)
        for it in s.pstep_dma(vD, WQ, 32 * 8192, 4 * 8192, 2, ('q', 'd', 2))[7:]: s.item(it)
        Lp = s.label('pad')
        s(f"s_cmp_lg_u32 s{sW}, 0", f"s_cbranch_scc1 {Lp}")
        s(f"v_lshl_add_u32 v{vX}, v{vL}, 7, s{sFLG}", "s_mov_b64 exec, 3")
        for i in range(4): s(f"v_mov_b32 v{vQ + 24 + i}, 0")
        s.vmem(f"buffer_store_dword v{vQ + 24}, v{vX}, {srd(WS)}, 0 offen sc1", None, cond=True)
        s("s_mov_b64 exec, -1")
        s(f"s_add_u32 s{sT1}, s{sTB}, 1", f"s_and_b32 s{sT1}, s{sT1}, 30", f"s_cmp_lg_u32 s{sT1}, 0", f"s_cbranch_scc1 {Lp}")
        s(f"s_cmp_eq_u32 s{sTB}, 0", f"s_cselect_b32 s{sT1}, {WS_H}, {WS_H + (8 + 2048) * 16}", f"s_mul_i32 s{sT0}, s{sG}, {8 * HPL}", f"s_add_u32 s{sT0}, s{sT0}, s{sT1}")
        s(f"v_lshrrev_b32 v{vX}, 3, v{vL}", f"v_mul_u32_u24 v{vX}, {HPL}, v{vX}", f"v_and_b32 v{vY}, 0x70, v{vL16}", f"v_add_u32 v{vX}, v{vX}, v{vY}")
        for i in range(4): s(f"v_mov_b32 v{vQ + 24 + i}, 0")
        s.vmem(f"buffer_store_dwordx4 {v(vQ + 24, 4)}, v{vX}, {srd(WS)}, s{sT0} offen sc1", None, cond=True)
        s(f"{Lp}:")
        s.stamp('b1epi')

        def h_dma(lo, hi):
            shift = [1, -1, 2, -2]
            return [[f"s_add_u32 m0, s{sW14}, {m * 1024}", f"s_add_u32 s{sB1}, s{sHLD}, {m * 4 * HPL + (8 - shift[m >> 2]) * 16}",
                     ('vm', f"buffer_load_dwordx4 v{vH}, {srd(WS)}, s{sB1} offen sc1 lds", 'h')] for m in range(lo, hi)]

        def kv_offsets():
            s(f"v_lshrrev_b32 v{vX}, 4, v{vL}", f"s_lshl_b32 s{sT0}, s{sW}, 3", f"v_add_u32 v{vX}, s{sT0}, v{vX}", f"v_and_b32 v{vY}, 0xf0, v{vL16}",
              f"v_lshl_add_u32 v{vY}, v{vX}, 8, v{vY}", f"v_and_b32 v{vU}, 15, v{vX}", f"v_lshlrev_b32 v{vU}, 4, v{vU}", f"v_xor_b32 v{vE}, v{vY}, v{vU}",
              f"v_xor_b32 v{vE + 1}, 0x40, v{vE}", f"v_and_b32 v{vU}, 7, v{vX}", f"v_lshlrev_b32 v{vU}, 5, v{vU}", f"v_xor_b32 v{vE + 2}, v{vY}, v{vU}",
              f"v_xor_b32 v{vE + 3}, 0x80, v{vE + 2}")

        def attn_addr():
            s.t256(vT0, base_imm=KVPOS[0] + 2048, kv=True)
            s(f"v_and_b32 v{vX}, 8, v{vL}", f"v_lshlrev_b32 v{vX}, 9, v{vX}", f"v_and_b32 v{vY}, 7, v{vL}", f"v_lshl_add_u32 v{vX}, v{vY}, 8, v{vX}",
              f"v_lshrrev_b32 v{vY}, 4, v{vL}", f"v_and_b32 v{vU}, 15, v{vL}", f"v_xor_b32 v{vY}, v{vY}, v{vU}", f"v_lshl_add_u32 v{vX}, v{vY}, 4, v{vX}",
              f"v_add_u32 v{vT1}, {KVPOS[0]}, v{vX}")
            for ds in range(1, 4): s(f"v_xor_b32 v{vT1 + ds}, {ds << 6}, v{vT1}")
        def kv_touch():
            L = s.label('tk'); nk = 32 * pa
            assert nk == 64
            return [f"v_lshlrev_b32 v{vX}, 7, v{vL}", f"s_mul_i32 s{sT0}, s{sJJ}, {nk * 128}", f"s_cmp_lg_u32 s{sW}, 0", f"s_cbranch_scc1 {L}a",
                    ('vm', f"buffer_load_dword a{aDUMMY}, v{vX}, {srd(KC)}, s{sT0} offen", None, True), f"{L}a:", f"s_cmp_lg_u32 s{sW}, 1", f"s_cbranch_scc1 {L}b",
                    ('vm', f"buffer_load_dword a{aDUMMY}, v{vX}, {srd(VC)}, s{sT0} offen offset:2048", None, True), f"{L}b:"]
        hpre = o.get('hpre', 1)
        nh13, nh14, nh15 = o.get('nh', (4, 4, 5) if hpre else (0, 0, 6))
        nh15 += nh13 + nh14

        def q_extra(st):
            ex = {'at': {}}
            if st == 0: ex['alu'] = s.capture(lambda: s.d128(vE, 1024, False)); ex['alug'] = (27, 31)
            if st == 2: ex['at'][9] = ["s_barrier", lambda: s.signal(0)]
            if pf and st == o.get('tw2', 9):
                L = s.label('tw'); nw = 16 * pa
                ex['at'][28] = [f"v_lshlrev_b32 v{vX}, 10, v{vL}", f"s_mul_i32 s{sB1}, s{sJJ}, {nw * 1024}", f"v_cmp_gt_u32 vcc, {nw}, v{vL}", f"s_cmp_lg_u32 s{sW}, 2",
                                f"v_cndmask_b32 v{vX}, -1, v{vX}, vcc", f"s_cbranch_scc1 {L}",
                                ('vm', f"buffer_load_dword a{aDUMMY}, v{vX}, {srd(W2)}, s{sB1} offen", None, True), f"{L}:"]
            if pf and st == o.get('tkvq', -1): ex['at'][30] = kv_touch()
            if st == (10 if hpre else 11): ex['at'][12] = s.poll_items(0, 'p1')
            if st == 11: ex['alu'] = s.capture(lambda: s.d128(vW4, 1024, False)); ex['alug'] = (14, 31)
            if st == 13:
                ex['dma'] = s.w12_dma(W2, 0, 'w2')
                ex['alu'] = s.capture(lambda: s.d128(vD, 3584, False, oob_w3=True)); ex['alug'] = (11, 31)
                if hpre:
                    ex['at'][10] = [lambda: s.poll_check(0, 'p1'), "s_barrier"]
                    ex['vm2'] = h_dma(0, nh13)
            if st == 14:
                ex['dma'] = s.w12_dma(W2, 1, 'w2')
                ex['alu'] = s.capture(kv_offsets); ex['alug'] = (11, 31)
                if hpre: ex['vm2'] = h_dma(nh13, nh13 + nh14)
                else: ex['at'][9] = [lambda: s.poll_check(0, 'p1')]
            if st == 15:
                ex['dma'] = ["s_barrier"] + h_dma(nh13 + nh14, nh15)
                ex['alu'] = s.capture(attn_addr)
            return ex
        s.ptype('q', vD, WQ, 32 * 8192, 4 * 8192, q_extra, bpre=hpre)
        s.stamp('qproj')

        def q_epi():
            for ds in range(4):
                for tt in range(4):
                    q = vQ + 16 * ds + 4 * tt
                    rr = [128 + 16 * (2 * ds + u) + 4 * tt + 2 * j for u in range(2) for j in range(2)]
                    for r in rr: s(f"v_pk_mul_f32 {v(r, 2)}, {v(r, 2)}, {v(vACC + 2 * tt, 2)} op_sel_hi:[1,0]")
                    for i, r in enumerate(rr): s(f"v_cvt_pk_bf16_f32 v{q + i}, v{r}, v{r + 1}")
                for op in ("v_permlane32_swap_b32", "v_permlane16_swap_b32") if not noswap else ():
                    for tt in range(4):
                        for j in range(2): s(f"{op} v{vQ + 16 * ds + 4 * tt + j}, v{vQ + 16 * ds + 4 * tt + 2 + j}")
        tkv = [kv_touch()] if (pf and o.get('tkv', 1)) else []
        s.bg(s.capture(q_epi), h_dma(nh15, 16) + s.kv_dma(0) + tkv, 0.0, 0.95)
        s.dump('q', [f"v{vQ + i}" for i in range(64)], 0)
        s.stamp('qepi')

        s.wait(vm='h')
        s("s_barrier")
        for m in range(3): s.item(s.stype_reads(m, 'b2'))
        fx = {}
        spread(fx, s.kv_dma(1), 1, 20)
        s.stype('b2', fx)
        kv1late = o.get('kv1late', 1)
        s.wait(vm=('kv', 0 if kv1late else 1), lg=0)
        s("s_barrier")
        s.stamp('b2')

        s(f"s_mov_b32 s{sOFF}, 0")
        for it in s.k_reads(0): s.item(it)
        for n in range(2):
            for t in range(2): s(mfma(v(vACC + 8 * n + 4 * t, 4), sel(n), v(vX1 + 4 * t, 4), v(vACC + 8 * n + 4 * t, 4)))
        x1e = []
        for t in range(2):
            for n in range(2):
                for j in range(2):
                    r = vACC + 8 * n + 4 * t + 2 * j
                    x1e.append(f"v_cvt_pk_bf16_f32 v{vX1 + 4 * t + 2 * n + j}, v{r}, v{r + 1}")
        x1e += [('vm', f"buffer_store_dwordx4 {v(vX1, 4)}, v{vL16}, {srd(WS)}, s{sX1ST} offen", 'x1st'), f"s_add_u32 s{sB0}, s{sX1ST}, 16384",
                ('vm', f"buffer_store_dwordx4 {v(vX1 + 4, 4)}, v{vL16}, {srd(WS)}, s{sB0} offen", 'x1st')]
        x1e = [(it[0], it[1] + " sc1", it[2]) if isinstance(it, tuple) else it for it in x1e]

        def rowmax(qt):
            b = vS_ + 8 * qt; r = vACC + 4 * qt
            it = [f"v_max3_f32 v{r}, v{b}, v{b + 1}, v{b + 2}", f"v_max3_f32 v{r + 1}, v{b + 3}, v{b + 4}, v{b + 5}", f"v_max3_f32 v{r}, v{r}, v{b + 6}, v{b + 7}",
                  f"v_max_f32 v{r}, v{r}, v{r + 1}"] + s.xred(r, r + 1, "v_max_f32")
            it += [f"v_sub_f32 v{r}, 0, v{r}"] + [f"v_mov_b32 v{r + i}, v{r}" for i in range(1, 4)]
            return it + [f"v_add_f32 v{b + i}, v{b + i}, v{r}" for i in range(8)]
        fill = {-1: [('wait', None, ('K', 0, 'a'))], 3: [('wait', None, ('K', 0, 'b'))]}
        spread(fill, x1e, 3, 9)
        spread(fill, rowmax(0), 10, 17)
        spread(fill, rowmax(1) + s.kv_dma(2), 18, 25)
        spread(fill, rowmax(2), 26, 31)
        s.weave(s.qk_spine(lambda qt: "0"), fill)
        if kv1late: s.wait(vm=('kv', 1)); s("s_barrier")
        for it in s.k_reads(1): s.item(it)
        pro = []
        for qt in range(3):
            E, C = s.job(0, qt); pro += E + C
            if qt == 0: pro += rowmax(3)
        s.bg(pro, s.kv_dma(3))
        s.stamp('attn_pro')
        s("L_attn:")

        def x1_loads(lo, hi):
            it = []
            for m in range(lo, hi):
                if m % 4 == 0: it.append(f"s_add_u32 s{sB0}, s{sX1LD}, {m * 1024}")
                it.append(('vm', f"buffer_load_dwordx4 {v(vRAW + 4 * m, 4)}, v{vL16}, {srd(WS)}, s{sB0} offen offset:{(m & 3) * 1024} sc1", ('x1', m // 4)))
            return it

        def w3_dma(ms): return s.pstep_dma(vD, W3, 64 * 3584, 32 * 3584, (ms + 1) % 3, ('c', 'd', ms))

        def touch2(which):
            p_, jj = (pa, sJJ) if which == 'wo' else (cmap, sJC)
            if which == 'w4':
                n = 14 * dmap
                it = [f"v_lshlrev_b32 v{vY}, 10, v{vL}", f"s_lshr_b32 s{sB1}, s2, {3 + int(math.log2(dmap))}", f"s_lshl_b32 s{sB1}, s{sB1}, 2", f"s_add_u32 s{sB1}, s{sB1}, s{sW}",
                      f"s_mul_i32 s{sB1}, s{sB1}, {n * 1024}"]
                for k in range(-(-n // 64)):
                    if n - 64 * k < 64: it += [f"v_cmp_gt_u32 vcc, {n - 64 * k}, v{vL}", "s_nop 1", f"v_cndmask_b32 v{vY}, -1, v{vY}, vcc"]
                    it += [('vm', f"buffer_load_dword a{aDUMMY}, v{vY}, {srd(W4)}, s{sB1} offen", None), f"s_add_u32 s{sB1}, s{sB1}, 65536"]
                return it
            rows = 16 * p_
            RS, S, d = (3584, W3, 124) if which == 'w3' else (1024, WO, 128)
            it = [f"v_lshrrev_b32 v{vX}, 1, v{vL}", f"v_mul_u32_u24 v{vX}, {RS}, v{vX}", f"v_and_b32 v{vY}, 1, v{vL}", f"v_mul_u32_u24 v{vY}, {d}, v{vY}",
                  f"v_add_u32 v{vY}, v{vX}, v{vY}", f"s_mul_i32 s{sB1}, s{jj}, {rows * RS}"]
            if rows < 32: it += [f"v_cmp_gt_u32 vcc, {2 * rows}, v{vL}", "s_nop 1", f"v_cndmask_b32 v{vY}, -1, v{vY}, vcc"]
            for k in range(max(1, rows // 32)):
                it += [('vm', f"buffer_load_dword a{aDUMMY}, v{vY}, {srd(S)}, s{sB1} offen", None), f"s_add_u32 s{sB1}, s{sB1}, {32 * RS}"]
            return it

        P1 = o.get('p1', "E VV E C E VV E C E VV E C E VV E C E VV E C E VV E C E VV E C E VV E C").split()
        P2 = o.get('p2', "E - E C E B E C D E KK E C E D E C D E KK E C E D E C KK E D E C E KK E C D").split()
        assert len(P1) == 32 and len(P2) == 36

        def pattern(P, streams):
            fill = {}; pos = {k: [] for k in streams}; idx = {k: 0 for k in streams}
            for g, tok in enumerate(P):
                for ch in tok:
                    if ch in streams and idx[ch] < len(streams[ch]):
                        fill.setdefault(g, []).append(streams[ch][idx[ch]]); pos[ch].append(g); idx[ch] += 1
            assert all(idx[k] == len(streams[k]) for k in streams)
            return fill, pos

        for t in range(16):
            V = s.v_reads(t)
            EA, CA = s.job(t, 3)
            if t < 15:
                EB, CB = s.job(t + 1, 0)
                spine = s.qk_spine(lambda qt: v(vACC + 4 * qt, 4))
                fill, pos = pattern(P1, {'E': EA + EB, 'C': CA + CB, 'V': V})
                for i in range(8): assert pos['C'][i] >= pos['E'][2 * i + 1]
                assert pos['C'][3] < 24 and pos['E'][8] >= 9
                fill.setdefault(-1, []).append(('wait', None, ('K', t + 1, 'a')))
                fill.setdefault(3, []).insert(0, ('wait', None, ('K', t + 1, 'b')))
            else:
                spine, fill = s.ln_stats(lambda k: ('x1', k))
                merge(fill, pattern(P1, {'E': EA, 'C': CA, 'V': V})[0])
            s.weave(spine, fill)
            spine = s.pv_spine(t, l_first=(t == 15))
            if t < 15:
                EE, CC = [sum(x, []) for x in zip(s.job(t + 1, 1), s.job(t + 1, 2))]
                bar = [[('wait', ('kv', t + 2), None), "s_barrier"] + ([lambda: s.signal(1)] if t == 0 else [])] if t < 14 else []
                fill, pos = pattern(P2, {'E': EE, 'C': CC, 'K': s.k_reads(t + 2) if t < 14 else [], 'D': s.kv_dma(t + 4) if t < 12 else [], 'B': bar})
                for i in range(8): assert pos['C'][i] >= pos['E'][2 * i + 1]
                gb = [g for g, tok in enumerate(P2) if 'B' in tok][0]
                assert all(g > gb for g in pos['K'] + pos['D']) and gb >= 3
                fill.setdefault(-1, []).append(('wait', None, ('V', t, 'a')))
                fill.setdefault(3, []).insert(0, ('wait', None, ('V', t, 'b')))
                ex = []
                tx = o.get('tx', 7)
                tsel = o.get('tsel', {1: 'w3', 3: 'wo', 5: 'w4'})
                if pf and t in tsel:
                    tl = touch2(tsel[t])
                    nv = [i for i, it in enumerate(tl) if isinstance(it, tuple)][0]
                    spread(fill, tl[:nv], gb + 1, 28); spread(fill, tl[nv:], 30, 35)
                if t == tx - 2: ex = s.poll_items(1, 'p2')
                if t == tx: ex = [lambda: s.poll_check(1, 'p2')] + x1_loads(0, 4)
                if tx < t < tx + 4: ex = x1_loads(4 * (t - tx), 4 * (t - tx) + 4)
                if t == tx + 4:
                    ex = [('vm', f"buffer_load_dwordx4 {v(vX1, 4)}, v{vL16}, {srd(WS)}, s{sX1S} offen sc1", 'x1s'), f"s_add_u32 s{sB0}, s{sX1S}, 16384",
                          ('vm', f"buffer_load_dwordx4 {v(vX1 + 4, 4)}, v{vL16}, {srd(WS)}, s{sB0} offen sc1", 'x1s')]
                if t == 14: ex = w3_dma(0)
                spread(fill, ex, 30 if (t < 12 and t >= tx) else gb + 1, 35)
            else:
                fill = {3: [('wait', None, ('V', t, 'a'))], 7: [('wait', None, ('V', t, 'b'))]}
                chk = [f"v_accvgpr_read_b32 v{vS_ + qt}, a{128 + 4 * qt}" for qt in range(4)]
                chk += [f"v_max3_f32 v{vX}, v{vS_}, v{vS_ + 1}, v{vS_ + 2}", f"s_mov_b32 s{sT0}, {f2u(2.0 ** s.thr)}", f"v_max_f32 v{vX}, v{vX}, v{vS_ + 3}",
                        f"v_cmp_u_f32 s[{sT2}:{sT3}], v{vS_}, v{vS_ + 1}", f"v_cmp_u_f32 vcc, v{vS_ + 2}, v{vS_ + 3}", f"s_lshl_b32 s{sT1}, s{sW}, 2",
                        f"s_or_b64 s[{sT2}:{sT3}], s[{sT2}:{sT3}], vcc", f"v_cmp_lt_f32 vcc, s{sT0}, v{vX}", f"s_add_u32 s{sT1}, s{sT1}, {SCR + 768}",
                        f"s_or_b64 vcc, vcc, s[{sT2}:{sT3}]", "s_cmp_lg_u64 vcc, 0", f"s_cselect_b32 s{sT0}, 1, 0", f"v_mov_b32 v{vU}, s{sT1}", f"v_mov_b32 v{vX}, s{sT0}",
                        ('lds', f"ds_write_b32 v{vU}, v{vX}", 'fw'), f"v_and_b32 v{vU}, 3, v{vL}", f"v_lshlrev_b32 v{vU}, 2, v{vU}", f"v_add_u32 v{vU}, {SCR + 768}, v{vU}"]
                chk += [f"v_rcp_f32 v{vS_ + 2 * qt + 8}, v{vS_ + qt}" for qt in range(4)]
                spread(fill, chk, 8, 19)
                fill.setdefault(21, []).extend([('wait', None, 0), "s_barrier", ('lds', f"ds_read_b32 v{vX}, v{vU}", 'fr')])
                spread(fill, w3_dma(1), 22, 35)
                fill.setdefault(28, []).extend([('wait', None, 0), f"v_cmp_ne_u32 vcc, 0, v{vX}", f"s_cmp_eq_u32 s{sPASS}, 0", "s_cselect_b64 s[58:59], -1, 0"])
                fill.setdefault(30, []).append("s_and_b64 s[58:59], vcc, s[58:59]")
            s.weave(spine, fill)
            s.stamp(f'.a{t}')
        s("s_cmp_lg_u64 s[58:59], 0", "s_cbranch_scc1 L_slow")
        s.stamp('attn')

        def o_epi():
            for ds in range(4):
                for qt in range(4):
                    T = vP + 8 * (qt & 1)
                    for u in range(2):
                        for i in range(4): s(f"v_accvgpr_read_b32 v{T + 4 * u + i}, a{16 * (2 * ds + u) + 4 * qt + i}")
                    for i in range(4): s(f"v_pk_mul_f32 {v(T + 2 * i, 2)}, {v(T + 2 * i, 2)}, {v(vS_ + 2 * qt + 8, 2)} op_sel_hi:[1,0]")
                    for i in range(4): s(f"v_cvt_pk_bf16_f32 v{vQ + 16 * ds + 4 * qt + i}, v{T + 2 * i}, v{T + 2 * i + 1}")
        w32 = w3_dma(2)
        s.bg(s.capture(o_epi), w32[:-2], 0.0, 0.8)
        s.dump('o', [f"v{vQ + i}" for i in range(64)], 1)
        s.stamp('oepi')

        def c_reads(ms):
            ab = 32 * (ms & 1); bb = 64 + 32 * (ms & 1)
            slot = (ms + 1) % 3
            base = vT1 if slot == 2 else vT0; off = 32768 if slot == 1 else 0
            A, B = [], []
            for ks in range(2):
                tg = ('c', ms, 'ab'[ks])
                b_ = [('lds', f"ds_read_b128 {a(bb + 16 * ks + 4 * tt, 4)}, v{vB} offset:{(16 * tt + 2 * ms + ks) * 1024}", tg) for tt in range(4)]
                B.append([b_[:2], b_[2:]])
                A.append([[('lds', f"ds_read_b64_tr_b16 {a(ab + 16 * ks + 4 * nt + 2 * jh, 2)}, v{base + nt} offset:{off + ks * 4096 + jh * 2048}", tg) for jh in range(2)]
                          for nt in range(4)])
            return A, B
        s(f"v_add_u32 v{vB2}, s{sW14}, v{vB}")
        s.t128(vT0, 4, base_s=sRING)
        for i in range(4): s(f"v_add_u32 v{vT1 + i}, 0x10000, v{vT0 + i}")
        s.ln_centre(False, vB2)
        A0, B0 = c_reads(0)
        s.wait(vm=('c', 'd', 0))
        for it in A0[0] + A0[1]: s.item(it)
        s(f"v_and_b32 v{vX}, 15, v{vL}", f"v_lshlrev_b32 v{vX}, 2, v{vX}", f"v_add_u32 v{vX}, {SCR}, v{vX}")
        s.wait(lg=0)
        s("s_barrier")
        s.stamp('ln3')
        for it in B0[0] + B0[1]: s.item(it)
        for tt in range(4): s.lds(f"ds_read_b32 v{vACC + 4 * tt + 3}, v{vX} offset:{tt * 64}", 'r3')
        wo_dma = lambda k: ([f"s_mov_b32 s{sOFF}, 0"] if k == 0 else []) + s.pstep_dma(vE, WO, 32 * 1024, 16 * 1024, k, ('o', 'd', k))
        for ms in range(8):
            ab = 32 * (ms & 1); bb = 64 + 32 * (ms & 1)
            spine = [mfma(v(128 + 16 * nt + 4 * tt, 4), a(ab + 16 * ks + 4 * nt, 4), a(bb + 16 * ks + 4 * tt, 4), "0" if (ms == 0 and ks == 0) else v(128 + 16 * nt + 4 * tt, 4))
                     for ks in range(2) for nt in range(4) for tt in range(4)]
            if ms == 0:
                fill = {-1: [('wait', None, ('c', 0, 'a'))], 1: [('wait', None, 0), "s_barrier"] + w32[-2:]}
            else:
                fill = {-1: [('wait', None, ('c', ms, 'a'))], 1: [('wait', None, 0)]}
            spread(fill, w3_dma(ms + 3) if ms + 3 < 8 else wo_dma(ms - 5), 2, 8)
            if ms + 1 < 8:
                fill.setdefault(8, []).append(('wait', ('c', 'd', ms + 1), None))
                A, B = c_reads(ms + 1)
                spread(fill, [B[0][0], A[0][0], B[0][1]] + A[0][1:] + [B[1][0], A[1][0], B[1][1]] + A[1][1:], 9, 27)
            if ms == 1: spread(fill, s.capture(lambda: s.d256(vE, 1024, False)), 10, 31)
            if ms == 2: spread(fill, sum([s.gelu_consts(vACC + 4 * tt, vACC + 4 * tt + 3) for tt in range(4)], []), 10, 31)
            if ms == 7:
                def oaddr():
                    s.t256(vT0, base_s=sRING)
                    for nt in range(8): s(f"v_add_u32 v{vT1 + nt}, 0x10000, v{vT0 + nt}")
                    s(f"s_lshl_b32 s{sT0}, s{sW}, 12", f"v_add_u32 v{vB2}, s{sT0}, v{vB}")
                spread(fill, s.capture(oaddr), 9, 31)
            s.weave(spine, fill)
            s.stamp(f'.c{ms}')
        s("s_barrier")
        s.stamp('b3')
        ow = [('lds', f"ds_write_b128 v{vB2}, {v(vQ + 16 * ds + 4 * qt, 4)} offset:{qt * 16384 + ds * 1024}", 'ow') for ds in range(4) for qt in range(4)]

        def c_epi(b):
            for tt in range(4):
                s.gelu_pairs([(128 + 16 * (2 * b + n) + 4 * tt + 2 * j, vACC + 4 * tt) for n in range(2) for j in range(2)], 192)
                for n in range(2):
                    for j in range(2):
                        r = 128 + 16 * (2 * b + n) + 4 * tt + 2 * j
                        s(f"v_cvt_pk_bf16_f32 v{208 + 16 * b + 4 * tt + 2 * n + j}, v{r}, v{r + 1}")
                s.vmem(f"buffer_store_dwordx4 {v(208 + 16 * b + 4 * tt, 4)}, v{vL16}, {srd(WS)}, s{sH2ST} offen offset:{tt * 1024} sc1", 'h2st', cond=(b == 1))
        oA = s.p_reads_A(0, 'o')
        s.bg(s.capture(lambda: c_epi(0)), ow + [[('wait', ('o', 'd', 0), None)] + oA[0]] + oA[1:], 0.0, 0.9)
        s.wait(lg=0)
        s("s_barrier")
        s.item(s.p_reads_B(0, 'o'))
        Lw3 = s.label('w3skip')
        s(f"s_cmp_eq_u32 s{sW}, 3", f"s_cbranch_scc1 {Lw3}", f"s_add_u32 s{sH2ST}, s{sH2ST}, 4096")
        c_epi(1)
        s(f"{Lw3}:")
        s.stamp('b3epi')

        hbank = lambda c: 96 + 16 * (c % 7)

        def b4_dma(c):
            return [f"s_lshl_b32 s{sB0}, s{sW}, 15", f"s_add_u32 s{sB0}, s{sB0}, {c * 4 * 32768}", f"s_lshl_b32 s{sB1}, s{sW}, 13"] + s.dma4(vW4, W4, sB0, sB1, UNIT[c % 10], ('yw', c)) \
                + [f"s_add_u32 s{sB0}, s{sH2LD}, {c * 4 * 4096}"] \
                + [('vm', f"buffer_load_dwordx4 {a(hbank(c) + 4 * tt, 4)}, v{vL16}, {srd(WS)}, s{sB0} offen offset:{tt * 1024} sc1", ('y', c)) for tt in range(4)]

        def yaddr():
            s(f"s_lshl_b32 s{sT1}, s{sW}, 13")
            s.t128(vT0, 4, base_s=sT1)
            for wdw in (1, 2):
                for i in range(4): s(f"v_add_u32 v{vT0 + 4 * wdw + i}, {0x10000 * wdw}, v{vT0 + i}")
            s(f"v_and_b32 v{vX}, 15, v{vL}", f"v_lshlrev_b32 v{vX}, 10, v{vX}", f"v_lshrrev_b32 v{vY}, 4, v{vL}", f"v_lshl_add_u32 v{vD}, v{vY}, 4, v{vX}")
            s.lin(sT1, 98304, (sW, 8192)); s(f"v_add_u32 v{vD + 1}, s{sT1}, v{vL16}")
            s.lin(sT1, 98304, (sCH, 32768), (sTH, 4096)); s(f"v_add_u32 v{vD + 2}, s{sT1}, v{vL16}")

        def h2_touch():
            per = 1792 // dmap // 4
            it = [f"v_lshlrev_b32 v{vX}, 7, v{vL}", f"s_lshr_b32 s{sB1}, s2, 3", f"s_and_b32 s{sB1}, s{sB1}, {dmap - 1}", f"s_lshl_b32 s{sB1}, s{sB1}, 2",
                  f"s_add_u32 s{sB1}, s{sB1}, s{sW}", f"s_mul_i32 s{sB1}, s{sB1}, {per * 128}", f"s_mul_i32 s{sT0}, s{sTD}, 229376",
                  f"s_add_u32 s{sB1}, s{sB1}, s{sT0}", f"s_add_u32 s{sB1}, s{sB1}, {WS_H2}"]
            for k in range(-(-per // 64)):
                if per - 64 * k < 64: it += [f"v_cmp_gt_u32 vcc, {per - 64 * k}, v{vL}", "s_nop 1", f"v_cndmask_b32 v{vX}, -1, v{vX}, vcc"]
                it += [('vm', f"buffer_load_dword a{aDUMMY}, v{vX}, {srd(WS)}, s{sB1} offen sc1", None), f"s_add_u32 s{sB1}, s{sB1}, 8192"]
            return [it]

        def o_extra(st):
            ex = {'at': {}}
            if st == 2: ex['at'][9] = ["s_barrier", lambda: s.signal(2)]
            if st == 11: ex['at'][12] = s.poll_items(2, 'p3')
            if st == 13:
                ex['early'] = {1: [lambda: s.poll_check(2, 'p3')]}
                ex['dma'] = (h2_touch() if o.get('h2t', 0) else []) + b4_dma(0)
            if st == 14: ex['dma'] = b4_dma(1)
            if st == 15:
                ex['dma'] = b4_dma(2) + ["s_barrier"]
                ex['alu'] = s.capture(yaddr); ex['alug'] = (2, 24)
            return ex
        s.ptype('o', vE, WO, 32 * 1024, 16 * 1024, o_extra)
        s.stamp('oproj')

        def ka_reads(c):
            b = vT0 + 4 * (UNIT[c % 10] >> 16); o_ = UNIT[c % 10] & 0xffff
            return [[('lds', f"ds_read_b64_tr_b16 {a(16 * (c & 1) + 4 * nt + 2 * jh, 2)}, v{b + nt} offset:{o_ + jh * 2048}", ('ya', c)) for jh in range(2)] for nt in range(4)]

        def sp_store(k):
            b, tt = k // 4, k % 4
            return [f"s_xor_b32 s{sB0}, s{sSPX}, {b * 32768 + tt * 8192}", f"s_add_u32 s{sB0}, s{sB0}, s{sSPST}",
                    ('vm', f"buffer_store_dwordx4 {v(vQ + 16 * b + 4 * tt, 4)}, v{vL16}, {srd(WS)}, s{sB0} offen sc1", 'spst')]
        spreg = lambda t, src: (224 + 16 * t + 4 * (src >> 1)) if src % 2 == 0 else (vQ + 16 * t + 4 * (src >> 1))

        def sp_loads(par):
            it = []
            for t in range(2):
                for h in range(2):
                    it += [f"s_xor_b32 s{sT0}, s{sSPY}, {t * 8192}", f"s_add_u32 s{sT0}, s{sT0}, s{sSPLD}", f"s_add_u32 s{sT0}, s{sT0}, {h * 4096}"]
                    it += [('vm', f"buffer_load_dwordx4 {v(spreg(t, 4 * h + 2 * k + par), 4)}, v{vL16}, {srd(WS)}, s{sT0} offen offset:{(2 * k + par) * 1024} sc1", None, True) for k in range(2)]
            return it

        def take(par, test, blocking):
            L = s.label('sp')
            s(f"s_bitcmp1_b32 s{sPASS}, {par}", f"s_cbranch_scc1 {L}")
            if blocking: s.spin(3)
            else: s(*test); s(f"s_cbranch_vccnz {L}")
            s(f"s_bitset1_b32 s{sPASS}, {par}")
            s.item(sp_loads(par)); s(f"{L}:")
        D = o.get('kd', 6)
        x_final = [('vm', f"buffer_load_dwordx4 {v(192, 4)}, v{vD}, {srd(X)}, s{sXF} offen", 'xf'), f"s_add_u32 s{sT1}, s{sXF}, 16384",
                   ('vm', f"buffer_load_dwordx4 {v(196, 4)}, v{vD}, {srd(X)}, s{sT1} offen", 'xf')]
        cA, cB, cl = o.get('cA', 6), o.get('cB', 7), o.get('cl', 10)
        even_mask = f"s_mov_b64 s[{sT2}:{sT3}], 0x55"

        def b4_steps(var, cs, csig):
            s.wait(vm=('yw', 0))
            s.item(ka_reads(0))
            for k in range(16):
                for n in range(2):
                    for j in range(2):
                        r = 128 + 16 * (2 * (k // 4) + n) + 4 * (k % 4) + 2 * j
                        s(f"v_cvt_pk_bf16_f32 v{vQ + 16 * (k // 4) + 4 * (k % 4) + 2 * n + j}, v{r}, v{r + 1}")
                if cs < 0: s.item(sp_store(k))
            if var == 0: s.stamp('spst')
            for c in range(14):
                if c == csig:
                    s.wait(vm='spst'); s("s_barrier"); s.signal(3)
                spine = [mfma(v(128 + 16 * nt + 4 * tt, 4), a(16 * (c & 1) + 4 * nt, 4), a(hbank(c) + 4 * tt, 4), "0" if c == 0 else v(128 + 16 * nt + 4 * tt, 4))
                         for nt in range(4) for tt in range(4)]
                fill = {-1: [('wait', ('y', c), ('ya', c))]}
                ld_ = sum([b4_dma(k) for k in (range(3, D + 1) if c == 0 else [c + D]) if k < 14], [])
                spread(fill, ld_ + ([sp_store(k) for k in range(16)] if c == cs else []), 0, 8)
                if c + 1 < 14:
                    fill.setdefault(9, []).append(('wait', ('yw', c + 1), None))
                    spread(fill, ka_reads(c + 1), 9, 12)
                if c == cA - 1: spread(fill, s.poll_items(3, 'p4'), 10, 15)
                if c == cB - 1: spread(fill, [('vm', s.poll_load(3), 'p5')], 10, 15)
                if c == cA: fill.setdefault(15, []).extend([('wait', 'p4', None), lambda: take(0, s.poll_test(3) + [even_mask, f"s_and_b64 vcc, vcc, s[{sT2}:{sT3}]"], False)])
                if c == cB: fill.setdefault(15, []).extend([('wait', 'p5', None), lambda: take(0, s.poll_test(3), False), lambda: take(1, s.poll_test(3), False)])
                if c == cl: fill.setdefault(15, []).extend([lambda: take(0, None, True), lambda: take(1, None, True)])
                if c == 9: spread(fill, x_final, 0, 8)
                s.weave(spine, fill)
                if var == 0: s.stamp(f'.y{c}')
        s(f"s_mov_b32 s{sPASS}, 0")
        if o.get('stag', 0):
            snap = (list(s.vm), list(s.lg))
            s(f"s_bitcmp1_b32 s{sG}, 0", "s_cbranch_scc1 L_b4_late")
            b4_steps(0, -1, o.get('csig0', 2))
            s("s_branch L_b4_join", "L_b4_late:")
            s.vm, s.lg = snap
            b4_steps(1, o.get('cs1', 2), o.get('csig1', 4))
            s("L_b4_join:")
        else:
            b4_steps(0, -1, o.get('csig0', 2))
        T, U = 208, 144
        wr = [('lds', f"ds_write_b128 v{vD + 1}, {v(128 + 16 * nt + 4 * tt, 4)} offset:{(nt >> 1) * 32768 + (tt >> 1) * 4096 + ((nt & 1) * 2 + (tt & 1)) * 1024}", None)
              for nt in range(4) for tt in range(4)]
        fill = {-1: wr[:4] + [('wait', 0, None)]}
        spread(fill, wr[4:], 0, 22)
        s.weave([mfma(v(T + 8 * n + 4 * t, 4), sel(n), v(spreg(t, src), 4), "0" if src == 0 else v(T + 8 * n + 4 * t, 4))
                 for src in range(8) for t in range(2) for n in range(2)], fill)
        s.wait(lg=0)
        s("s_barrier")
        for sw in range(4):
            for i in range(4): s.lds(f"ds_read_b128 {v(128 + 16 * sw + 4 * i, 4)}, v{vD + 2} offset:{sw * 8192 + i * 1024}", ('red', sw))
        s.wait(lg=('red', 1))
        for i in range(8): s(f"v_pk_add_f32 {v(vACC + 2 * i, 2)}, {v(128 + 2 * i, 2)}, {v(144 + 2 * i, 2)}")
        s.wait(lg=('red', 3))
        for i in range(8): s(f"v_pk_add_f32 {v(160 + 2 * i, 2)}, {v(160 + 2 * i, 2)}, {v(176 + 2 * i, 2)}")
        for i in range(8): s(f"v_pk_add_f32 {v(vACC + 2 * i, 2)}, {v(vACC + 2 * i, 2)}, {v(160 + 2 * i, 2)}")
        for n in range(2):
            for t in range(2): s(mfma(v(vACC + 8 * n + 4 * t, 4), sel(n), v(vX1 + 4 * t, 4), v(vACC + 8 * n + 4 * t, 4)))
        s.stamp('b4')

        for i in range(8): s(f"v_pk_mul_f32 {v(U + 2 * i, 2)}, {v(vACC + 2 * i, 2)}, s[{sC}:{sC + 1}]")
        for i in range(8): s(f"v_pk_mul_f32 {v(T + 2 * i, 2)}, {v(T + 2 * i, 2)}, {v(vACC + 2 * i, 2)}")
        for i in range(16): s(f"v_exp_f32 v{U + i}, v{U + i}")
        for i in range(8): s(f"v_pk_add_f32 {v(U + 2 * i, 2)}, {v(U + 2 * i, 2)}, 1.0 op_sel_hi:[1,0]")
        for i in range(16): s(f"v_rcp_f32 v{U + i}, v{U + i}")
        for i in range(8): s(f"v_pk_mul_f32 {v(T + 2 * i, 2)}, {v(T + 2 * i, 2)}, {v(U + 2 * i, 2)}")
        for t in range(2):
            for op in ("v_permlane32_swap_b32", "v_permlane16_swap_b32"):
                for i in range(4): s(f"{op} v{T + 4 * t + i}, v{T + 8 + 4 * t + i}")
            for h in range(2):
                for j in range(2):
                    r = T + 8 * h + 4 * t + 2 * j; xr = 192 + 4 * t + 2 * h + j
                    s(f"v_dot2_f32_bf16 v{r}, v{xr}, s{sLO}, v{r}", f"v_dot2_f32_bf16 v{r + 1}, v{xr}, s{sHI}, v{r + 1}")
            for h in range(2):
                for j in range(2):
                    r = T + 8 * h + 4 * t + 2 * j
                    s(f"v_cvt_pk_bf16_f32 v{200 + 4 * t + 2 * h + j}, v{r}, v{r + 1}")
            s.vmem(f"buffer_store_dwordx4 {v(200 + 4 * t, 4)}, v{vD}, {srd(OUT)}, s{sT1 if t else sXF} offen", None)
        if s.stamps and o.get('dbgstamp'):
            s.stamp('end')
            L = s.label('ds')
            s(f"s_cmp_lg_u32 s{sW}, 0", f"s_cbranch_scc1 {L}", "s_mov_b64 exec, 1", f"v_mov_b32 v{vX}, 0")
            s(f"v_accvgpr_read_b32 v{vU}, a{STAMP0 + 1}", f"v_accvgpr_read_b32 v{vY}, a{STAMP0 + 1 + 2 * (s.nstamp - 1)}", f"v_not_b32 v{vH}, v{vU}")
            s(f"buffer_atomic_umax v{vY}, v{vX}, {srd(DBG)}, 0 offen offset:4 sc1", f"buffer_atomic_umax v{vH}, v{vX}, {srd(DBG)}, 0 offen offset:12 sc1", "s_waitcnt vmcnt(0)")
            for i in range(1, min(7, s.nstamp)):
                s(f"v_accvgpr_read_b32 v{vY}, a{STAMP0 + 1 + 2 * i}", f"v_sub_u32 v{vY}, v{vY}, v{vU}",
                  f"buffer_atomic_add v{vY}, v{vX}, {srd(DBG)}, 0 offen offset:{12 + 8 * i} sc1", "s_waitcnt vmcnt(0)")
            s(f"{L}:")
        elif s.stamps:
            s.stamp('end')
            s(f"s_lshl_b32 s{sT0}, s2, 2", f"s_add_u32 s{sT0}, s{sT0}, s{sW}", f"s_lshl_b32 s{sT0}, s{sT0}, 9", f"s_add_u32 s{sT0}, s{sT0}, {WS_STAMP}")
            s(f"v_mov_b32 v{vX}, 0", "s_mov_b64 exec, 1")
            for i in range(2 * s.nstamp):
                s(f"v_accvgpr_read_b32 v{vY}, a{STAMP0 + i}", f"buffer_store_dword v{vY}, v{vX}, {srd(WS)}, s{sT0} offen offset:{4 * i}", "s_waitcnt vmcnt(0)")
        s("s_endpgm")

        raw = lambda its: [s(it if isinstance(it, str) else it[1]) for it in its]
        s("L_slow:")
        s("s_waitcnt vmcnt(0) lgkmcnt(0)", "s_barrier")
        for i in range(16): s(f"v_mov_b32 v{vACC + i}, 0xff800000")
        s(f"s_mov_b32 s{sKV}, 0", f"s_mov_b32 s{sPASS}, 0")
        s("L_slow_loop:")
        raw(s.kv_dma(0)[:3] + s.kv_dma(0)[-1:])
        s("s_waitcnt vmcnt(0)", "s_barrier")
        raw(s.k_reads(0))
        s("s_waitcnt lgkmcnt(0)", "s_barrier")
        raw(s.qk_spine(lambda qt: "0"))
        for qt in range(4):
            b = vS_ + 8 * qt; r = vACC + 4 * qt
            for i in range(4): s(f"v_max3_f32 v{r}, v{r}, v{b + 2 * i}, v{b + 2 * i + 1}")
        s(f"s_add_u32 s{sPASS}, s{sPASS}, 1", f"s_cmp_lt_u32 s{sPASS}, 16", "s_cbranch_scc1 L_slow_loop")
        for qt in range(4):
            r = vACC + 4 * qt
            s(*s.xred(r, r + 1, "v_max_f32")); s(f"v_sub_f32 v{r}, 0, v{r}")
            for i in range(1, 4): s(f"v_mov_b32 v{r + i}, v{r}")
        s(f"s_mov_b32 s{sKV}, 0", f"s_mov_b32 s{sOFF}, 0")
        for t in range(4): raw(s.kv_dma(t))
        s("s_waitcnt vmcnt(0)", "s_barrier")
        raw(s.k_reads(0))
        s("s_waitcnt lgkmcnt(0)")
        raw(s.qk_spine(lambda qt: v(vACC + 4 * qt, 4)))
        raw(s.k_reads(1))
        for qt in range(3):
            E, C = s.job(0, qt); raw(E + C)
        s("s_waitcnt lgkmcnt(0)", "s_branch L_attn")
        s("L_end:", "s_endpgm")
        return s.text()


HEADER = """; Fused kernel: x + attention(LN(x)) * silu(mixer-MLP(LN(x))), one persistent workgroup per CU.
; @launch grid=(256,1,1) block=(256,1,1) lds=163840
.amdgcn_target "amdgcn-amd-amdhsa--gfx950"
.text
.globl {n}
.p2align 8
.type {n},@function
{n}:
"""
FOOTER = """.section .rodata,"a"
.p2align 6
.amdhsa_kernel {n}
  .amdhsa_next_free_vgpr 512
  .amdhsa_next_free_sgpr 102
  .amdhsa_accum_offset 256
  .amdhsa_group_segment_fixed_size 0
  .amdhsa_kernarg_size 104
  .amdhsa_user_sgpr_count 2
  .amdhsa_user_sgpr_kernarg_segment_ptr 1
  .amdhsa_system_sgpr_workgroup_id_x 1
  .amdhsa_float_denorm_mode_32 3
.end_amdhsa_kernel
"""


def generate(**kw):
    g = Gen(**kw)
    body = g.build().replace("CPF_N", str(kw.get('cpfn', 17)))
    return HEADER.format(n=NAME) + body + FOOTER.format(n=NAME), g


if __name__ == "__main__":
    import argparse
    ap = argparse.ArgumentParser()
    ap.add_argument("-o", default="k.s"); ap.add_argument("--amap", type=int, default=2); ap.add_argument("--opts", default="")
    ap.add_argument("--dumps", default=""); ap.add_argument("--stamps", action="store_true"); ap.add_argument("--thr", type=int, default=30)
    A_ = ap.parse_args()
    txt, g = generate(amap=A_.amap, dumps=[d for d in A_.dumps.split(",") if d], stamps=A_.stamps, thr_log2=A_.thr, **eval('dict(%s)' % A_.opts))
    open(A_.o, "w").write(txt)
    print("lines", txt.count("\n"), "pads", g.npad, "stamps", g.stamp_names)
```

```python
import math, struct
from emit import K, spread

NAME = "recurrent_scan__sliding_block_cached__mixer_s_mlp__prompt_kernel"

HPL = 33024
WS_H, WS_FLAG, WS_X1, WS_H2, WS_SP = 0, 0x300000, 0x400000, 0x800000, 0x1000000
WS_DUMP, WS_STAMP = 0x4000000, 0x8000000
SLOT = [65536, 98304, 131072]
SCR = 65536 + 3 * 8192 + 7 * 1024
KVPOS = [32768, 49152, 65536, 81920]
UNIT = [b + h * 4096 for b in (98304, 131072, 65536, 0, 32768) for h in (0, 1)]
sW, sTB, sG, sTH, sCH = 3, 4, 5, 6, 7
X, KC, VC, WQ, WO, W1, W2, W3, W4, OUT, DBG, WS = [8 + 4 * i for i in range(12)]
sT0, sT1, sT2, sT3 = 56, 57, 58, 59
sOFF, sRING, sKV, sKVM = 60, 61, 62, 63
sONE2, sLO, sHI, sINV = 64, 65, 66, 67
sC = 68
sHST, sHLD, sX1ST, sX1LD, sX1S, sH2ST, sH2LD, sSPST, sSPX, sSPLD, sSPY, sXF, sFLG, sFLC = range(76, 90)
sTC, sJ, sJJ, sJC, sB0, sB1, sPASS, sSPIN = range(94, 102)
sW14 = 75
sTD, sJD, sFLD = 70, 71, 74
vL16, vL, vB, vB2 = 0, 1, 2, 3
vT0, vT1 = 4, 12
vD, vE = 20, 24
vS = 28
vX, vY = 30, 31
vX1 = 32
vU, vH, vW4, vPA, vPV = 40, 41, 42, 46, 47
vACC = 48
vQ = 64
vR = 96
vEA = 116
vS_, vP, vRAW = 128, 160, 192
vT3 = 192
aONE, aSEL, STAMP0, aDUMMY = 208, 212, 218, 255


def srd(r): return f"s[{r}:{r + 3}]"
def v(b, n=1): return f"v{b}" if n == 1 else f"v[{b}:{b + n - 1}]"
def a(b, n=1): return f"a{b}" if n == 1 else f"a[{b}:{b + n - 1}]"
def mfma(d, A, B, C): return f"v_mfma_f32_16x16x32_bf16 {d}, {A}, {B}, {C}"
def f2u(x): return struct.unpack('<I', struct.pack('<f', x))[0]
def sel(n): return a(aSEL + 2 - 2 * n, 4)
def merge(fill, other):
    for g, its in other.items(): fill.setdefault(g, []).extend(its)


class Gen(K):
    def __init__(s, amap=2, dumps=(), stamps=False, thr_log2=30, only=None, **opt):
        super().__init__()
        s.amap = amap; s.dumps = set(dumps); s.stamps = stamps; s.nstamp = 0; s.thr = thr_log2; s.only = only; s.opt = opt
        s.stamp_names = []

    def stamp(s, name):
        if not s.stamps: return
        if s.only is None:
            if name[0] == '.': return
        elif name not in s.only: return
        i = s.nstamp; s.nstamp += 1
        assert i < 18
        s.stamp_names.append(name)
        s("s_memtime s[90:91]", "s_memrealtime s[92:93]", "s_waitcnt lgkmcnt(0)")
        s(f"v_accvgpr_write_b32 a{STAMP0 + 2 * i}, s90", f"v_accvgpr_write_b32 a{STAMP0 + 1 + 2 * i}, s92")

    def dump(s, name, regs, slot):
        if name not in s.dumps: return
        s("s_waitcnt vmcnt(0) lgkmcnt(0)", "s_nop 7", "s_nop 7")
        s(f"s_lshl_b32 s{sT0}, s{sTB}, 5", f"s_lshl_b32 s{sT1}, s{sG}, 2", f"s_add_u32 s{sT0}, s{sT0}, s{sT1}", f"s_add_u32 s{sT0}, s{sT0}, s{sW}")
        s(f"s_mul_i32 s{sT0}, s{sT0}, {len(regs) * 256}", f"s_add_u32 s{sT0}, s{sT0}, {WS_DUMP + slot * 0x1000000}")
        s(f"v_lshlrev_b32 v{vX}, 2, v{vL}")
        for r in regs:
            s(f"buffer_store_dword {r}, v{vX}, {srd(WS)}, s{sT0} offen", f"s_add_u32 s{sT0}, s{sT0}, 256", "s_waitcnt vmcnt(0)")

    def mk_srd(s, r, ptr, size, off=None):
        if off is None:
            s(f"s_mov_b32 s{r}, s{ptr}", f"s_mov_b32 s{r + 1}, s{ptr + 1}", f"s_mov_b32 s{r + 2}, {size}")
        else:
            s(f"s_add_u32 s{r}, s{ptr}, s{off}", f"s_addc_u32 s{r + 1}, s{ptr + 1}, 0", f"s_sub_u32 s{r + 2}, {size}, s{off}")
        s(f"s_mov_b32 s{r + 3}, 0x20000")

    def lin(s, dst, const, *terms):
        (r0, m0), rest = terms[0], terms[1:]
        mul = lambda d, r, m: f"s_lshl_b32 s{d}, s{r}, {int(math.log2(m))}" if m & (m - 1) == 0 else f"s_mul_i32 s{d}, s{r}, {m}"
        s(mul(dst, r0, m0))
        for r, m in rest: s(mul(sT0, r, m), f"s_add_u32 s{dst}, s{dst}, s{sT0}")
        if const: s(f"s_add_u32 s{dst}, s{dst}, {const}")

    def t256q(s, dst, base_s):
        s(f"v_lshrrev_b32 v{vX}, 4, v{vL}", f"v_bfe_u32 v{vY}, v{vL}, 2, 2", f"v_lshl_add_u32 v{vX}, v{vX}, 2, v{vY}", f"v_lshlrev_b32 v{dst}, 8, v{vX}",
          f"v_lshl_add_u32 v{dst}, v{vY}, 6, v{dst}", f"v_and_b32 v{vY}, 3, v{vL}", f"v_lshl_add_u32 v{dst}, v{vY}, 4, v{dst}", f"v_add_u32 v{dst}, s{base_s}, v{dst}")
        for nt in range(1, 8): s(f"v_xor_b32 v{dst + nt}, {((nt >> 1) << 6) | ((nt & 1) << 3)}, v{dst}")

    def t256(s, dst, base_s=None, base_imm=0, kv=False):
        s(f"v_lshrrev_b32 v{vX}, 4, v{vL}", f"v_bfe_u32 v{vY}, v{vL}, 2, 2", f"v_and_b32 v{vU}, 1, v{vX}", f"v_lshl_add_u32 v{vU}, v{vU}, 2, v{vY}")
        if kv: s(f"v_lshrrev_b32 v{vX}, 1, v{vX}", f"v_lshlrev_b32 v{vX}, 12, v{vX}", f"v_lshl_add_u32 v{dst}, v{vU}, 8, v{vX}")
        else: s(f"v_lshl_add_u32 v{vX}, v{vX}, 2, v{vY}", f"v_lshlrev_b32 v{dst}, 8, v{vX}")
        s(f"v_and_b32 v{vY}, 3, v{vL}", f"v_lshl_add_u32 v{dst}, v{vY}, 3, v{dst}", f"v_lshl_add_u32 v{dst}, v{vU}, 5, v{dst}")
        if base_s is not None: s(f"v_add_u32 v{dst}, s{base_s}, v{dst}")
        if base_imm: s(f"v_add_u32 v{dst}, {base_imm}, v{dst}")
        for nt in range(1, 8): s(f"v_xor_b32 v{dst + nt}, {nt << 5}, v{dst}")

    def t128(s, dst, n, base_s=None, base_imm=0, pair_s=None):
        s(f"v_lshrrev_b32 v{vX}, 4, v{vL}", f"v_bfe_u32 v{vY}, v{vL}, 2, 2", f"v_lshl_add_u32 v{vU}, v{vX}, 2, v{vY}", f"v_lshlrev_b32 v{dst}, 7, v{vU}",
          f"v_bfe_u32 v{vU}, v{vU}, 1, 2", f"v_lshl_add_u32 v{dst}, v{vU}, 5, v{dst}", f"v_and_b32 v{vY}, 3, v{vL}", f"v_lshl_add_u32 v{dst}, v{vY}, 3, v{dst}")
        if base_s is not None: s(f"v_add_u32 v{dst}, s{base_s}, v{dst}")
        if base_imm: s(f"v_add_u32 v{dst}, {base_imm}, v{dst}")
        if pair_s is not None: s(f"s_lshl_b32 s{sT0}, s{pair_s}, 6", f"v_xor_b32 v{dst}, s{sT0}, v{dst}")
        for nt in range(1, n): s(f"v_xor_b32 v{dst + nt}, {nt << 5}, v{dst}")

    def d256(s, dst, RS, natural, blk=False):
        if blk:
            s(f"v_lshrrev_b32 v{vX}, 4, v{vL}", f"v_lshlrev_b32 v{vY}, 6, v{vX}", f"v_and_b32 v{vU}, 0xf0, v{vL16}", f"v_xor_b32 v{vY}, v{vY}, v{vU}",
              f"v_mul_u32_u24 v{vX}, {RS}, v{vX}", f"v_add_u32 v{dst}, v{vX}, v{vY}")
            for p in range(1, 4): s(f"v_add_u32 v{dst + p}, {8 * p * RS - 1024 * p}, v{dst}")
            return
        s(f"v_lshrrev_b32 v{vX}, 4, v{vL}", f"v_lshlrev_b32 v{vY}, 5, v{vX}", f"v_and_b32 v{vU}, 0xf0, v{vL16}", f"v_xor_b32 v{vY}, v{vY}, v{vU}",
          f"v_mul_u32_u24 v{vX}, {RS}, v{vX}", f"v_add_u32 v{dst}, v{vX}, v{vY}", f"v_xor_b32 v{vY}, 0x80, v{vY}", f"v_add_u32 v{vX}, v{vX}, v{vY}")
        ro = lambda p: (8 if natural else 4) * p * RS - 1024 * p
        s(f"v_add_u32 v{dst + 1}, {ro(1)}, v{vX}", f"v_add_u32 v{dst + 2}, {ro(2)}, v{dst}", f"v_add_u32 v{dst + 3}, {ro(3)}, v{vX}")

    def d128(s, dst, RS, natural, oob_w3=False):
        s(f"v_lshrrev_b32 v{vX}, 3, v{vL}")
        if natural: s(f"v_lshrrev_b32 v{vY}, 2, v{vX}", f"v_and_b32 v{vX}, 3, v{vX}", f"v_lshl_add_u32 v{vX}, v{vY}, 3, v{vX}")
        s(f"v_mul_u32_u24 v{vX}, {RS}, v{vX}", f"v_lshrrev_b32 v{vY}, 4, v{vL}", f"v_lshlrev_b32 v{vY}, 5, v{vY}", f"v_and_b32 v{vU}, 0x70, v{vL16}", f"v_xor_b32 v{vY}, v{vY}, v{vU}",
          f"v_add_u32 v{dst}, v{vX}, v{vY}")
        if oob_w3:
            s(f"s_cmp_eq_u32 s{sW}, 3", f"s_cselect_b32 s{sT0}, 23, 31", f"v_and_b32 v{vY}, 64, v{vY}", f"v_lshlrev_b32 v{vY}, s{sT0}, v{vY}", f"v_add_u32 v{dst}, v{dst}, v{vY}")
        for q in range(1, 4):
            ro = ((16 * (q & 1) + 4 * (q >> 1)) if natural else 8 * q) * RS - 1024 * q
            s(f"v_add_u32 v{dst + q}, {ro}, v{dst}")

    def dma4(s, vo, S, soff, m0s, m0imm, tag, n=4):
        return [f"s_add_u32 m0, s{m0s}, {m0imm}"] + [('vm', f"buffer_load_dwordx4 v{vo + p}, {srd(S)}, s{soff} offen offset:{1024 * p} lds", tag) for p in range(n)]

    def pstep_dma(s, vo, S, step_bytes, half_bytes, slot, tag):
        return s.dma4(vo, S, sOFF, sRING, slot * 32768, tag) + [f"s_add_u32 s{sOFF}, s{sOFF}, {half_bytes}"] \
            + s.dma4(vo, S, sOFF, sRING, slot * 32768 + 4096, tag) + [f"s_add_u32 s{sOFF}, s{sOFF}, {step_bytes - half_bytes}"]

    def w12_dma(s, S, half, tag):
        it = []
        for k in range(2):
            it += [f"s_lshl_b32 s{sB0}, s{sW}, 16", f"s_add_u32 s{sB0}, s{sB0}, {(half * 8 + k) * 32768}"] + s.dma4(vE, S, sB0, sRING, 32768 * (1 + half) + 4096 * k, tag)
        return it

    def kv_dma(s, t):
        ld = lambda i, S: ('vm', f"buffer_load_dwordx4 v{vE + i}, {srd(S)}, s{sKV} offen offset:{1024 * i} lds", ('kv', t))
        return [f"s_add_u32 m0, s{sKVM}, {KVPOS[(t + 2) & 3]}", ld(0, KC), ld(1, KC), ld(2, VC), ld(3, VC), f"s_add_u32 s{sKV}, s{sKV}, 8192"]

    def signal(s, field):
        L = s.label('sig')
        s(f"s_or_b32 s{sT0}, s{sW}, s{sPASS}" if field == 1 else f"s_mov_b32 s{sT0}, s{sW}", f"s_cmp_lg_u32 s{sT0}, 0", f"s_cbranch_scc1 {L}")
        if field < 2:
            s(f"s_lshl_b32 s{sT0}, s{sTB}, 3", f"v_mov_b32 v{vX}, s{sT0}", f"v_mov_b32 v{vY}, {1 << (8 * field)}", "s_mov_b64 exec, 1")
            s.vmem(f"buffer_atomic_add v{vY}, v{vX}, {srd(DBG)}, 0 offen sc1", None, cond=True)
        else:
            s(f"v_mov_b32 v{vX}, s{sFLC if field == 2 else sFLG}", f"v_mov_b32 v{vY}, 1", "s_mov_b64 exec, 1")
            s.vmem(f"buffer_store_dword v{vY}, v{vX}, {srd(WS)}, 0 offen offset:{(field - 2) * 128} sc1", None, cond=True)
        s("s_mov_b64 exec, -1", f"{L}:")

    def poll_load(s, field):
        if field < 2: return f"buffer_load_dword v{vPV}, v{vPA}, {srd(DBG)}, 0 offen sc1"
        return f"buffer_load_dword v{vPV}, v{vPA}, {srd(WS)}, 0 offen offset:{(field - 2) * 128} sc1"

    def poll_items(s, field, tag):
        if field == 0:
            it = [f"v_min_u32 v{vPA}, 2, v{vL}", f"v_add_u32 v{vPA}, s{sTB}, v{vPA}", f"v_subrev_u32 v{vPA}, 1, v{vPA}",
                  f"v_max_i32 v{vPA}, 0, v{vPA}", f"v_min_i32 v{vPA}, 31, v{vPA}", f"v_lshlrev_b32 v{vPA}, 3, v{vPA}"]
        elif field == 1:
            it = [f"s_lshl_b32 s{sT0}, s{sTD}, 3", f"v_mov_b32 v{vPA}, s{sT0}", f"s_lshl_b32 s{sT0}, s{sTC}, 3", f"v_writelane_b32 v{vPA}, s{sT0}, 0"]
        else: it = [f"v_and_b32 v{vPA}, 7, v{vL}", f"v_lshl_add_u32 v{vPA}, v{vPA}, 2, s{sFLD}"]
        return it + [('vm', s.poll_load(field), tag)]

    def poll_test(s, field):
        if field < 2: return [f"v_bfe_u32 v{vPV}, v{vPV}, {8 * field}, 8", f"v_cmp_gt_u32 vcc, 8, v{vPV}"]
        return [f"v_cmp_ne_u32 vcc, 1, v{vPV}"]

    def spin(s, field):
        Lsp, Lok = s.label('spin'), s.label('ok')
        s(f"s_mov_b32 s{sSPIN}, 0", f"{Lsp}:")
        s.vmem(s.poll_load(field), None, cond=True)
        s("s_waitcnt vmcnt(0)", f"s_add_u32 s{sSPIN}, s{sSPIN}, 1", f"s_cmp_gt_u32 s{sSPIN}, 0x40000", f"s_cbranch_scc1 {Lok}")
        s(*s.poll_test(field)); s(f"s_cbranch_vccnz {Lsp}", f"{Lok}:")

    def poll_check(s, field, tag):
        L = s.label('rdy')
        s.wait(vm=tag)
        s(*s.poll_test(field)); s(f"s_cbranch_vccz {L}")
        s.spin(field)
        s(f"{L}:")

    def xred(s, r, tmp, op):
        return [f"v_mov_b32 v{tmp}, v{r}", f"v_permlane32_swap_b32 v{r}, v{tmp}", f"{op} v{r}, v{r}, v{tmp}",
                f"v_mov_b32 v{tmp}, v{r}", f"v_permlane16_swap_b32 v{r}, v{tmp}", f"{op} v{r}, v{r}, v{tmp}"]

    def ln_stats(s, tagf):
        SUM, SQ = vACC, vACC + 4
        sp, fl = [], {}
        for m in range(16):
            R = v(vRAW + 4 * m, 4)
            if m % 4 == 0: fl[2 * m - 1] = [('wait', tagf(m // 4), None)]
            sp += [mfma(v(SUM, 4), a(aONE, 4), R, "0" if m == 0 else v(SUM, 4)), mfma(v(SQ, 4), R, R, "0" if m == 0 else v(SQ, 4))]
        return sp, fl

    def ln_centre(s, first, wr_addr):
        SUM, SQ, NEG = vACC, vACC + 4, vACC + 8
        s(f"v_and_b32 v{vX}, 3, v{vL}", f"v_cmp_eq_u32 s[{sT0}:{sT0 + 1}], 1, v{vX}", f"v_cmp_eq_u32 s[{sT2}:{sT2 + 1}], 2, v{vX}", f"v_cmp_eq_u32 vcc, 3, v{vX}",
          f"v_lshrrev_b32 v{vX}, 4, v{vL}", f"v_bfe_u32 v{vY}, v{vL}, 2, 2")
        for i in range(4): s(f"v_mul_f32 v{NEG + i}, {f2u(-1.0 / 512)}, v{SUM + i}")
        stat = [f"v_cndmask_b32 v{SQ}, v{SQ}, v{SQ + 1}, s[{sT0}:{sT0 + 1}]", f"v_cndmask_b32 v{SQ}, v{SQ}, v{SQ + 2}, s[{sT2}:{sT2 + 1}]",
                f"v_cndmask_b32 v{SQ}, v{SQ}, v{SQ + 3}, vcc", f"v_cmp_eq_u32 vcc, v{vX}, v{vY}", f"v_mul_f32 v{SUM + 1}, v{NEG}, v{NEG}", f"v_and_b32 v{vX}, 15, v{vL}",
                f"v_cndmask_b32 v{SQ}, 0, v{SQ}, vcc"]
        stat += s.xred(SQ, SQ + 1, "v_add_f32")
        stat += [f"v_fma_f32 v{SQ}, v{SQ}, s{sINV}, -v{SUM + 1}", f"v_max_f32 v{SQ}, 0, v{SQ}", f"v_add_f32 v{SQ + 1}, {f2u(1e-5)}, v{SQ}", f"v_rsq_f32 v{SUM}, v{SQ + 1}",
                 f"s_lshl_b32 s{sT0}, s{sW}, {7 if first else 6}", f"s_add_u32 s{sT0}, s{sT0}, {SCR}", f"v_lshl_add_u32 v{vX}, v{vX}, {3 if first else 2}, s{sT0}"]
        if first:
            stat += [f"v_mul_f32 v{SQ}, v{SQ}, v{SUM}", f"v_mul_f32 v{SQ}, v{SQ}, v{SUM}", f"v_add_f32 v{SQ}, {f2u(1e-5)}, v{SQ}", f"v_rsq_f32 v{SQ}, v{SQ}", "s_nop 0",
                     f"v_mul_f32 v{SUM + 1}, v{SQ}, v{SUM}", ('lds', f"ds_write_b64 v{vX}, {v(SUM, 2)}", 'rw')]
        else:
            stat += [('lds', f"ds_write_b32 v{vX}, v{SUM}", 'rw')]
        spine = [mfma(v(128 + 8 * (m & 3) + 4 * u, 4), sel(u), v(vRAW + 4 * m, 4), v(NEG, 4)) for m in range(16) for u in range(2)]

        def out(m):
            t = 128 + 8 * (m & 3); p = 160 + 4 * (m & 3)
            return [f"v_cvt_pk_bf16_f32 v{p + i}, v{t + 2 * i}, v{t + 2 * i + 1}" for i in range(4)] + [('lds', f"ds_write_b128 v{wr_addr}, {v(p, 4)} offset:{m * 1024}", 'lnw')]
        fill = {}
        for m in range(14):
            o = out(m)
            fill.setdefault(2 * m + 4, []).extend(o[:2]); fill.setdefault(2 * m + 5, []).extend(o[2:])
        spread(fill, stat, 0, 27)
        s.weave(spine, fill)
        for it in out(14) + out(15): s.item(it)

    def gelu_pairs(s, regs, tmp):
        for b in range(0, len(regs), 4):
            grp = list(zip(regs[b:b + 4], [tmp + 2 * i for i in range(4)]))
            for (r, c), t in grp: s(f"v_pk_mul_f32 {v(t, 2)}, {v(r, 2)}, {v(r, 2)}")
            for (r, c), t in grp: s(f"v_pk_fma_f32 {v(t, 2)}, {v(t, 2)}, {v(c, 2)}, {v(c, 2)} op_sel:[0,0,1] op_sel_hi:[1,0,1]")
            for (r, c), t in grp: s(f"v_pk_mul_f32 {v(t, 2)}, {v(t, 2)}, {v(r, 2)}")
            for (r, c), t in grp: s(f"v_exp_f32 v{t}, v{t}", f"v_exp_f32 v{t + 1}, v{t + 1}")
            for (r, c), t in grp: s(f"v_pk_fma_f32 {v(t, 2)}, {v(t, 2)}, {v(c + 2, 2)}, {v(c + 2, 2)} op_sel_hi:[1,0,0]")
            for (r, c), t in grp: s(f"v_rcp_f32 v{t}, v{t}", f"v_rcp_f32 v{t + 1}, v{t + 1}")
            for (r, c), t in grp: s(f"v_pk_mul_f32 {v(r, 2)}, {v(t, 2)}, {v(r, 2)}")

    def gelu_consts(s, dst, r):
        kk = 2 * 0.7978845608028654 * 1.4426950408889634
        return [f"v_mul_f32 v{dst}, v{r}, v{r}", f"v_mul_f32 v{dst + 1}, {f2u(-kk)}, v{r}", f"v_rcp_f32 v{dst + 2}, v{r}",
                f"v_mul_f32 v{dst}, v{dst}, v{dst + 1}", f"v_mul_f32 v{dst}, {f2u(0.044715)}, v{dst}"]

    def stype_reads(s, m, tagp):
        buf = 16 * (m & 3)
        B = [('lds', f"ds_read_b128 {a(buf + 8 + 4 * i, 4)}, v{vB2} offset:{(16 * i + m) * 1024}", (tagp, m)) for i in range(2)]
        A = [[('lds', f"ds_read_b64_tr_b16 {a(buf + 4 * i + 2 * jh, 2)}, v{vS + i} offset:{m * 4096 + jh * 2048}", (tagp, m)) for jh in range(2)] for i in range(2)]
        return [B, A[0], A[1]]

    def stype(s, tagp, extra):
        spine = []; fill = {}
        for m in range(16):
            buf = 16 * (m & 3)
            for n in range(2):
                for t in range(2):
                    d = v(vACC + 8 * n + 4 * t, 4)
                    spine.append(mfma(d, a(buf + 4 * n, 4), a(buf + 8 + 4 * t, 4), "0" if m == 0 else d))
            if m + 3 < 16:
                for i, grp in enumerate(s.stype_reads(m + 3, tagp)): fill.setdefault(4 * m + i, []).extend(grp)
            fill.setdefault(4 * m - 1, []).append(('wait', None, (tagp, m)))
        merge(fill, extra)
        s.weave(spine, fill)

    def p_reads_A(s, st, tagp):
        buf = 32 * (st & 1); slot = st % 3
        base = vT1 if slot == 2 else vT0; off = 32768 if slot == 1 else 0
        return [[('lds', f"ds_read_b64_tr_b16 {a(buf + 4 * nt + 2 * jh, 2)}, v{base + nt} offset:{off + jh * 4096}", (tagp, st, 'a' if nt < 4 else 'b')) for jh in range(2)]
                for nt in range(8)]

    def p_bbuf(s, st, bpre):
        return 96 + 16 * (st - 14) if (bpre and st >= 14) else 64 + 16 * (st & 1)

    def p_reads_B(s, st, tagp, bpre=False):
        buf = s.p_bbuf(st, bpre)
        B = [('lds', f"ds_read_b128 {a(buf + 4 * tt, 4)}, v{vB} offset:{(16 * tt + st) * 1024}", (tagp, st, 'a')) for tt in range(4)]
        return [B[:2], B[2:]]

    def ptype(s, tagp, vo, S, step_bytes, half_bytes, extra, bpre=False):
        for st in range(16):
            ab = 32 * (st & 1); bb = s.p_bbuf(st, bpre)
            spine = [mfma(v(128 + 16 * nt + 4 * tt, 4), a(ab + 4 * nt, 4), a(bb + 4 * tt, 4), "0" if st == 0 else v(128 + 16 * nt + 4 * tt, 4))
                     for nt in range(8) for tt in range(4)]
            ex = extra(st)
            fill = {-1: [('wait', None, (tagp, st, 'a'))], 1: [('wait', None, 0)]}
            merge(fill, ex.get('early', {}))
            dm = s.pstep_dma(vo, S, step_bytes, half_bytes, st % 3, (tagp, 'd', st + 3)) if st + 3 < 16 else ex.get('dma', [])
            if st + 1 < 16:
                spread(fill, dm, 2, 9)
                fill.setdefault(9, []).append(('wait', (tagp, 'd', st + 1), None))
                A = s.p_reads_A(st + 1, tagp)
                if bpre and st >= 13: rd = A
                else:
                    B = s.p_reads_B(st + 1, tagp); rd = [B[0], A[0], B[1]] + A[1:]
                spread(fill, rd, 10, 26)
                if bpre and st == 12: spread(fill, s.p_reads_B(14, tagp, True) + s.p_reads_B(15, tagp, True), 27, 30)
            else:
                spread(fill, dm, 2, 31)
            merge(fill, ex.get('at', {}))
            if ex.get('alu'): spread(fill, ex['alu'], *ex.get('alug', (2, 31)))
            if ex.get('vm2'): spread(fill, ex['vm2'], 11, 31)
            s.weave(spine, fill)
            s.stamp(f'.{tagp}{st}')

    def k_reads(s, t):
        off = KVPOS[(t + 2) & 3] - KVPOS[0]
        return [('lds', f"ds_read_b128 {a(144 + 16 * u + 4 * ds, 4)}, v{vT1 + ds} offset:{off + u * 8192}", ('K', t, 'ab'[u])) for u in range(2) for ds in range(4)]

    def v_reads(s, t):
        off = KVPOS[(t + 2) & 3] - KVPOS[0]
        return [('lds', f"ds_read_b64_tr_b16 {a(176 + 4 * dt + 2 * jh, 2)}, v{vT0 + dt} offset:{off + jh * 8192}", ('V', t, 'ab'[dt >> 2])) for dt in range(8) for jh in range(2)]

    def qk_spine(s, cinit):
        return [mfma(v(vS_ + 8 * qt + 4 * u, 4), a(144 + 16 * u + 4 * ds, 4), v(vQ + 16 * ds + 4 * qt, 4), v(vS_ + 8 * qt + 4 * u, 4) if ds else cinit(qt))
                for qt in range(4) for u in range(2) for ds in range(4)]

    def pv_spine(s, t, l_first=False):
        pv, L = [], []
        for qt in range(4):
            p = v(vP + 16 * (t & 1) + 4 * qt, 4)
            pv.append([mfma(a(16 * dt + 4 * qt, 4), a(176 + 4 * dt, 4), p, "0" if t == 0 else a(16 * dt + 4 * qt, 4)) for dt in range(8)])
            L.append(mfma(a(128 + 4 * qt, 4), a(aONE, 4), p, "0" if t == 0 else a(128 + 4 * qt, 4)))
        if l_first: return L + sum(pv, [])
        return sum([pv[qt] + [L[qt]] for qt in range(4)], [])

    def job(s, t, qt):
        b = vS_ + 8 * qt
        return ([f"v_exp_f32 v{b + i}, v{b + i}" for i in range(8)],
                [f"v_cvt_pk_bf16_f32 v{vP + 16 * (t & 1) + 4 * qt + i}, v{b + 2 * i}, v{b + 2 * i + 1}" for i in range(4)])

    def build(s):
        o = s.opt
        pa, cmap, pf = o.get('pa', s.amap), o.get('cmap', 4), o.get('pf', 1)
        s("s_cmp_ge_u32 s2, 256", "s_cbranch_scc1 L_end")
        if o.get('perm'):
            s(f"s_mul_i32 s2, s2, {o['perm']}", "s_add_u32 s2, s2, 11", "s_and_b32 s2, s2, 255")
        s.stamp('start')
        s("s_load_dwordx16 s[64:79], s[0:1], 0", "s_load_dwordx8 s[80:87], s[0:1], 64", "s_load_dwordx2 s[88:89], s[0:1], 96")
        s(f"v_and_b32 v{vL}, 63, v0", f"v_lshrrev_b32 v{vX}, 6, v0", f"v_readfirstlane_b32 s{sW}, v{vX}")
        if o.get('cpf', 1):
            L = s.label('cpf')
            s(f"s_cmp_lt_u32 s{sW}, 3", f"s_cbranch_scc1 {L}", f"s_getpc_b64 s[{sT2}:{sT3}]", "L_pcbase:")
            s(f"s_lshr_b32 s{sT0}, s2, 3", f"s_mul_i32 s{sT0}, s{sT0}, CPF_N", f"v_add_u32 v{vX}, s{sT0}, v{vL}", f"v_lshlrev_b32 v{vX}, 7, v{vX}",
              f"v_min_u32 v{vX}, L_end-L_pcbase, v{vX}", f"v_mov_b32 v{vY}, s{sT3}", f"v_add_co_u32 v{vX}, vcc, s{sT2}, v{vX}", f"v_addc_co_u32 v{vY}, vcc, 0, v{vY}, vcc",
              "s_mov_b64 exec, (1<<CPF_N)-1")
            s.vmem(f"global_load_dword a{aDUMMY}, v[{vX}:{vY}], off", None, cond=True)
            s("s_mov_b64 exec, -1", f"{L}:")
        s(f"s_and_b32 s{sT0}, s2, 7", f"s_lshr_b32 s{sT1}, s2, 3")

        def mapping(am, rT, rG):
            lg = int(math.log2(am))
            s(f"s_and_b32 s{rG}, s{sT0}, {8 // am - 1}", f"s_lshl_b32 s{rG}, s{rG}, {lg}", f"s_and_b32 s{sT2}, s{sT1}, {am - 1}", f"s_add_u32 s{rG}, s{rG}, s{sT2}")
            s(f"s_andn2_b32 s{rT}, s{sT1}, {am - 1}", f"s_lshr_b32 s{sT2}, s{sT0}, {3 - lg}", f"s_add_u32 s{rT}, s{rT}, s{sT2}")
        mapping(s.amap, sTB, sG)
        s(f"v_and_b32 v{vX}, 15, v{vL}", f"s_lshl_b32 s{sT2}, s{sW}, 4", f"v_add_u32 v{vX}, s{sT2}, v{vX}", f"v_lshlrev_b32 v{vX}, 10, v{vX}",
          f"v_lshrrev_b32 v{vY}, 4, v{vL}", f"v_lshl_add_u32 v{vU}, v{vY}, 4, v{vX}", f"s_lshl_b32 s{sOFF}, s{sTB}, 16")
        s("s_waitcnt lgkmcnt(0)")
        s.stamp('.k')
        s.mk_srd(X, 64, 0x200000)
        for m in range(16):
            s.vmem(f"buffer_load_dwordx4 {v(vRAW + 4 * m, 4)}, v{vU}, {srd(X)}, s{sOFF} offen offset:{m * 64}", ('x', m // 4))
        s.stamp('.xi')
        mapping(cmap, sTC, sJ)
        s(f"s_lshr_b32 s{sJC}, s{sT1}, {int(math.log2(cmap))}")
        s(f"s_lshr_b32 s{sJJ}, s{sT1}, {int(math.log2(s.amap))}" if pa == s.amap else f"s_lshr_b32 s{sJJ}, s{sTB}, {int(math.log2(pa))}")
        s(f"s_and_b32 s{sTH}, s{sW}, 1", f"s_lshr_b32 s{sCH}, s{sW}, 1", f"v_lshlrev_b32 v{vL16}, 4, v{vL}")
        s.lin(sT3, 0, (sG, 1024), (sW, 256)); s.mk_srd(WQ, 70, 0x400000, sT3)
        s.lin(sT3, 0, (sG, 128)); s.mk_srd(W1, 76, 0x80000, sT3); s.mk_srd(W2, 78, 0x80000, sT3)
        s.lin(sT3, 1536 * 256, (sG, 1 << 19)); s.mk_srd(KC, 66, 0x400000, sT3)
        s(f"s_sub_u32 s{sT3}, s{sT3}, 2048"); s.mk_srd(VC, 68, 0x400000, sT3)
        s.lin(sT3, 0, (sG, 1 << 19), (sW, 256)); s.mk_srd(WO, 72, 0x400000, sT3)
        s.lin(sT3, 0, (sJ, 448), (sW, 128)); s.mk_srd(W3, 80, 0x1c0000, sT3)
        dmap = o.get('dmap', 4)
        s(f"s_and_b32 s{sT0}, s2, 7")
        mapping(dmap, sTD, sJD)
        s.lin(sT3, 0, (sJD, 128)); s.mk_srd(W4, 82, 0x1c0000, sT3)
        s.mk_srd(OUT, 84, 0x200000); s.mk_srd(DBG, 86, 256); s.mk_srd(WS, 88, 0x10000000)
        s(f"s_mov_b32 s{sONE2}, 0x3f803f80", f"s_mov_b32 s{sLO}, 0x00003f80", f"s_mov_b32 s{sHI}, 0x3f800000", f"s_mov_b32 s{sINV}, {f2u(1.0 / 512)}")
        s(f"s_mov_b32 s{sC}, {f2u(-1.4426950408889634)}", f"s_mov_b32 s{sC + 1}, {f2u(-1.4426950408889634)}")
        s(f"s_lshl_b32 s{sKVM}, s{sW}, 12", f"s_mov_b32 s{sKV}, 0", f"s_mov_b32 s{sPASS}, 0")
        s.lin(sRING, SLOT[0], (sW, 8192))
        s.d128(vE, 1024, True)
        noswap = o.get('noswap', 0)
        s.d256(vD, 8192, True, blk=noswap)
        s.lin(sHST, WS_H + 128, (sG, 8 * HPL), (sCH, 4 * HPL), (sTB, 1024), (sTH, 512))
        s.lin(sHLD, WS_H, (sTB, 1024), (sW, 256))
        s.lin(sX1ST, WS_X1, (sTB, 65536), (sTH, 32768), (sG, 2048), (sCH, 1024))
        s.lin(sX1LD, WS_X1, (sTC, 65536), (sW, 16384))
        s.lin(sX1S, WS_X1, (sTD, 65536), (sTH, 32768), (sJD, 2048), (sCH, 1024))
        s.lin(sH2ST, WS_H2, (sTC, 229376), (sJ, 7 * 4096), (sW, 8192))
        s.lin(sH2LD, WS_H2, (sTD, 229376), (sW, 4096))
        s.lin(sSPST, WS_SP, (sTB, 1 << 19), (sW, 1 << 17), (sG, 1024))
        s(f"s_and_b32 s{sSPX}, s{sTB}, 15", f"s_lshl_b32 s{sSPX}, s{sSPX}, 13")
        s.lin(sSPLD, WS_SP, (sTD, 1 << 19), (sJD, 1 << 16), (sCH, 1 << 15), (sTH, 1 << 14))
        s(f"s_and_b32 s{sSPY}, s{sSPLD}, 0x1e000", f"s_andn2_b32 s{sSPLD}, s{sSPLD}, 0x1e000", f"s_and_b32 s{sT0}, s{sTD}, 15", f"s_lshl_b32 s{sT0}, s{sT0}, 13",
          f"s_xor_b32 s{sSPY}, s{sSPY}, s{sT0}")
        s.lin(sXF, 0, (sTD, 65536), (sTH, 32768), (sJD, 128), (sCH, 64))
        s.lin(sFLG, WS_FLAG, (sTB, 256), (sG, 4)); s.lin(sFLC, WS_FLAG, (sTC, 256), (sJ, 4)); s.lin(sFLD, WS_FLAG, (sTD, 256))
        s(f"v_lshrrev_b32 v{vX}, 4, v{vL}", f"v_lshlrev_b32 v{vY}, 5, v{vX}", f"v_xor_b32 v{vB}, v{vY}, v{vL16}")
        s(f"v_mul_u32_u24 v{vX}, {HPL}, v{vX}", f"v_and_b32 v{vY}, 0xf0, v{vB}", f"v_add_u32 v{vH}, v{vX}, v{vY}", f"v_and_b32 v{vY}, 0xf0, v{vL16}", f"v_add_u32 v{vEA}, v{vX}, v{vY}")
        s(f"s_lshl_b32 s{sT0}, s{sTH}, 15", f"v_add_u32 v{vB2}, s{sT0}, v{vB}", f"s_lshl_b32 s{sW14}, s{sW}, 14", f"v_add_u32 v{vEA + 1}, s{sW14}, v{vB}")
        if noswap: s.t256q(vT0, sRING)
        else: s.t256(vT0, base_s=sRING)
        for nt in range(8): s(f"v_add_u32 v{vT1 + nt}, 0x10000, v{vT0 + nt}")
        s.t128(vS, 2, base_imm=SLOT[1], pair_s=sCH)
        s(f"v_lshrrev_b32 v{vX}, 1, v{vY}" if False else f"v_and_b32 v{vX}, 15, v{vL}", f"v_lshlrev_b32 v{vX}, 3, v{vX}", f"v_add_u32 v{vEA + 2}, {SCR}, v{vX}", f"s_lshl_b32 s{sT0}, s{sTH}, 8",
          f"v_add_u32 v{vEA + 3}, s{sT0}, v{vEA + 2}")
        s.lin(sT1, 0, (sG, 2048), (sCH, 1024), (sTH, 32768))
        s(f"v_lshrrev_b32 v{vX}, 5, v{vL}", f"v_mul_u32_u24 v{vX}, 0x120, v{vX}", f"v_and_b32 v{vY}, 0xf0, v{vL16}", f"v_xor_b32 v{vX}, v{vX}, v{vY}",
          f"v_bfe_u32 v{vY}, v{vL}, 4, 1", f"v_lshl_add_u32 v{vX}, v{vY}, 3, v{vX}", f"v_add_u32 v{vEA + 4}, s{sT1}, v{vX}", f"v_xor_b32 v{vEA + 5}, 0x240, v{vEA + 4}")
        if pf:
            lg = int(math.log2(pa))
            s(f"v_lshrrev_b32 v{vX}, {lg + 1}, v{vL}", f"v_lshlrev_b32 v{vX}, 18, v{vX}", f"v_bfe_u32 v{vY}, v{vL}, 1, {lg}" if lg else f"v_mov_b32 v{vY}, 0",
              f"s_lshl_b32 s{sT0}, s{sJJ}, {lg}", f"v_add_u32 v{vY}, s{sT0}, v{vY}", f"v_lshl_add_u32 v{vX}, v{vY}, 13, v{vX}", f"v_and_b32 v{vY}, 1, v{vL}",
              f"v_lshl_add_u32 v{vEA + 6}, v{vY}, 7, v{vX}")
        for i in range(4): s(f"v_accvgpr_write_b32 a{aONE + i}, s{sONE2}")
        for i in (0, 1, 4, 5): s(f"v_accvgpr_write_b32 a{aSEL + i}, 0")
        s(f"v_and_b32 v{vX}, 16, v{vL16}", f"v_lshlrev_b32 v{vU}, v{vX}, s{sLO}", f"v_lshrrev_b32 v{vX}, 4, v{vL}", f"v_bfe_u32 v{vY}, v{vL}, 2, 2", f"v_cmp_eq_u32 vcc, v{vX}, v{vY}",
          f"v_and_b32 v{vX}, 2, v{vL}", f"v_cndmask_b32 v{vU}, 0, v{vU}, vcc", f"v_cmp_eq_u32 vcc, 0, v{vX}", "s_nop 1", f"v_cndmask_b32 v{vY}, 0, v{vU}, vcc",
          f"v_sub_u32 v{vX}, v{vU}, v{vY}", f"v_accvgpr_write_b32 a{aSEL + 2}, v{vY}", f"v_accvgpr_write_b32 a{aSEL + 3}, v{vX}")
        touch_wq = [[f"s_mov_b32 s{sB1}, {(k * (32 // pa) + 1) * 32 * 8192}", ('vm', f"buffer_load_dword a{aDUMMY}, v{vEA + 6}, {srd(WQ)}, s{sB1} offen", None)]
                    for k in range(-(-15 // (32 // pa)))] if pf else []
        up = o.get('w1up', 1)
        w1items = s.w12_dma(W1, 0, 'w1') + s.w12_dma(W1, 1, 'w1')
        s.stamp('.alu')
        for it in w1items[:7 * up]: s.item(it)
        s.stamp('setup')

        def ln1():
            sp, fl = s.ln_stats(lambda k: ('x', k))
            s.weave(sp, fl)
            s.ln_centre(True, vEA + 1)
        back = w1items[7 * up:] + [f"s_mov_b32 s{sOFF}, 0"] + s.dma4(vD, WQ, sOFF, sRING, 0, ('q', 'd', 0)) \
            + [f"s_mov_b32 s{sOFF}, {4 * 8192}"] + s.dma4(vD, WQ, sOFF, sRING, 4096, ('q', 'd', 0), n=3) + touch_wq
        s.bg(s.capture(ln1), back, o.get('lnlo', 0.05), o.get('lnhi', 0.95))
        s.stamp('ln1')
        s.wait(vm='w1', lg=0)
        s("s_barrier")

        for tt in range(4): s.lds(f"ds_read_b64 {v(vR + 2 * tt, 2)}, v{vEA + 2} offset:{tt * 128}", 'r2')
        for t in range(2): s.lds(f"ds_read_b64 {v(vR + 8 + 2 * t, 2)}, v{vEA + 3} offset:{t * 128}", 'r2')
        for m in range(3): s.item(s.stype_reads(m, 'b1'))
        for n in range(2):
            for t in range(2): s.lds(f"ds_read_b64 {v(vX1 + 4 * t + 2 * n, 2)}, v{vEA + 4 + n} offset:{t * 16384}", 'xs')
        late = {7: ["s_barrier", f"s_add_u32 m0, s{sRING}, 4096", f"s_mov_b32 s{sB0}, {4 * 8192}",
                    ('vm', f"buffer_load_dwordx4 v{vD + 3}, {srd(WQ)}, s{sB0} offen offset:3072 lds", ('q', 'd', 0)), f"s_mov_b32 s{sOFF}, {32 * 8192}"]}
        s.stype('b1', late)
        s.wait(lg=0)
        s("s_barrier")
        s.stamp('b1')

        def b1_epi():
            for t in range(2): s(*s.gelu_consts(vR + 12 + 4 * t, vR + 9 + 2 * t))
            s.gelu_pairs([(vACC + 8 * n + 4 * t + 2 * j, vR + 12 + 4 * t) for n in range(2) for t in range(2) for j in range(2)], vQ)
            for t in range(2):
                for n in range(2):
                    for j in range(2):
                        r = vACC + 8 * n + 4 * t + 2 * j
                        s(f"v_cvt_pk_bf16_f32 v{vQ + 16 + 4 * t + 2 * n + j}, v{r}, v{r + 1}")
                s.vmem(f"buffer_store_dwordx4 {v(vQ + 16 + 4 * t, 4)}, v{vEA}, {srd(WS)}, s{sHST} offen offset:{t * 256} sc1", 'hst')
            c = 1.4426950408889634 / math.sqrt(128)
            for tt in range(4): s(f"v_mul_f32 v{vACC + 2 * tt}, {f2u(c)}, v{vR + 2 * tt}")
            for i in range(8): s(f"v_lshlrev_b32 v{vQ + 2 * i}, 16, v{vX1 + i}", f"v_and_b32 v{vQ + 2 * i + 1}, 0xffff0000, v{vX1 + i}")
            for i in range(8): s(f"v_pk_mul_f32 {v(vQ + 2 * i, 2)}, {v(vQ + 2 * i, 2)}, {v(vR + 8 + 2 * (i >> 2), 2)} op_sel_hi:[1,0]")
            for i in range(8): s(f"v_cvt_pk_bf16_f32 v{vX1 + i}, v{vQ + 2 * i}, v{vQ + 2 * i + 1}")
        qA = s.p_reads_A(0, 'q')
        s.bg(s.capture(b1_epi), s.pstep_dma(vD, WQ, 32 * 8192, 4 * 8192, 1, ('q', 'd', 1)) + s.pstep_dma(vD, WQ, 32 * 8192, 4 * 8192, 2, ('q', 'd', 2))[:7]
             + s.p_reads_B(0, 'q') + [[('wait', ('q', 'd', 0), None)] + qA[0]] + qA[1:], 0.0, 0.98)
        for it in s.pstep_dma(vD, WQ, 32 * 8192, 4 * 8192, 2, ('q', 'd', 2))[7:]: s.item(it)
        Lp = s.label('pad')
        s(f"s_cmp_lg_u32 s{sW}, 0", f"s_cbranch_scc1 {Lp}")
        s(f"v_lshl_add_u32 v{vX}, v{vL}, 7, s{sFLG}", "s_mov_b64 exec, 3")
        for i in range(4): s(f"v_mov_b32 v{vQ + 24 + i}, 0")
        s.vmem(f"buffer_store_dword v{vQ + 24}, v{vX}, {srd(WS)}, 0 offen sc1", None, cond=True)
        s("s_mov_b64 exec, -1")
        s(f"s_add_u32 s{sT1}, s{sTB}, 1", f"s_and_b32 s{sT1}, s{sT1}, 30", f"s_cmp_lg_u32 s{sT1}, 0", f"s_cbranch_scc1 {Lp}")
        s(f"s_cmp_eq_u32 s{sTB}, 0", f"s_cselect_b32 s{sT1}, {WS_H}, {WS_H + (8 + 2048) * 16}", f"s_mul_i32 s{sT0}, s{sG}, {8 * HPL}", f"s_add_u32 s{sT0}, s{sT0}, s{sT1}")
        s(f"v_lshrrev_b32 v{vX}, 3, v{vL}", f"v_mul_u32_u24 v{vX}, {HPL}, v{vX}", f"v_and_b32 v{vY}, 0x70, v{vL16}", f"v_add_u32 v{vX}, v{vX}, v{vY}")
        for i in range(4): s(f"v_mov_b32 v{vQ + 24 + i}, 0")
        s.vmem(f"buffer_store_dwordx4 {v(vQ + 24, 4)}, v{vX}, {srd(WS)}, s{sT0} offen sc1", None, cond=True)
        s(f"{Lp}:")
        s.stamp('b1epi')

        def h_dma(lo, hi):
            shift = [1, -1, 2, -2]
            return [[f"s_add_u32 m0, s{sW14}, {m * 1024}", f"s_add_u32 s{sB1}, s{sHLD}, {m * 4 * HPL + (8 - shift[m >> 2]) * 16}",
                     ('vm', f"buffer_load_dwordx4 v{vH}, {srd(WS)}, s{sB1} offen sc1 lds", 'h')] for m in range(lo, hi)]

        def kv_offsets():
            s(f"v_lshrrev_b32 v{vX}, 4, v{vL}", f"s_lshl_b32 s{sT0}, s{sW}, 3", f"v_add_u32 v{vX}, s{sT0}, v{vX}", f"v_and_b32 v{vY}, 0xf0, v{vL16}",
              f"v_lshl_add_u32 v{vY}, v{vX}, 8, v{vY}", f"v_and_b32 v{vU}, 15, v{vX}", f"v_lshlrev_b32 v{vU}, 4, v{vU}", f"v_xor_b32 v{vE}, v{vY}, v{vU}",
              f"v_xor_b32 v{vE + 1}, 0x40, v{vE}", f"v_and_b32 v{vU}, 7, v{vX}", f"v_lshlrev_b32 v{vU}, 5, v{vU}", f"v_xor_b32 v{vE + 2}, v{vY}, v{vU}",
              f"v_xor_b32 v{vE + 3}, 0x80, v{vE + 2}")

        def attn_addr():
            s.t256(vT0, base_imm=KVPOS[0] + 2048, kv=True)
            s(f"v_and_b32 v{vX}, 8, v{vL}", f"v_lshlrev_b32 v{vX}, 9, v{vX}", f"v_and_b32 v{vY}, 7, v{vL}", f"v_lshl_add_u32 v{vX}, v{vY}, 8, v{vX}",
              f"v_lshrrev_b32 v{vY}, 4, v{vL}", f"v_and_b32 v{vU}, 15, v{vL}", f"v_xor_b32 v{vY}, v{vY}, v{vU}", f"v_lshl_add_u32 v{vX}, v{vY}, 4, v{vX}",
              f"v_add_u32 v{vT1}, {KVPOS[0]}, v{vX}")
            for ds in range(1, 4): s(f"v_xor_b32 v{vT1 + ds}, {ds << 6}, v{vT1}")
        def kv_touch():
            L = s.label('tk'); nk = 32 * pa
            assert nk == 64
            return [f"v_lshlrev_b32 v{vX}, 7, v{vL}", f"s_mul_i32 s{sT0}, s{sJJ}, {nk * 128}", f"s_cmp_lg_u32 s{sW}, 0", f"s_cbranch_scc1 {L}a",
                    ('vm', f"buffer_load_dword a{aDUMMY}, v{vX}, {srd(KC)}, s{sT0} offen", None, True), f"{L}a:", f"s_cmp_lg_u32 s{sW}, 1", f"s_cbranch_scc1 {L}b",
                    ('vm', f"buffer_load_dword a{aDUMMY}, v{vX}, {srd(VC)}, s{sT0} offen offset:2048", None, True), f"{L}b:"]
        hpre = o.get('hpre', 1)
        nh13, nh14, nh15 = o.get('nh', (4, 4, 5) if hpre else (0, 0, 6))
        nh15 += nh13 + nh14

        def q_extra(st):
            ex = {'at': {}}
            if st == 0: ex['alu'] = s.capture(lambda: s.d128(vE, 1024, False)); ex['alug'] = (27, 31)
            if st == 2: ex['at'][9] = ["s_barrier", lambda: s.signal(0)]
            if pf and st == o.get('tw2', 9):
                L = s.label('tw'); nw = 16 * pa
                ex['at'][28] = [f"v_lshlrev_b32 v{vX}, 10, v{vL}", f"s_mul_i32 s{sB1}, s{sJJ}, {nw * 1024}", f"v_cmp_gt_u32 vcc, {nw}, v{vL}", f"s_cmp_lg_u32 s{sW}, 2",
                                f"v_cndmask_b32 v{vX}, -1, v{vX}, vcc", f"s_cbranch_scc1 {L}",
                                ('vm', f"buffer_load_dword a{aDUMMY}, v{vX}, {srd(W2)}, s{sB1} offen", None, True), f"{L}:"]
            if pf and st == o.get('tkvq', -1): ex['at'][30] = kv_touch()
            if st == (10 if hpre else 11): ex['at'][12] = s.poll_items(0, 'p1')
            if st == 11: ex['alu'] = s.capture(lambda: s.d128(vW4, 1024, False)); ex['alug'] = (14, 31)
            if st == 13:
                ex['dma'] = s.w12_dma(W2, 0, 'w2')
                ex['alu'] = s.capture(lambda: s.d128(vD, 3584, False, oob_w3=True)); ex['alug'] = (11, 31)
                if hpre:
                    ex['at'][10] = [lambda: s.poll_check(0, 'p1'), "s_barrier"]
                    ex['vm2'] = h_dma(0, nh13)
            if st == 14:
                ex['dma'] = s.w12_dma(W2, 1, 'w2')
                ex['alu'] = s.capture(kv_offsets); ex['alug'] = (11, 31)
                if hpre: ex['vm2'] = h_dma(nh13, nh13 + nh14)
                else: ex['at'][9] = [lambda: s.poll_check(0, 'p1')]
            if st == 15:
                ex['dma'] = ["s_barrier"] + h_dma(nh13 + nh14, nh15)
                ex['alu'] = s.capture(attn_addr)
            return ex
        s.ptype('q', vD, WQ, 32 * 8192, 4 * 8192, q_extra, bpre=hpre)
        s.stamp('qproj')

        def q_epi():
            for ds in range(4):
                for tt in range(4):
                    q = vQ + 16 * ds + 4 * tt
                    rr = [128 + 16 * (2 * ds + u) + 4 * tt + 2 * j for u in range(2) for j in range(2)]
                    for r in rr: s(f"v_pk_mul_f32 {v(r, 2)}, {v(r, 2)}, {v(vACC + 2 * tt, 2)} op_sel_hi:[1,0]")
                    for i, r in enumerate(rr): s(f"v_cvt_pk_bf16_f32 v{q + i}, v{r}, v{r + 1}")
                for op in ("v_permlane32_swap_b32", "v_permlane16_swap_b32") if not noswap else ():
                    for tt in range(4):
                        for j in range(2): s(f"{op} v{vQ + 16 * ds + 4 * tt + j}, v{vQ + 16 * ds + 4 * tt + 2 + j}")
        tkv = [kv_touch()] if (pf and o.get('tkv', 1)) else []
        s.bg(s.capture(q_epi), h_dma(nh15, 16) + s.kv_dma(0) + tkv, 0.0, 0.95)
        s.dump('q', [f"v{vQ + i}" for i in range(64)], 0)
        s.stamp('qepi')

        s.wait(vm='h')
        s("s_barrier")
        for m in range(3): s.item(s.stype_reads(m, 'b2'))
        fx = {}
        spread(fx, s.kv_dma(1), 1, 20)
        s.stype('b2', fx)
        kv1late = o.get('kv1late', 1)
        s.wait(vm=('kv', 0 if kv1late else 1), lg=0)
        s("s_barrier")
        s.stamp('b2')

        s(f"s_mov_b32 s{sOFF}, 0")
        for it in s.k_reads(0): s.item(it)
        for n in range(2):
            for t in range(2): s(mfma(v(vACC + 8 * n + 4 * t, 4), sel(n), v(vX1 + 4 * t, 4), v(vACC + 8 * n + 4 * t, 4)))
        x1e = []
        for t in range(2):
            for n in range(2):
                for j in range(2):
                    r = vACC + 8 * n + 4 * t + 2 * j
                    x1e.append(f"v_cvt_pk_bf16_f32 v{vX1 + 4 * t + 2 * n + j}, v{r}, v{r + 1}")
        x1e += [('vm', f"buffer_store_dwordx4 {v(vX1, 4)}, v{vL16}, {srd(WS)}, s{sX1ST} offen", 'x1st'), f"s_add_u32 s{sB0}, s{sX1ST}, 16384",
                ('vm', f"buffer_store_dwordx4 {v(vX1 + 4, 4)}, v{vL16}, {srd(WS)}, s{sB0} offen", 'x1st')]
        x1e = [(it[0], it[1] + " sc1", it[2]) if isinstance(it, tuple) else it for it in x1e]

        def rowmax(qt):
            b = vS_ + 8 * qt; r = vACC + 4 * qt
            it = [f"v_max3_f32 v{r}, v{b}, v{b + 1}, v{b + 2}", f"v_max3_f32 v{r + 1}, v{b + 3}, v{b + 4}, v{b + 5}", f"v_max3_f32 v{r}, v{r}, v{b + 6}, v{b + 7}",
                  f"v_max_f32 v{r}, v{r}, v{r + 1}"] + s.xred(r, r + 1, "v_max_f32")
            it += [f"v_sub_f32 v{r}, 0, v{r}"] + [f"v_mov_b32 v{r + i}, v{r}" for i in range(1, 4)]
            return it + [f"v_add_f32 v{b + i}, v{b + i}, v{r}" for i in range(8)]
        fill = {-1: [('wait', None, ('K', 0, 'a'))], 3: [('wait', None, ('K', 0, 'b'))]}
        spread(fill, x1e, 3, 9)
        spread(fill, rowmax(0), 10, 17)
        spread(fill, rowmax(1) + s.kv_dma(2), 18, 25)
        spread(fill, rowmax(2), 26, 31)
        s.weave(s.qk_spine(lambda qt: "0"), fill)
        if kv1late: s.wait(vm=('kv', 1)); s("s_barrier")
        for it in s.k_reads(1): s.item(it)
        pro = []
        for qt in range(3):
            E, C = s.job(0, qt); pro += E + C
            if qt == 0: pro += rowmax(3)
        s.bg(pro, s.kv_dma(3))
        s.stamp('attn_pro')
        s("L_attn:")

        def x1_loads(lo, hi):
            it = []
            for m in range(lo, hi):
                if m % 4 == 0: it.append(f"s_add_u32 s{sB0}, s{sX1LD}, {m * 1024}")
                it.append(('vm', f"buffer_load_dwordx4 {v(vRAW + 4 * m, 4)}, v{vL16}, {srd(WS)}, s{sB0} offen offset:{(m & 3) * 1024} sc1", ('x1', m // 4)))
            return it

        def w3_dma(ms): return s.pstep_dma(vD, W3, 64 * 3584, 32 * 3584, (ms + 1) % 3, ('c', 'd', ms))

        def touch2(which):
            p_, jj = (pa, sJJ) if which == 'wo' else (cmap, sJC)
            if which == 'w4':
                n = 14 * dmap
                it = [f"v_lshlrev_b32 v{vY}, 10, v{vL}", f"s_lshr_b32 s{sB1}, s2, {3 + int(math.log2(dmap))}", f"s_lshl_b32 s{sB1}, s{sB1}, 2", f"s_add_u32 s{sB1}, s{sB1}, s{sW}",
                      f"s_mul_i32 s{sB1}, s{sB1}, {n * 1024}"]
                for k in range(-(-n // 64)):
                    if n - 64 * k < 64: it += [f"v_cmp_gt_u32 vcc, {n - 64 * k}, v{vL}", "s_nop 1", f"v_cndmask_b32 v{vY}, -1, v{vY}, vcc"]
                    it += [('vm', f"buffer_load_dword a{aDUMMY}, v{vY}, {srd(W4)}, s{sB1} offen", None), f"s_add_u32 s{sB1}, s{sB1}, 65536"]
                return it
            rows = 16 * p_
            RS, S, d = (3584, W3, 124) if which == 'w3' else (1024, WO, 128)
            it = [f"v_lshrrev_b32 v{vX}, 1, v{vL}", f"v_mul_u32_u24 v{vX}, {RS}, v{vX}", f"v_and_b32 v{vY}, 1, v{vL}", f"v_mul_u32_u24 v{vY}, {d}, v{vY}",
                  f"v_add_u32 v{vY}, v{vX}, v{vY}", f"s_mul_i32 s{sB1}, s{jj}, {rows * RS}"]
            if rows < 32: it += [f"v_cmp_gt_u32 vcc, {2 * rows}, v{vL}", "s_nop 1", f"v_cndmask_b32 v{vY}, -1, v{vY}, vcc"]
            for k in range(max(1, rows // 32)):
                it += [('vm', f"buffer_load_dword a{aDUMMY}, v{vY}, {srd(S)}, s{sB1} offen", None), f"s_add_u32 s{sB1}, s{sB1}, {32 * RS}"]
            return it

        P1 = o.get('p1', "E VV E C E VV E C E VV E C E VV E C E VV E C E VV E C E VV E C E VV E C").split()
        P2 = o.get('p2', "E - E C E B E C D E KK E C E D E C D E KK E C E D E C KK E D E C E KK E C D").split()
        assert len(P1) == 32 and len(P2) == 36

        def pattern(P, streams):
            fill = {}; pos = {k: [] for k in streams}; idx = {k: 0 for k in streams}
            for g, tok in enumerate(P):
                for ch in tok:
                    if ch in streams and idx[ch] < len(streams[ch]):
                        fill.setdefault(g, []).append(streams[ch][idx[ch]]); pos[ch].append(g); idx[ch] += 1
            assert all(idx[k] == len(streams[k]) for k in streams)
            return fill, pos

        for t in range(16):
            V = s.v_reads(t)
            EA, CA = s.job(t, 3)
            if t < 15:
                EB, CB = s.job(t + 1, 0)
                spine = s.qk_spine(lambda qt: v(vACC + 4 * qt, 4))
                fill, pos = pattern(P1, {'E': EA + EB, 'C': CA + CB, 'V': V})
                for i in range(8): assert pos['C'][i] >= pos['E'][2 * i + 1]
                assert pos['C'][3] < 24 and pos['E'][8] >= 9
                fill.setdefault(-1, []).append(('wait', None, ('K', t + 1, 'a')))
                fill.setdefault(3, []).insert(0, ('wait', None, ('K', t + 1, 'b')))
            else:
                spine, fill = s.ln_stats(lambda k: ('x1', k))
                merge(fill, pattern(P1, {'E': EA, 'C': CA, 'V': V})[0])
            s.weave(spine, fill)
            spine = s.pv_spine(t, l_first=(t == 15))
            if t < 15:
                EE, CC = [sum(x, []) for x in zip(s.job(t + 1, 1), s.job(t + 1, 2))]
                bar = [[('wait', ('kv', t + 2), None), "s_barrier"] + ([lambda: s.signal(1)] if t == 0 else [])] if t < 14 else []
                fill, pos = pattern(P2, {'E': EE, 'C': CC, 'K': s.k_reads(t + 2) if t < 14 else [], 'D': s.kv_dma(t + 4) if t < 12 else [], 'B': bar})
                for i in range(8): assert pos['C'][i] >= pos['E'][2 * i + 1]
                gb = [g for g, tok in enumerate(P2) if 'B' in tok][0]
                assert all(g > gb for g in pos['K'] + pos['D']) and gb >= 3
                fill.setdefault(-1, []).append(('wait', None, ('V', t, 'a')))
                fill.setdefault(3, []).insert(0, ('wait', None, ('V', t, 'b')))
                ex = []
                tx = o.get('tx', 7)
                tsel = o.get('tsel', {1: 'w3', 3: 'wo', 5: 'w4'})
                if pf and t in tsel:
                    tl = touch2(tsel[t])
                    nv = [i for i, it in enumerate(tl) if isinstance(it, tuple)][0]
                    spread(fill, tl[:nv], gb + 1, 28); spread(fill, tl[nv:], 30, 35)
                if t == tx - 2: ex = s.poll_items(1, 'p2')
                if t == tx: ex = [lambda: s.poll_check(1, 'p2')] + x1_loads(0, 4)
                if tx < t < tx + 4: ex = x1_loads(4 * (t - tx), 4 * (t - tx) + 4)
                if t == tx + 4:
                    ex = [('vm', f"buffer_load_dwordx4 {v(vX1, 4)}, v{vL16}, {srd(WS)}, s{sX1S} offen sc1", 'x1s'), f"s_add_u32 s{sB0}, s{sX1S}, 16384",
                          ('vm', f"buffer_load_dwordx4 {v(vX1 + 4, 4)}, v{vL16}, {srd(WS)}, s{sB0} offen sc1", 'x1s')]
                if t == 14: ex = w3_dma(0)
                spread(fill, ex, 30 if (t < 12 and t >= tx) else gb + 1, 35)
            else:
                fill = {3: [('wait', None, ('V', t, 'a'))], 7: [('wait', None, ('V', t, 'b'))]}
                chk = [f"v_accvgpr_read_b32 v{vS_ + qt}, a{128 + 4 * qt}" for qt in range(4)]
                chk += [f"v_max3_f32 v{vX}, v{vS_}, v{vS_ + 1}, v{vS_ + 2}", f"s_mov_b32 s{sT0}, {f2u(2.0 ** s.thr)}", f"v_max_f32 v{vX}, v{vX}, v{vS_ + 3}",
                        f"v_cmp_u_f32 s[{sT2}:{sT3}], v{vS_}, v{vS_ + 1}", f"v_cmp_u_f32 vcc, v{vS_ + 2}, v{vS_ + 3}", f"s_lshl_b32 s{sT1}, s{sW}, 2",
                        f"s_or_b64 s[{sT2}:{sT3}], s[{sT2}:{sT3}], vcc", f"v_cmp_lt_f32 vcc, s{sT0}, v{vX}", f"s_add_u32 s{sT1}, s{sT1}, {SCR + 768}",
                        f"s_or_b64 vcc, vcc, s[{sT2}:{sT3}]", "s_cmp_lg_u64 vcc, 0", f"s_cselect_b32 s{sT0}, 1, 0", f"v_mov_b32 v{vU}, s{sT1}", f"v_mov_b32 v{vX}, s{sT0}",
                        ('lds', f"ds_write_b32 v{vU}, v{vX}", 'fw'), f"v_and_b32 v{vU}, 3, v{vL}", f"v_lshlrev_b32 v{vU}, 2, v{vU}", f"v_add_u32 v{vU}, {SCR + 768}, v{vU}"]
                chk += [f"v_rcp_f32 v{vS_ + 2 * qt + 8}, v{vS_ + qt}" for qt in range(4)]
                spread(fill, chk, 8, 19)
                fill.setdefault(21, []).extend([('wait', None, 0), "s_barrier", ('lds', f"ds_read_b32 v{vX}, v{vU}", 'fr')])
                spread(fill, w3_dma(1), 22, 35)
                fill.setdefault(28, []).extend([('wait', None, 0), f"v_cmp_ne_u32 vcc, 0, v{vX}", f"s_cmp_eq_u32 s{sPASS}, 0", "s_cselect_b64 s[58:59], -1, 0"])
                fill.setdefault(30, []).append("s_and_b64 s[58:59], vcc, s[58:59]")
            s.weave(spine, fill)
            s.stamp(f'.a{t}')
        s("s_cmp_lg_u64 s[58:59], 0", "s_cbranch_scc1 L_slow")
        s.stamp('attn')
        if o.get('diag_cyc'):
            s(f"s_mov_b32 s{sSPIN}, {o['diag_cyc'] // 64}", "L_diag:", "s_nop 15", "s_nop 15", "s_nop 15", "s_nop 11", f"s_sub_u32 s{sSPIN}, s{sSPIN}, 1", f"s_cmp_lg_u32 s{sSPIN}, 0", "s_cbranch_scc1 L_diag")
        if o.get('diag_rt'):
            s("s_memrealtime s[90:91]", "s_waitcnt lgkmcnt(0)", "L_diag2:", "s_memrealtime s[92:93]", "s_waitcnt lgkmcnt(0)", "s_sub_u32 s92, s92, s90",
              f"s_cmp_lt_u32 s92, {o['diag_rt']}", "s_cbranch_scc1 L_diag2")

        def o_epi():
            for ds in range(4):
                for qt in range(4):
                    T = vP + 8 * (qt & 1)
                    for u in range(2):
                        for i in range(4): s(f"v_accvgpr_read_b32 v{T + 4 * u + i}, a{16 * (2 * ds + u) + 4 * qt + i}")
                    for i in range(4): s(f"v_pk_mul_f32 {v(T + 2 * i, 2)}, {v(T + 2 * i, 2)}, {v(vS_ + 2 * qt + 8, 2)} op_sel_hi:[1,0]")
                    for i in range(4): s(f"v_cvt_pk_bf16_f32 v{vQ + 16 * ds + 4 * qt + i}, v{T + 2 * i}, v{T + 2 * i + 1}")
        w32 = w3_dma(2)
        s.bg(s.capture(o_epi), w32[:-2], 0.0, 0.8)
        s.dump('o', [f"v{vQ + i}" for i in range(64)], 1)
        s.stamp('oepi')

        def c_reads(ms):
            ab = 32 * (ms & 1); bb = 64 + 32 * (ms & 1)
            slot = (ms + 1) % 3
            base = vT1 if slot == 2 else vT0; off = 32768 if slot == 1 else 0
            A, B = [], []
            for ks in range(2):
                tg = ('c', ms, 'ab'[ks])
                b_ = [('lds', f"ds_read_b128 {a(bb + 16 * ks + 4 * tt, 4)}, v{vB} offset:{(16 * tt + 2 * ms + ks) * 1024}", tg) for tt in range(4)]
                B.append([b_[:2], b_[2:]])
                A.append([[('lds', f"ds_read_b64_tr_b16 {a(ab + 16 * ks + 4 * nt + 2 * jh, 2)}, v{base + nt} offset:{off + ks * 4096 + jh * 2048}", tg) for jh in range(2)]
                          for nt in range(4)])
            return A, B
        s(f"v_add_u32 v{vB2}, s{sW14}, v{vB}")
        s.t128(vT0, 4, base_s=sRING)
        for i in range(4): s(f"v_add_u32 v{vT1 + i}, 0x10000, v{vT0 + i}")
        s.ln_centre(False, vB2)
        A0, B0 = c_reads(0)
        s.wait(vm=('c', 'd', 0))
        for it in A0[0] + A0[1]: s.item(it)
        s(f"v_and_b32 v{vX}, 15, v{vL}", f"v_lshlrev_b32 v{vX}, 2, v{vX}", f"v_add_u32 v{vX}, {SCR}, v{vX}")
        s.wait(lg=0)
        s("s_barrier")
        s.stamp('ln3')
        for it in B0[0] + B0[1]: s.item(it)
        for tt in range(4): s.lds(f"ds_read_b32 v{vACC + 4 * tt + 3}, v{vX} offset:{tt * 64}", 'r3')
        wo_dma = lambda k: ([f"s_mov_b32 s{sOFF}, 0"] if k == 0 else []) + s.pstep_dma(vE, WO, 32 * 1024, 16 * 1024, k, ('o', 'd', k))
        for ms in range(8):
            ab = 32 * (ms & 1); bb = 64 + 32 * (ms & 1)
            spine = [mfma(v(128 + 16 * nt + 4 * tt, 4), a(ab + 16 * ks + 4 * nt, 4), a(bb + 16 * ks + 4 * tt, 4), "0" if (ms == 0 and ks == 0) else v(128 + 16 * nt + 4 * tt, 4))
                     for ks in range(2) for nt in range(4) for tt in range(4)]
            if ms == 0:
                fill = {-1: [('wait', None, ('c', 0, 'a'))], 1: [('wait', None, 0), "s_barrier"] + w32[-2:]}
            else:
                fill = {-1: [('wait', None, ('c', ms, 'a'))], 1: [('wait', None, 0)]}
            spread(fill, w3_dma(ms + 3) if ms + 3 < 8 else wo_dma(ms - 5), 2, 8)
            if ms + 1 < 8:
                fill.setdefault(8, []).append(('wait', ('c', 'd', ms + 1), None))
                A, B = c_reads(ms + 1)
                spread(fill, [B[0][0], A[0][0], B[0][1]] + A[0][1:] + [B[1][0], A[1][0], B[1][1]] + A[1][1:], 9, 27)
            if ms == 1: spread(fill, s.capture(lambda: s.d256(vE, 1024, False)), 10, 31)
            if ms == 2: spread(fill, sum([s.gelu_consts(vACC + 4 * tt, vACC + 4 * tt + 3) for tt in range(4)], []), 10, 31)
            if ms == 7:
                def oaddr():
                    s.t256(vT0, base_s=sRING)
                    for nt in range(8): s(f"v_add_u32 v{vT1 + nt}, 0x10000, v{vT0 + nt}")
                    s(f"s_lshl_b32 s{sT0}, s{sW}, 12", f"v_add_u32 v{vB2}, s{sT0}, v{vB}")
                spread(fill, s.capture(oaddr), 9, 31)
            s.weave(spine, fill)
            s.stamp(f'.c{ms}')
        s("s_barrier")
        s.stamp('b3')
        ow = [('lds', f"ds_write_b128 v{vB2}, {v(vQ + 16 * ds + 4 * qt, 4)} offset:{qt * 16384 + ds * 1024}", 'ow') for ds in range(4) for qt in range(4)]

        def c_epi(b):
            for tt in range(4):
                s.gelu_pairs([(128 + 16 * (2 * b + n) + 4 * tt + 2 * j, vACC + 4 * tt) for n in range(2) for j in range(2)], 192)
                for n in range(2):
                    for j in range(2):
                        r = 128 + 16 * (2 * b + n) + 4 * tt + 2 * j
                        s(f"v_cvt_pk_bf16_f32 v{208 + 16 * b + 4 * tt + 2 * n + j}, v{r}, v{r + 1}")
                s.vmem(f"buffer_store_dwordx4 {v(208 + 16 * b + 4 * tt, 4)}, v{vL16}, {srd(WS)}, s{sH2ST} offen offset:{tt * 1024} sc1", 'h2st', cond=(b == 1))
        oA = s.p_reads_A(0, 'o')
        s.bg(s.capture(lambda: c_epi(0)), ow + [[('wait', ('o', 'd', 0), None)] + oA[0]] + oA[1:], 0.0, 0.9)
        s.wait(lg=0)
        s("s_barrier")
        s.item(s.p_reads_B(0, 'o'))
        Lw3 = s.label('w3skip')
        s(f"s_cmp_eq_u32 s{sW}, 3", f"s_cbranch_scc1 {Lw3}", f"s_add_u32 s{sH2ST}, s{sH2ST}, 4096")
        c_epi(1)
        s(f"{Lw3}:")
        s.stamp('b3epi')

        hbank = lambda c: 96 + 16 * (c % 7)

        def b4_dma(c):
            return [f"s_lshl_b32 s{sB0}, s{sW}, 15", f"s_add_u32 s{sB0}, s{sB0}, {c * 4 * 32768}", f"s_lshl_b32 s{sB1}, s{sW}, 13"] + s.dma4(vW4, W4, sB0, sB1, UNIT[c % 10], ('yw', c)) \
                + [f"s_add_u32 s{sB0}, s{sH2LD}, {c * 4 * 4096}"] \
                + [('vm', f"buffer_load_dwordx4 {a(hbank(c) + 4 * tt, 4)}, v{vL16}, {srd(WS)}, s{sB0} offen offset:{tt * 1024} sc1", ('y', c)) for tt in range(4)]

        def yaddr():
            s(f"s_lshl_b32 s{sT1}, s{sW}, 13")
            s.t128(vT0, 4, base_s=sT1)
            for wdw in (1, 2):
                for i in range(4): s(f"v_add_u32 v{vT0 + 4 * wdw + i}, {0x10000 * wdw}, v{vT0 + i}")
            s(f"v_and_b32 v{vX}, 15, v{vL}", f"v_lshlrev_b32 v{vX}, 10, v{vX}", f"v_lshrrev_b32 v{vY}, 4, v{vL}", f"v_lshl_add_u32 v{vD}, v{vY}, 4, v{vX}")
            s.lin(sT1, 98304, (sW, 8192)); s(f"v_add_u32 v{vD + 1}, s{sT1}, v{vL16}")
            s.lin(sT1, 98304, (sCH, 32768), (sTH, 4096)); s(f"v_add_u32 v{vD + 2}, s{sT1}, v{vL16}")

        def h2_touch():
            per = 1792 // dmap // 4
            it = [f"v_lshlrev_b32 v{vX}, 7, v{vL}", f"s_lshr_b32 s{sB1}, s2, 3", f"s_and_b32 s{sB1}, s{sB1}, {dmap - 1}", f"s_lshl_b32 s{sB1}, s{sB1}, 2",
                  f"s_add_u32 s{sB1}, s{sB1}, s{sW}", f"s_mul_i32 s{sB1}, s{sB1}, {per * 128}", f"s_mul_i32 s{sT0}, s{sTD}, 229376",
                  f"s_add_u32 s{sB1}, s{sB1}, s{sT0}", f"s_add_u32 s{sB1}, s{sB1}, {WS_H2}"]
            for k in range(-(-per // 64)):
                if per - 64 * k < 64: it += [f"v_cmp_gt_u32 vcc, {per - 64 * k}, v{vL}", "s_nop 1", f"v_cndmask_b32 v{vX}, -1, v{vX}, vcc"]
                it += [('vm', f"buffer_load_dword a{aDUMMY}, v{vX}, {srd(WS)}, s{sB1} offen sc1", None), f"s_add_u32 s{sB1}, s{sB1}, 8192"]
            return [it]

        def o_extra(st):
            ex = {'at': {}}
            if st == 2: ex['at'][9] = ["s_barrier", lambda: s.signal(2)]
            if st == 11: ex['at'][12] = s.poll_items(2, 'p3')
            if st == 13:
                ex['early'] = {1: [lambda: s.poll_check(2, 'p3')]}
                ex['dma'] = (h2_touch() if o.get('h2t', 0) else []) + b4_dma(0)
            if st == 14: ex['dma'] = b4_dma(1)
            if st == 15:
                ex['dma'] = b4_dma(2) + ["s_barrier"]
                ex['alu'] = s.capture(yaddr); ex['alug'] = (2, 24)
            return ex
        s.ptype('o', vE, WO, 32 * 1024, 16 * 1024, o_extra)
        s.stamp('oproj')

        def ka_reads(c):
            b = vT0 + 4 * (UNIT[c % 10] >> 16); o_ = UNIT[c % 10] & 0xffff
            return [[('lds', f"ds_read_b64_tr_b16 {a(16 * (c & 1) + 4 * nt + 2 * jh, 2)}, v{b + nt} offset:{o_ + jh * 2048}", ('ya', c)) for jh in range(2)] for nt in range(4)]

        def sp_store(k):
            b, tt = k // 4, k % 4
            return [f"s_xor_b32 s{sB0}, s{sSPX}, {b * 32768 + tt * 8192}", f"s_add_u32 s{sB0}, s{sB0}, s{sSPST}",
                    ('vm', f"buffer_store_dwordx4 {v(vQ + 16 * b + 4 * tt, 4)}, v{vL16}, {srd(WS)}, s{sB0} offen sc1", 'spst')]
        spreg = lambda t, src: (224 + 16 * t + 4 * (src >> 1)) if src % 2 == 0 else (vQ + 16 * t + 4 * (src >> 1))

        def sp_loads(par):
            it = []
            for t in range(2):
                for h in range(2):
                    it += [f"s_xor_b32 s{sT0}, s{sSPY}, {t * 8192}", f"s_add_u32 s{sT0}, s{sT0}, s{sSPLD}", f"s_add_u32 s{sT0}, s{sT0}, {h * 4096}"]
                    it += [('vm', f"buffer_load_dwordx4 {v(spreg(t, 4 * h + 2 * k + par), 4)}, v{vL16}, {srd(WS)}, s{sT0} offen offset:{(2 * k + par) * 1024} sc1", None, True) for k in range(2)]
            return it

        def take(par, test, blocking):
            L = s.label('sp')
            s(f"s_bitcmp1_b32 s{sPASS}, {par}", f"s_cbranch_scc1 {L}")
            if blocking: s.spin(3)
            else: s(*test); s(f"s_cbranch_vccnz {L}")
            s(f"s_bitset1_b32 s{sPASS}, {par}")
            s.item(sp_loads(par)); s(f"{L}:")
        D = o.get('kd', 6)
        x_final = [('vm', f"buffer_load_dwordx4 {v(192, 4)}, v{vD}, {srd(X)}, s{sXF} offen", 'xf'), f"s_add_u32 s{sT1}, s{sXF}, 16384",
                   ('vm', f"buffer_load_dwordx4 {v(196, 4)}, v{vD}, {srd(X)}, s{sT1} offen", 'xf')]
        cA, cB, cl = o.get('cA', 6), o.get('cB', 7), o.get('cl', 10)
        even_mask = f"s_mov_b64 s[{sT2}:{sT3}], 0x55"

        def b4_steps(var, cs, csig):
            s.wait(vm=('yw', 0))
            s.item(ka_reads(0))
            for k in range(16):
                for n in range(2):
                    for j in range(2):
                        r = 128 + 16 * (2 * (k // 4) + n) + 4 * (k % 4) + 2 * j
                        s(f"v_cvt_pk_bf16_f32 v{vQ + 16 * (k // 4) + 4 * (k % 4) + 2 * n + j}, v{r}, v{r + 1}")
                if cs < 0: s.item(sp_store(k))
            if var == 0: s.stamp('spst')
            for c in range(14):
                if c == csig:
                    s.wait(vm='spst'); s("s_barrier"); s.signal(3)
                spine = [mfma(v(128 + 16 * nt + 4 * tt, 4), a(16 * (c & 1) + 4 * nt, 4), a(hbank(c) + 4 * tt, 4), "0" if c == 0 else v(128 + 16 * nt + 4 * tt, 4))
                         for nt in range(4) for tt in range(4)]
                fill = {-1: [('wait', ('y', c), ('ya', c))]}
                ld_ = sum([b4_dma(k) for k in (range(3, D + 1) if c == 0 else [c + D]) if k < 14], [])
                spread(fill, ld_ + ([sp_store(k) for k in range(16)] if c == cs else []), 0, 8)
                if c + 1 < 14:
                    fill.setdefault(9, []).append(('wait', ('yw', c + 1), None))
                    spread(fill, ka_reads(c + 1), 9, 12)
                if c == cA - 1: spread(fill, s.poll_items(3, 'p4'), 10, 15)
                if c == cB - 1: spread(fill, [('vm', s.poll_load(3), 'p5')], 10, 15)
                if c == cA: fill.setdefault(15, []).extend([('wait', 'p4', None), lambda: take(0, s.poll_test(3) + [even_mask, f"s_and_b64 vcc, vcc, s[{sT2}:{sT3}]"], False)])
                if c == cB: fill.setdefault(15, []).extend([('wait', 'p5', None), lambda: take(0, s.poll_test(3), False), lambda: take(1, s.poll_test(3), False)])
                if c == cl: fill.setdefault(15, []).extend([lambda: take(0, None, True), lambda: take(1, None, True)])
                if c == 9: spread(fill, x_final, 0, 8)
                s.weave(spine, fill)
                if var == 0: s.stamp(f'.y{c}')
        s(f"s_mov_b32 s{sPASS}, 0")
        if o.get('stag', 0):
            snap = (list(s.vm), list(s.lg))
            s(f"s_bitcmp1_b32 s{sG}, 0", "s_cbranch_scc1 L_b4_late")
            b4_steps(0, -1, o.get('csig0', 2))
            s("s_branch L_b4_join", "L_b4_late:")
            s.vm, s.lg = snap
            b4_steps(1, o.get('cs1', 2), o.get('csig1', 4))
            s("L_b4_join:")
        else:
            b4_steps(0, -1, o.get('csig0', 2))
        T, U = 208, 144
        wr = [('lds', f"ds_write_b128 v{vD + 1}, {v(128 + 16 * nt + 4 * tt, 4)} offset:{(nt >> 1) * 32768 + (tt >> 1) * 4096 + ((nt & 1) * 2 + (tt & 1)) * 1024}", None)
              for nt in range(4) for tt in range(4)]
        fill = {-1: wr[:4] + [('wait', 0, None)]}
        spread(fill, wr[4:], 0, 22)
        s.weave([mfma(v(T + 8 * n + 4 * t, 4), sel(n), v(spreg(t, src), 4), "0" if src == 0 else v(T + 8 * n + 4 * t, 4))
                 for src in range(8) for t in range(2) for n in range(2)], fill)
        s.wait(lg=0)
        s("s_barrier")
        for sw in range(4):
            for i in range(4): s.lds(f"ds_read_b128 {v(128 + 16 * sw + 4 * i, 4)}, v{vD + 2} offset:{sw * 8192 + i * 1024}", ('red', sw))
        s.wait(lg=('red', 1))
        for i in range(8): s(f"v_pk_add_f32 {v(vACC + 2 * i, 2)}, {v(128 + 2 * i, 2)}, {v(144 + 2 * i, 2)}")
        s.wait(lg=('red', 3))
        for i in range(8): s(f"v_pk_add_f32 {v(160 + 2 * i, 2)}, {v(160 + 2 * i, 2)}, {v(176 + 2 * i, 2)}")
        for i in range(8): s(f"v_pk_add_f32 {v(vACC + 2 * i, 2)}, {v(vACC + 2 * i, 2)}, {v(160 + 2 * i, 2)}")
        for n in range(2):
            for t in range(2): s(mfma(v(vACC + 8 * n + 4 * t, 4), sel(n), v(vX1 + 4 * t, 4), v(vACC + 8 * n + 4 * t, 4)))
        s.stamp('b4')

        for i in range(8): s(f"v_pk_mul_f32 {v(U + 2 * i, 2)}, {v(vACC + 2 * i, 2)}, s[{sC}:{sC + 1}]")
        for i in range(8): s(f"v_pk_mul_f32 {v(T + 2 * i, 2)}, {v(T + 2 * i, 2)}, {v(vACC + 2 * i, 2)}")
        for i in range(16): s(f"v_exp_f32 v{U + i}, v{U + i}")
        for i in range(8): s(f"v_pk_add_f32 {v(U + 2 * i, 2)}, {v(U + 2 * i, 2)}, 1.0 op_sel_hi:[1,0]")
        for i in range(16): s(f"v_rcp_f32 v{U + i}, v{U + i}")
        for i in range(8): s(f"v_pk_mul_f32 {v(T + 2 * i, 2)}, {v(T + 2 * i, 2)}, {v(U + 2 * i, 2)}")
        for t in range(2):
            for op in ("v_permlane32_swap_b32", "v_permlane16_swap_b32"):
                for i in range(4): s(f"{op} v{T + 4 * t + i}, v{T + 8 + 4 * t + i}")
            for h in range(2):
                for j in range(2):
                    r = T + 8 * h + 4 * t + 2 * j; xr = 192 + 4 * t + 2 * h + j
                    s(f"v_dot2_f32_bf16 v{r}, v{xr}, s{sLO}, v{r}", f"v_dot2_f32_bf16 v{r + 1}, v{xr}, s{sHI}, v{r + 1}")
            for h in range(2):
                for j in range(2):
                    r = T + 8 * h + 4 * t + 2 * j
                    s(f"v_cvt_pk_bf16_f32 v{200 + 4 * t + 2 * h + j}, v{r}, v{r + 1}")
            s.vmem(f"buffer_store_dwordx4 {v(200 + 4 * t, 4)}, v{vD}, {srd(OUT)}, s{sT1 if t else sXF} offen", None)
        if s.stamps and o.get('dbgstamp'):
            s.stamp('end')
            L = s.label('ds')
            s(f"s_cmp_lg_u32 s{sW}, 0", f"s_cbranch_scc1 {L}", "s_mov_b64 exec, 1", f"v_mov_b32 v{vX}, 0")
            s(f"v_accvgpr_read_b32 v{vU}, a{STAMP0 + 1}", f"v_accvgpr_read_b32 v{vY}, a{STAMP0 + 1 + 2 * (s.nstamp - 1)}", f"v_not_b32 v{vH}, v{vU}")
            s(f"buffer_atomic_umax v{vY}, v{vX}, {srd(DBG)}, 0 offen offset:4 sc1", f"buffer_atomic_umax v{vH}, v{vX}, {srd(DBG)}, 0 offen offset:12 sc1", "s_waitcnt vmcnt(0)")
            for i in range(1, min(7, s.nstamp)):
                s(f"v_accvgpr_read_b32 v{vY}, a{STAMP0 + 1 + 2 * i}", f"v_sub_u32 v{vY}, v{vY}, v{vU}",
                  f"buffer_atomic_add v{vY}, v{vX}, {srd(DBG)}, 0 offen offset:{12 + 8 * i} sc1", "s_waitcnt vmcnt(0)")
            s(f"{L}:")
        elif s.stamps:
            s.stamp('end')
            s(f"s_lshl_b32 s{sT0}, s2, 2", f"s_add_u32 s{sT0}, s{sT0}, s{sW}", f"s_lshl_b32 s{sT0}, s{sT0}, 9", f"s_add_u32 s{sT0}, s{sT0}, {WS_STAMP}")
            s(f"v_mov_b32 v{vX}, 0", "s_mov_b64 exec, 1")
            for i in range(2 * s.nstamp):
                s(f"v_accvgpr_read_b32 v{vY}, a{STAMP0 + i}", f"buffer_store_dword v{vY}, v{vX}, {srd(WS)}, s{sT0} offen offset:{4 * i}", "s_waitcnt vmcnt(0)")
        s("s_endpgm")

        raw = lambda its: [s(it if isinstance(it, str) else it[1]) for it in its]
        s("L_slow:")
        s("s_waitcnt vmcnt(0) lgkmcnt(0)", "s_barrier")
        for i in range(16): s(f"v_mov_b32 v{vACC + i}, 0xff800000")
        s(f"s_mov_b32 s{sKV}, 0", f"s_mov_b32 s{sPASS}, 0")
        s("L_slow_loop:")
        raw(s.kv_dma(0)[:3] + s.kv_dma(0)[-1:])
        s("s_waitcnt vmcnt(0)", "s_barrier")
        raw(s.k_reads(0))
        s("s_waitcnt lgkmcnt(0)", "s_barrier")
        raw(s.qk_spine(lambda qt: "0"))
        for qt in range(4):
            b = vS_ + 8 * qt; r = vACC + 4 * qt
            for i in range(4): s(f"v_max3_f32 v{r}, v{r}, v{b + 2 * i}, v{b + 2 * i + 1}")
        s(f"s_add_u32 s{sPASS}, s{sPASS}, 1", f"s_cmp_lt_u32 s{sPASS}, 16", "s_cbranch_scc1 L_slow_loop")
        for qt in range(4):
            r = vACC + 4 * qt
            s(*s.xred(r, r + 1, "v_max_f32")); s(f"v_sub_f32 v{r}, 0, v{r}")
            for i in range(1, 4): s(f"v_mov_b32 v{r + i}, v{r}")
        s(f"s_mov_b32 s{sKV}, 0", f"s_mov_b32 s{sOFF}, 0")
        for t in range(4): raw(s.kv_dma(t))
        s("s_waitcnt vmcnt(0)", "s_barrier")
        raw(s.k_reads(0))
        s("s_waitcnt lgkmcnt(0)")
        raw(s.qk_spine(lambda qt: v(vACC + 4 * qt, 4)))
        raw(s.k_reads(1))
        for qt in range(3):
            E, C = s.job(0, qt); raw(E + C)
        s("s_waitcnt lgkmcnt(0)", "s_branch L_attn")
        s("L_end:", "s_endpgm")
        return s.text()


HEADER = """; Fused kernel: x + attention(LN(x)) * silu(mixer-MLP(LN(x))), one persistent workgroup per CU.
; @launch grid=(256,1,1) block=(256,1,1) lds=163840
.amdgcn_target "amdgcn-amd-amdhsa--gfx950"
.text
.globl {n}
.p2align 8
.type {n},@function
{n}:
"""
FOOTER = """.section .rodata,"a"
.p2align 6
.amdhsa_kernel {n}
  .amdhsa_next_free_vgpr 512
  .amdhsa_next_free_sgpr 102
  .amdhsa_accum_offset 256
  .amdhsa_group_segment_fixed_size 0
  .amdhsa_kernarg_size 104
  .amdhsa_user_sgpr_count 2
  .amdhsa_user_sgpr_kernarg_segment_ptr 1
  .amdhsa_system_sgpr_workgroup_id_x 1
  .amdhsa_float_denorm_mode_32 3
.end_amdhsa_kernel
"""


def generate(**kw):
    g = Gen(**kw)
    body = g.build().replace("CPF_N", str(kw.get('cpfn', 17)))
    return HEADER.format(n=NAME) + body + FOOTER.format(n=NAME), g


if __name__ == "__main__":
    import argparse
    ap = argparse.ArgumentParser()
    ap.add_argument("-o", default="k.s"); ap.add_argument("--amap", type=int, default=2); ap.add_argument("--opts", default="")
    ap.add_argument("--dumps", default=""); ap.add_argument("--stamps", action="store_true"); ap.add_argument("--thr", type=int, default=30)
    A_ = ap.parse_args()
    txt, g = generate(amap=A_.amap, dumps=[d for d in A_.dumps.split(",") if d], stamps=A_.stamps, thr_log2=A_.thr, **eval('dict(%s)' % A_.opts))
    open(A_.o, "w").write(txt)
    print("lines", txt.count("\n"), "pads", g.npad, "stamps", g.stamp_names)
```

```python
import re

REG_RE = re.compile(r'^(-?)(abs\()?([vas])(\d+)\)?$')
RNG_RE = re.compile(r'^(-?)([vas])\[(\d+):(\d+)\]$')


def regs_of(tok):
    tok = tok.strip()
    m = RNG_RE.match(tok)
    if m:
        return {(m.group(2), i) for i in range(int(m.group(3)), int(m.group(4)) + 1)}
    m = REG_RE.match(tok)
    if m:
        return {(m.group(3), int(m.group(4)))}
    if tok == 'vcc':
        return {('s', 'vcc')}
    if tok == 'exec':
        return {('s', 'exec')}
    if tok == 'm0':
        return {('s', 'm0')}
    return set()


TRANS = ('v_exp_f32', 'v_log_f32', 'v_rcp_f32', 'v_rsq_f32', 'v_sqrt_f32', 'v_sin_f32', 'v_cos_f32')


class Ins:
    __slots__ = ('text', 'op', 'kind', 'w', 'r', 'A', 'B', 'C', 'data', 'lds', 'dpp', 'wide', 'nops')

    def __init__(s, text):
        s.text = text
        t = text.split(';')[0].strip()
        s.w = set(); s.r = set(); s.A = set(); s.B = set(); s.C = set(); s.data = set()
        s.lds = False; s.dpp = False; s.wide = False; s.nops = 1
        if t.endswith(':') or t.startswith('.') or not t:
            s.op = 'label'; s.kind = 'label'; s.nops = 0
            return
        parts = t.split(None, 1)
        s.op = parts[0]
        rest = parts[1] if len(parts) > 1 else ''
        ops = [o.strip() for o in rest.split(',')] if rest else []
        mods = ''
        if ops:
            last = ops[-1].split(None, 1)
        toks = []
        depth = 0; cur = ''
        for ch in rest:
            if ch == '[': depth += 1
            if ch == ']': depth -= 1
            if ch == ',' and depth == 0:
                toks.append(cur.strip()); cur = ''
            else:
                cur += ch
        if cur.strip(): toks.append(cur.strip())
        if toks:
            sp = toks[-1].split(None, 1)
            toks[-1] = sp[0]
            mods = sp[1] if len(sp) > 1 else ''
        R = [regs_of(x) for x in toks]
        op = s.op
        if op.startswith('v_mfma'):
            s.kind = 'mfma'; s.w = R[0]; s.A = R[1]; s.B = R[2]; s.C = R[3]; s.r = s.A | s.B | s.C
        elif op.startswith('ds_read') or op.startswith('ds_bpermute'):
            s.kind = 'ds'; s.w = R[0]; s.r = set().union(*R[1:])
        elif op.startswith('ds_write'):
            s.kind = 'ds'; s.r = set().union(*R); s.data = s.r
        elif op.startswith('global_load'):
            s.kind = 'vmem'; s.w = R[0]; s.r = set().union(*R[1:])
        elif op.startswith('buffer_load'):
            s.kind = 'vmem'
            if re.search(r'\blds\b', mods):
                s.lds = True; s.r = set().union(*R) | {('s', 'm0')}
            else:
                s.w = R[0]; s.r = set().union(*R[1:])
        elif op.startswith('buffer_store') or op.startswith('buffer_atomic'):
            s.kind = 'vmem'; s.r = set().union(*R); s.data = R[0]
            s.wide = op.endswith('x4') or op.endswith('x3')
            if op.startswith('buffer_atomic') and 'sc0' in mods: s.w = R[0]
        elif op.startswith('v_'):
            s.kind = 'valu'
            s.dpp = ('quad_perm' in mods or 'row_' in mods)
            if op.startswith('v_permlane'):
                s.w = R[0] | R[1]; s.r = R[0] | R[1]
            elif op.startswith('v_cmp'):
                s.w = R[0]; s.r = set().union(*R[1:])
            elif op.startswith('v_add_co') or op.startswith('v_addc_co'):
                s.w = R[0] | R[1]; s.r = set().union(*R[2:])
            else:
                s.w = R[0]; s.r = set().union(*R[1:]) if len(R) > 1 else set()
                if op.startswith('v_fmac') or op.startswith('v_dot2c') or op.startswith('v_writelane'):
                    s.r |= R[0]
        elif op == 's_nop':
            s.kind = 'salu'; s.nops = int(toks[0]) + 1
        elif op.startswith('s_'):
            s.kind = 'salu'
            if op.startswith('s_cmp') or op.startswith('s_cbranch') or op in ('s_waitcnt', 's_barrier', 's_branch', 's_endpgm', 's_setprio', 's_sleep'):
                s.r = set().union(*R) if R else set()
            else:
                s.w = R[0] if R else set(); s.r = set().union(*R[1:]) if len(R) > 1 else set()
        else:
            raise ValueError('unknown instruction ' + text)


def need(p, c):
    n = 0
    if p.kind == 'valu':
        vw = {x for x in p.w if x[0] in 'va'}
        sw = {x for x in p.w if x[0] == 's'}
        if c.kind == 'mfma' and vw & c.r: n = max(n, 2)
        if c.kind == 'valu':
            if c.dpp and vw & c.r: n = max(n, 2)
            if c.op.startswith('v_permlane') and vw & c.r: n = max(n, 2)
            if (c.op.startswith('v_readfirstlane') or c.op.startswith('v_readlane')) and vw & c.r: n = max(n, 1)
            if p.op in TRANS and vw & c.r and c.op not in TRANS: n = max(n, 1)
            if p.op in TRANS and vw & c.r: n = max(n, 1)
            if p.op.startswith('v_dot2'):
                if vw & (c.r | c.w):
                    if c.op == p.op:
                        if not (vw & c.w): n = max(n, 3)
                    else:
                        n = max(n, 3)
            if sw & c.r:
                n = max(n, 4 if (c.op.startswith('v_readlane') or c.op.startswith('v_writelane')) else 2)
        if p.op.startswith('v_dot2') and c.kind in ('ds', 'vmem', 'mfma') and vw & c.r: n = max(n, 3)
        if c.kind == 'vmem' and sw & c.r: n = max(n, 5)
        if c.kind == 'salu' and sw & c.r: n = max(n, 1)
        if ('s', 'exec') in sw:
            if c.kind == 'mfma': n = max(n, 4)
            if c.kind == 'valu': n = max(n, 5)
    elif p.kind == 'mfma':
        if c.kind == 'mfma':
            if p.w & (c.A | c.B): n = max(n, 8)
            if p.w & c.C and p.w != c.C: n = max(n, 6)
            if p.w & c.w and not (p.w & c.C) : n = max(n, 6)
        elif c.kind in ('valu', 'ds', 'vmem'):
            if p.w & (c.r | c.w): n = max(n, 8)
            if c.kind == 'valu' and p.C & c.w: n = max(n, 3)
    elif p.kind == 'vmem':
        if p.wide and c.kind in ('valu', 'mfma', 'ds', 'vmem') and p.data & c.w: n = max(n, 2)
    elif p.kind == 'salu':
        if ('s', 'm0') in p.w and c.kind == 'vmem' and c.lds: n = max(n, 1)
    return n


class K:
    def __init__(s):
        s.items = []
        s.vm = []
        s.lg = []
        s.nlab = 0
        s.cap = None

    def __call__(s, *lines):
        for l in lines:
            for x in l.split('\n'):
                x = x.strip()
                if not x: continue
                if s.cap is not None: s.cap.append(x)
                else: s.items.append(Ins(x))

    def capture(s, fn):
        old = s.cap; s.cap = []
        fn()
        out = s.cap; s.cap = old
        return out

    def bg(s, main, back, lo=0.0, hi=1.0):
        n = len(main); i0 = int(n * lo); i1 = max(i0 + 1, int(n * hi))
        fill = {}
        groups = []
        pend = []
        for it in back:
            if isinstance(it, list): groups.append(pend + it); pend = []
            elif isinstance(it, str) or callable(it): pend.append(it)
            else: groups.append(pend + [it]); pend = []
        if pend:
            if groups: groups[-1] = groups[-1] + pend
            else: groups.append(pend)
        spread(fill, groups, i0, i1 - 1)
        s.weave(main, fill)

    def label(s, base):
        s.nlab += 1
        return f'L_{base}_{s.nlab}'

    def vmem(s, text, tag=None, cond=False):
        if s.cap is not None: s.cap.append(('vm', text, tag, cond)); return
        s(text); s.vm.append((tag, cond))

    def lds(s, text, tag=None):
        if s.cap is not None: s.cap.append(('lds', text, tag)); return
        s(text); s.lg.append(tag)

    def n_vm_after(s, tag):
        idx = max(i for i, (t, c) in enumerate(s.vm) if t == tag)
        return sum(1 for (t, c) in s.vm[idx + 1:] if not c)

    def n_lg_after(s, tag):
        idx = max(i for i, t in enumerate(s.lg) if t == tag)
        return len(s.lg) - idx - 1

    def wait(s, vm=None, lg=None):
        if s.cap is not None: s.cap.append(('wait', vm, lg)); return
        parts = []
        if vm is not None:
            n = 0 if vm == 0 else min(63, s.n_vm_after(vm))
            parts.append(f'vmcnt({n})')
        if lg is not None:
            n = 0 if lg == 0 else min(15, s.n_lg_after(lg))
            parts.append(f'lgkmcnt({n})')
        s('s_waitcnt ' + ' '.join(parts))

    def item(s, it):
        if isinstance(it, str): s(it)
        elif isinstance(it, list):
            for x in it: s.item(x)
        elif callable(it): it()
        elif it[0] == 'vm': s.vmem(it[1], it[2], it[3] if len(it) > 3 else False)
        elif it[0] == 'lds': s.lds(it[1], it[2])
        elif it[0] == 'wait': s.wait(it[1], it[2])
        else: raise ValueError(it)

    def weave(s, spine, fill):
        for x in fill.get(-1, []): s.item(x)
        for i, m in enumerate(spine):
            s.item(m)
            for x in fill.get(i, []): s.item(x)
        extra = [g for g in fill if g >= len(spine) and fill[g]]
        assert not extra, extra

    def text(s, stubs=None):
        if stubs:
            items = []
            for n, ins in enumerate(s.items):
                if n in stubs: items += [Ins(x) for x in stubs[n]]
                items.append(ins)
            s.items = items
        out = []
        hist = []
        saved = {}
        labpos = {i.text[:-1]: n for n, i in enumerate(s.items) if i.kind == 'label' and i.text.endswith(':')}
        npad = 0

        def req_for(h, ins, dist0=0):
            req = 0; dist = dist0
            for p in reversed(h):
                n = need(p, ins) - dist
                if n > req: req = n
                dist += p.nops
                if dist >= 12: break
            return req
        hists = [hist]
        for n, ins in enumerate(s.items):
            if ins.kind == 'label':
                out.append(ins.text)
                name = ins.text[:-1]
                if name in saved: hists = hists + saved.pop(name)
                continue
            req = max([req_for(h, ins) for h in hists] + [0])
            if ins.op.startswith('s_cbranch') or ins.op == 's_branch':
                tgt = ins.text.split()[-1]
                if tgt in labpos and labpos[tgt] < n:
                    d = 1
                    for c in s.items[labpos[tgt] + 1: labpos[tgt] + 14]:
                        if c.kind == 'label': continue
                        for h in hists: req = max(req, req_for(h, c, d))
                        d += c.nops
            if req > 0:
                nop = Ins(f's_nop {req - 1}')
                for h in hists: h.append(nop)
                out.append('  ' + nop.text); npad += 1
            for h in hists:
                h.append(ins)
                if len(h) > 16: del h[0]
            out.append('  ' + ins.text)
            if ins.op.startswith('s_cbranch') or ins.op == 's_branch':
                tgt = ins.text.split()[-1]
                if tgt in labpos and labpos[tgt] > n:
                    saved.setdefault(tgt, []).extend([list(h) for h in hists])
                if ins.op == 's_branch': hists = []
            if ins.op == 's_endpgm': hists = []
            if len(hists) > 1:
                u = []
                for h in hists:
                    if not any([id(x) for x in h[-12:]] == [id(x) for x in g[-12:]] for g in u): u.append(h)
                hists = u
            if not hists: hists = [[]]
        s.npad = npad
        return '\n'.join(out) + '\n'


def spread(fill, items, g0, g1):
    n = len(items)
    if n == 0: return
    span = g1 - g0 + 1
    for i, it in enumerate(items):
        g = g0 + (i * span) // n
        fill.setdefault(g, [])
        if isinstance(it, list): fill[g].extend(it)
        else: fill[g].append(it)
```

```python
import math, struct
from emit import K, spread

NAME = "recurrent_scan__sliding_block_cached__mixer_s_mlp__prompt_kernel"

HPL = 33024
WS_H, WS_FLAG, WS_X1, WS_H2, WS_SP = 0, 0x300000, 0x400000, 0x800000, 0x1000000
WS_DUMP, WS_STAMP = 0x4000000, 0x8000000
SLOT = [65536, 98304, 131072]
SCR = 65536 + 3 * 8192 + 7 * 1024
KVPOS = [32768, 49152, 65536, 81920]
UNIT = [b + h * 4096 for b in (98304, 131072, 65536, 0, 32768) for h in (0, 1)]
sW, sTB, sG, sTH, sCH = 3, 4, 5, 6, 7
X, KC, VC, WQ, WO, W1, W2, W3, W4, OUT, DBG, WS = [8 + 4 * i for i in range(12)]
sT0, sT1, sT2, sT3 = 56, 57, 58, 59
sOFF, sRING, sKV, sKVM = 60, 61, 62, 63
sONE2, sLO, sHI, sINV = 64, 65, 66, 67
sC = 68
sHST, sHLD, sX1ST, sX1LD, sX1S, sH2ST, sH2LD, sSPST, sSPX, sSPLD, sSPY, sXF, sFLG, sFLC = range(76, 90)
sTC, sJ, sJJ, sJC, sB0, sB1, sPASS, sSPIN = range(94, 102)
sPC = 72
sW14 = 75
sTD, sJD, sFLD = 70, 71, 74
vL16, vL, vB, vB2 = 0, 1, 2, 3
vT0, vT1 = 4, 12
vD, vE = 20, 24
vS = 28
vX, vY = 30, 31
vX1 = 32
vU, vH, vW4, vPA, vPV = 40, 41, 42, 46, 47
vACC = 48
vQ = 64
vR = 96
vEA = 116
vS_, vP, vRAW = 128, 160, 192
vT3 = 192
aONE, aSEL, STAMP0, aDUMMY = 208, 212, 218, 255


def srd(r): return f"s[{r}:{r + 3}]"
def v(b, n=1): return f"v{b}" if n == 1 else f"v[{b}:{b + n - 1}]"
def a(b, n=1): return f"a{b}" if n == 1 else f"a[{b}:{b + n - 1}]"
def mfma(d, A, B, C): return f"v_mfma_f32_16x16x32_bf16 {d}, {A}, {B}, {C}"
def f2u(x): return struct.unpack('<I', struct.pack('<f', x))[0]
def sel(n): return a(aSEL + 2 - 2 * n, 4)
def blk(n_nt):
    return [(2 * b + (i & 1 ^ (i >> 1) & 1), 2 * h + (i >> 1)) for b in range(n_nt // 2) for h in ((0, 1) if b % 2 == 0 else (1, 0)) for i in range(4)]
def isize(t):
    op = t.split()[0]
    if op in ('s_waitcnt', 's_barrier', 's_nop') or op.startswith('s_cbranch') or op in ('v_exp_f32', 'v_rcp_f32', 's_branch'): return 4
    return 8
def merge(fill, other):
    for g, its in other.items(): fill.setdefault(g, []).extend(its)


class Gen(K):
    def __init__(s, amap=2, dumps=(), stamps=False, thr_log2=30, only=None, **opt):
        super().__init__()
        s.amap = amap; s.dumps = set(dumps); s.stamps = stamps; s.nstamp = 0; s.thr = thr_log2; s.only = only; s.opt = opt
        s.stamp_names = []

    def stamp(s, name):
        if not s.stamps: return
        if s.only is None:
            if name[0] == '.': return
        elif name not in s.only: return
        i = s.nstamp; s.nstamp += 1
        assert i < 18
        s.stamp_names.append(name)
        s("s_memtime s[90:91]", "s_memrealtime s[92:93]", "s_waitcnt lgkmcnt(0)")
        s(f"v_accvgpr_write_b32 a{STAMP0 + 2 * i}, s90", f"v_accvgpr_write_b32 a{STAMP0 + 1 + 2 * i}, s92")

    def dump(s, name, regs, slot):
        if name not in s.dumps: return
        s("s_waitcnt vmcnt(0) lgkmcnt(0)", "s_nop 7", "s_nop 7")
        s(f"s_lshl_b32 s{sT0}, s{sTB}, 5", f"s_lshl_b32 s{sT1}, s{sG}, 2", f"s_add_u32 s{sT0}, s{sT0}, s{sT1}", f"s_add_u32 s{sT0}, s{sT0}, s{sW}")
        s(f"s_mul_i32 s{sT0}, s{sT0}, {len(regs) * 256}", f"s_add_u32 s{sT0}, s{sT0}, {WS_DUMP + slot * 0x1000000}")
        s(f"v_lshlrev_b32 v{vX}, 2, v{vL}")
        for r in regs:
            s(f"buffer_store_dword {r}, v{vX}, {srd(WS)}, s{sT0} offen", f"s_add_u32 s{sT0}, s{sT0}, 256", "s_waitcnt vmcnt(0)")

    def mk_srd(s, r, ptr, size, off=None):
        if off is None:
            s(f"s_mov_b32 s{r}, s{ptr}", f"s_mov_b32 s{r + 1}, s{ptr + 1}", f"s_mov_b32 s{r + 2}, {size}")
        else:
            s(f"s_add_u32 s{r}, s{ptr}, s{off}", f"s_addc_u32 s{r + 1}, s{ptr + 1}, 0", f"s_sub_u32 s{r + 2}, {size}, s{off}")
        s(f"s_mov_b32 s{r + 3}, 0x20000")

    def lin(s, dst, const, *terms):
        (r0, m0), rest = terms[0], terms[1:]
        mul = lambda d, r, m: f"s_lshl_b32 s{d}, s{r}, {int(math.log2(m))}" if m & (m - 1) == 0 else f"s_mul_i32 s{d}, s{r}, {m}"
        s(mul(dst, r0, m0))
        for r, m in rest: s(mul(sT0, r, m), f"s_add_u32 s{dst}, s{dst}, s{sT0}")
        if const: s(f"s_add_u32 s{dst}, s{dst}, {const}")

    def t256q(s, dst, base_s):
        s(f"v_lshrrev_b32 v{vX}, 4, v{vL}", f"v_bfe_u32 v{vY}, v{vL}, 2, 2", f"v_lshl_add_u32 v{vX}, v{vX}, 2, v{vY}", f"v_lshlrev_b32 v{dst}, 8, v{vX}",
          f"v_lshl_add_u32 v{dst}, v{vY}, 6, v{dst}", f"v_and_b32 v{vY}, 3, v{vL}", f"v_lshl_add_u32 v{dst}, v{vY}, 4, v{dst}", f"v_add_u32 v{dst}, s{base_s}, v{dst}")
        for nt in range(1, 8): s(f"v_xor_b32 v{dst + nt}, {((nt >> 1) << 6) | ((nt & 1) << 3)}, v{dst}")

    def t256(s, dst, base_s=None, base_imm=0, kv=False):
        s(f"v_lshrrev_b32 v{vX}, 4, v{vL}", f"v_bfe_u32 v{vY}, v{vL}, 2, 2", f"v_and_b32 v{vU}, 1, v{vX}", f"v_lshl_add_u32 v{vU}, v{vU}, 2, v{vY}")
        if kv: s(f"v_lshrrev_b32 v{vX}, 1, v{vX}", f"v_lshlrev_b32 v{vX}, 12, v{vX}", f"v_lshl_add_u32 v{dst}, v{vU}, 8, v{vX}")
        else: s(f"v_lshl_add_u32 v{vX}, v{vX}, 2, v{vY}", f"v_lshlrev_b32 v{dst}, 8, v{vX}")
        s(f"v_and_b32 v{vY}, 3, v{vL}", f"v_lshl_add_u32 v{dst}, v{vY}, 3, v{dst}", f"v_lshl_add_u32 v{dst}, v{vU}, 5, v{dst}")
        if base_s is not None: s(f"v_add_u32 v{dst}, s{base_s}, v{dst}")
        if base_imm: s(f"v_add_u32 v{dst}, {base_imm}, v{dst}")
        for nt in range(1, 8): s(f"v_xor_b32 v{dst + nt}, {nt << 5}, v{dst}")

    def t128(s, dst, n, base_s=None, base_imm=0, pair_s=None):
        s(f"v_lshrrev_b32 v{vX}, 4, v{vL}", f"v_bfe_u32 v{vY}, v{vL}, 2, 2", f"v_lshl_add_u32 v{vU}, v{vX}, 2, v{vY}", f"v_lshlrev_b32 v{dst}, 7, v{vU}",
          f"v_bfe_u32 v{vU}, v{vU}, 1, 2", f"v_lshl_add_u32 v{dst}, v{vU}, 5, v{dst}", f"v_and_b32 v{vY}, 3, v{vL}", f"v_lshl_add_u32 v{dst}, v{vY}, 3, v{dst}")
        if base_s is not None: s(f"v_add_u32 v{dst}, s{base_s}, v{dst}")
        if base_imm: s(f"v_add_u32 v{dst}, {base_imm}, v{dst}")
        if pair_s is not None: s(f"s_lshl_b32 s{sT0}, s{pair_s}, 6", f"v_xor_b32 v{dst}, s{sT0}, v{dst}")
        for nt in range(1, n): s(f"v_xor_b32 v{dst + nt}, {nt << 5}, v{dst}")

    def d256(s, dst, RS, natural, blk=False):
        if blk:
            s(f"v_lshrrev_b32 v{vX}, 4, v{vL}", f"v_lshlrev_b32 v{vY}, 6, v{vX}", f"v_and_b32 v{vU}, 0xf0, v{vL16}", f"v_xor_b32 v{vY}, v{vY}, v{vU}",
              f"v_mul_u32_u24 v{vX}, {RS}, v{vX}", f"v_add_u32 v{dst}, v{vX}, v{vY}")
            for p in range(1, 4): s(f"v_add_u32 v{dst + p}, {8 * p * RS - 1024 * p}, v{dst}")
            return
        s(f"v_lshrrev_b32 v{vX}, 4, v{vL}", f"v_lshlrev_b32 v{vY}, 5, v{vX}", f"v_and_b32 v{vU}, 0xf0, v{vL16}", f"v_xor_b32 v{vY}, v{vY}, v{vU}",
          f"v_mul_u32_u24 v{vX}, {RS}, v{vX}", f"v_add_u32 v{dst}, v{vX}, v{vY}", f"v_xor_b32 v{vY}, 0x80, v{vY}", f"v_add_u32 v{vX}, v{vX}, v{vY}")
        ro = lambda p: (8 if natural else 4) * p * RS - 1024 * p
        s(f"v_add_u32 v{dst + 1}, {ro(1)}, v{vX}", f"v_add_u32 v{dst + 2}, {ro(2)}, v{dst}", f"v_add_u32 v{dst + 3}, {ro(3)}, v{vX}")

    def d128(s, dst, RS, natural, oob_w3=False):
        s(f"v_lshrrev_b32 v{vX}, 3, v{vL}")
        if natural: s(f"v_lshrrev_b32 v{vY}, 2, v{vX}", f"v_and_b32 v{vX}, 3, v{vX}", f"v_lshl_add_u32 v{vX}, v{vY}, 3, v{vX}")
        s(f"v_mul_u32_u24 v{vX}, {RS}, v{vX}", f"v_lshrrev_b32 v{vY}, 4, v{vL}", f"v_lshlrev_b32 v{vY}, 5, v{vY}", f"v_and_b32 v{vU}, 0x70, v{vL16}", f"v_xor_b32 v{vY}, v{vY}, v{vU}",
          f"v_add_u32 v{dst}, v{vX}, v{vY}")
        if oob_w3:
            s(f"s_cmp_eq_u32 s{sW}, 3", f"s_cselect_b32 s{sT0}, 23, 31", f"v_and_b32 v{vY}, 64, v{vY}", f"v_lshlrev_b32 v{vY}, s{sT0}, v{vY}", f"v_add_u32 v{dst}, v{dst}, v{vY}")
        for q in range(1, 4):
            ro = ((16 * (q & 1) + 4 * (q >> 1)) if natural else 8 * q) * RS - 1024 * q
            s(f"v_add_u32 v{dst + q}, {ro}, v{dst}")

    def dma4(s, vo, S, soff, m0s, m0imm, tag, n=4):
        return [f"s_add_u32 m0, s{m0s}, {m0imm}"] + [('vm', f"buffer_load_dwordx4 v{vo + p}, {srd(S)}, s{soff} offen offset:{1024 * p} {s.opt.get('dmaf', '')} lds", tag) for p in range(n)]

    def pstep_dma(s, vo, S, step_bytes, half_bytes, slot, tag):
        return s.dma4(vo, S, sOFF, sRING, slot * 32768, tag) + [f"s_add_u32 s{sOFF}, s{sOFF}, {half_bytes}"] \
            + s.dma4(vo, S, sOFF, sRING, slot * 32768 + 4096, tag) + [f"s_add_u32 s{sOFF}, s{sOFF}, {step_bytes - half_bytes}"]

    def w12_dma(s, S, half, tag):
        it = []
        for k in range(2):
            it += [f"s_lshl_b32 s{sB0}, s{sW}, 16", f"s_add_u32 s{sB0}, s{sB0}, {(half * 8 + k) * 32768}"] + s.dma4(vE, S, sB0, sRING, 32768 * (1 + half) + 4096 * k, tag)
        return it

    def kv_dma(s, g):
        ld = lambda i, S: ('vm', f"buffer_load_dwordx4 v{vE + i}, {srd(S)}, s{sKV} offen offset:{1024 * i} lds", ('kv', g))
        return [f"s_add_u32 m0, s{sKVM}, {KVPOS[(g + 3) & 3]}"] + ([ld(0, KC), ld(1, KC)] if g < 15 else []) + ([ld(2, VC), ld(3, VC)] if g >= 0 else []) \
            + [f"s_add_u32 s{sKV}, s{sKV}, 8192"]

    def signal(s, field):
        L = s.label('sig')
        s(f"s_or_b32 s{sT0}, s{sW}, s{sPASS}" if field == 1 else f"s_mov_b32 s{sT0}, s{sW}", f"s_cmp_lg_u32 s{sT0}, 0", f"s_cbranch_scc1 {L}")
        if field < 2:
            s(f"s_lshl_b32 s{sT0}, s{sTB}, 3", f"v_mov_b32 v{vX}, s{sT0}", f"v_mov_b32 v{vY}, {1 << (8 * field)}", "s_mov_b64 exec, 1")
            s.vmem(f"buffer_atomic_add v{vY}, v{vX}, {srd(DBG)}, 0 offen sc1", None, cond=True)
        else:
            s(f"v_mov_b32 v{vX}, s{sFLC if field == 2 else sFLG}", f"v_mov_b32 v{vY}, 1", "s_mov_b64 exec, 1")
            s.vmem(f"buffer_store_dword v{vY}, v{vX}, {srd(WS)}, 0 offen offset:{(field - 2) * 128} sc1", None, cond=True)
        s("s_mov_b64 exec, -1", f"{L}:")

    def poll_load(s, field):
        if field < 2: return f"buffer_load_dword v{vPV}, v{vPA}, {srd(DBG)}, 0 offen sc1"
        return f"buffer_load_dword v{vPV}, v{vPA}, {srd(WS)}, 0 offen offset:{(field - 2) * 128} sc1"

    def poll_items(s, field, tag):
        if field == 0:
            it = [f"v_min_u32 v{vPA}, 2, v{vL}", f"v_add_u32 v{vPA}, s{sTB}, v{vPA}", f"v_subrev_u32 v{vPA}, 1, v{vPA}",
                  f"v_max_i32 v{vPA}, 0, v{vPA}", f"v_min_i32 v{vPA}, 31, v{vPA}", f"v_lshlrev_b32 v{vPA}, 3, v{vPA}"]
        elif field == 1:
            it = [f"s_lshl_b32 s{sT0}, s{sTD}, 3", f"v_mov_b32 v{vPA}, s{sT0}", f"s_lshl_b32 s{sT0}, s{sTC}, 3", f"v_writelane_b32 v{vPA}, s{sT0}, 0"]
        else: it = [f"v_and_b32 v{vPA}, 7, v{vL}", f"v_lshl_add_u32 v{vPA}, v{vPA}, 2, s{sFLD}"]
        return it + [('vm', s.poll_load(field), tag)]

    def poll_test(s, field):
        if field < 2: return [f"v_bfe_u32 v{vPV}, v{vPV}, {8 * field}, 8", f"v_cmp_gt_u32 vcc, 8, v{vPV}"]
        return [f"v_cmp_ne_u32 vcc, 1, v{vPV}"]

    def spin(s, field):
        Lsp, Lok = s.label('spin'), s.label('ok')
        s(f"s_mov_b32 s{sSPIN}, 0", f"{Lsp}:")
        s.vmem(s.poll_load(field), None, cond=True)
        s("s_waitcnt vmcnt(0)", f"s_add_u32 s{sSPIN}, s{sSPIN}, 1", f"s_cmp_gt_u32 s{sSPIN}, 0x40000", f"s_cbranch_scc1 {Lok}")
        s(*s.poll_test(field)); s(f"s_cbranch_vccnz {Lsp}", f"{Lok}:")

    def poll_check(s, field, tag):
        L = s.label('rdy')
        s.wait(vm=tag)
        s(*s.poll_test(field)); s(f"s_cbranch_vccz {L}")
        s.spin(field)
        s(f"{L}:")

    def code_touch(s, lo, hi, n):
        L = s.label('ct')
        return [[f"s_cmp_lt_u32 s{sW}, 3", f"s_cbranch_scc1 {L}", f"s_lshr_b32 s{sB1}, s2, 3", f"s_mul_i32 s{sB1}, s{sB1}, {n}", f"v_add_u32 v{vX}, s{sB1}, v{vL}",
                 f"v_lshlrev_b32 v{vX}, 7, v{vX}", f"v_min_u32 v{vX}, {hi}-{lo}, v{vX}", f"v_add_u32 v{vX}, {lo}-L_pc2, v{vX}", f"v_mov_b32 v{vY}, s{sPC + 1}",
                 f"v_add_co_u32 v{vX}, vcc, s{sPC}, v{vX}", f"v_addc_co_u32 v{vY}, vcc, 0, v{vY}, vcc", f"s_mov_b64 exec, {(1 << n) - 1}",
                 ('vm', f"global_load_dword a{aDUMMY}, v[{vX}:{vY}], off", None, True), "s_mov_b64 exec, -1", f"{L}:"]]

    def xred(s, r, tmp, op):
        return [f"v_mov_b32 v{tmp}, v{r}", f"v_permlane32_swap_b32 v{r}, v{tmp}", f"{op} v{r}, v{r}, v{tmp}",
                f"v_mov_b32 v{tmp}, v{r}", f"v_permlane16_swap_b32 v{r}, v{tmp}", f"{op} v{r}, v{r}, v{tmp}"]

    def ln_stats(s, tagf):
        SUM, SQ = vACC, vACC + 4
        sp, fl = [], {}
        for m in range(16):
            R = v(vRAW + 4 * m, 4)
            if m % 4 == 0: fl[2 * m - 1] = [('wait', tagf(m // 4), None)]
            sp += [mfma(v(SUM, 4), a(aONE, 4), R, "0" if m == 0 else v(SUM, 4)), mfma(v(SQ, 4), R, R, "0" if m == 0 else v(SQ, 4))]
        return sp, fl

    def ln_centre(s, first, wr_addr):
        SUM, SQ, NEG = vACC, vACC + 4, vACC + 8
        s(f"v_and_b32 v{vX}, 3, v{vL}", f"v_cmp_eq_u32 s[{sT0}:{sT0 + 1}], 1, v{vX}", f"v_cmp_eq_u32 s[{sT2}:{sT2 + 1}], 2, v{vX}", f"v_cmp_eq_u32 vcc, 3, v{vX}",
          f"v_lshrrev_b32 v{vX}, 4, v{vL}", f"v_bfe_u32 v{vY}, v{vL}, 2, 2")
        for i in range(4): s(f"v_mul_f32 v{NEG + i}, {f2u(-1.0 / 512)}, v{SUM + i}")
        stat = [f"v_cndmask_b32 v{SQ}, v{SQ}, v{SQ + 1}, s[{sT0}:{sT0 + 1}]", f"v_cndmask_b32 v{SQ}, v{SQ}, v{SQ + 2}, s[{sT2}:{sT2 + 1}]",
                f"v_cndmask_b32 v{SQ}, v{SQ}, v{SQ + 3}, vcc", f"v_cmp_eq_u32 vcc, v{vX}, v{vY}", f"v_mul_f32 v{SUM + 1}, v{NEG}, v{NEG}", f"v_and_b32 v{vX}, 15, v{vL}",
                f"v_cndmask_b32 v{SQ}, 0, v{SQ}, vcc"]
        stat += s.xred(SQ, SQ + 1, "v_add_f32")
        stat += [f"v_fma_f32 v{SQ}, v{SQ}, s{sINV}, -v{SUM + 1}", f"v_max_f32 v{SQ}, 0, v{SQ}", f"v_add_f32 v{SQ + 1}, {f2u(1e-5)}, v{SQ}", f"v_rsq_f32 v{SUM}, v{SQ + 1}",
                 f"s_lshl_b32 s{sT0}, s{sW}, {7 if first else 6}", f"s_add_u32 s{sT0}, s{sT0}, {SCR}", f"v_lshl_add_u32 v{vX}, v{vX}, {3 if first else 2}, s{sT0}"]
        if first:
            stat += [f"v_mul_f32 v{SQ}, v{SQ}, v{SUM}", f"v_mul_f32 v{SQ}, v{SQ}, v{SUM}", f"v_add_f32 v{SQ}, {f2u(1e-5)}, v{SQ}", f"v_rsq_f32 v{SQ}, v{SQ}", "s_nop 0",
                     f"v_mul_f32 v{SUM + 1}, v{SQ}, v{SUM}", ('lds', f"ds_write_b64 v{vX}, {v(SUM, 2)}", 'rw')]
        else:
            stat += [('lds', f"ds_write_b32 v{vX}, v{SUM}", 'rw')]
        spine = [mfma(v(128 + 8 * (m & 3) + 4 * u, 4), sel(u), v(vRAW + 4 * m, 4), v(NEG, 4)) for m in range(16) for u in range(2)]

        def out(m):
            t = 128 + 8 * (m & 3); p = 160 + 4 * (m & 3)
            return [f"v_cvt_pk_bf16_f32 v{p + i}, v{t + 2 * i}, v{t + 2 * i + 1}" for i in range(4)] + [('lds', f"ds_write_b128 v{wr_addr}, {v(p, 4)} offset:{m * 1024}", 'lnw')]
        fill = {}
        for m in range(14):
            o = out(m)
            fill.setdefault(2 * m + 4, []).extend(o[:2]); fill.setdefault(2 * m + 5, []).extend(o[2:])
        spread(fill, stat, 0, 27)
        s.weave(spine, fill)
        for it in out(14) + out(15): s.item(it)

    def gelu_pairs(s, regs, tmp):
        for b in range(0, len(regs), 4):
            grp = list(zip(regs[b:b + 4], [tmp + 2 * i for i in range(4)]))
            for (r, c), t in grp: s(f"v_pk_mul_f32 {v(t, 2)}, {v(r, 2)}, {v(r, 2)}")
            for (r, c), t in grp: s(f"v_pk_fma_f32 {v(t, 2)}, {v(t, 2)}, {v(c, 2)}, {v(c, 2)} op_sel:[0,0,1] op_sel_hi:[1,0,1]")
            for (r, c), t in grp: s(f"v_pk_mul_f32 {v(t, 2)}, {v(t, 2)}, {v(r, 2)}")
            for (r, c), t in grp: s(f"v_exp_f32 v{t}, v{t}", f"v_exp_f32 v{t + 1}, v{t + 1}")
            for (r, c), t in grp: s(f"v_pk_fma_f32 {v(t, 2)}, {v(t, 2)}, {v(c + 2, 2)}, {v(c + 2, 2)} op_sel_hi:[1,0,0]")
            for (r, c), t in grp: s(f"v_rcp_f32 v{t}, v{t}", f"v_rcp_f32 v{t + 1}, v{t + 1}")
            for (r, c), t in grp: s(f"v_pk_mul_f32 {v(r, 2)}, {v(t, 2)}, {v(r, 2)}")

    def gelu_consts(s, dst, r):
        kk = 2 * 0.7978845608028654 * 1.4426950408889634
        return [f"v_mul_f32 v{dst}, v{r}, v{r}", f"v_mul_f32 v{dst + 1}, {f2u(-kk)}, v{r}", f"v_rcp_f32 v{dst + 2}, v{r}",
                f"v_mul_f32 v{dst}, v{dst}, v{dst + 1}", f"v_mul_f32 v{dst}, {f2u(0.044715)}, v{dst}"]

    def stype_reads(s, m, tagp):
        buf = 16 * (m & 3)
        B = [('lds', f"ds_read_b128 {a(buf + 8 + 4 * i, 4)}, v{vB2} offset:{(16 * i + m) * 1024}", (tagp, m)) for i in range(2)]
        A = [[('lds', f"ds_read_b64_tr_b16 {a(buf + 4 * i + 2 * jh, 2)}, v{vS + i} offset:{m * 4096 + jh * 2048}", (tagp, m)) for jh in range(2)] for i in range(2)]
        return [B, A[0], A[1]]

    def stype(s, tagp, extra):
        spine = []; fill = {}
        for m in range(16):
            buf = 16 * (m & 3)
            for n in range(2):
                for t in range(2):
                    d = v(vACC + 8 * n + 4 * t, 4)
                    spine.append(mfma(d, a(buf + 4 * n, 4), a(buf + 8 + 4 * t, 4), "0" if m == 0 else d))
            if m + 3 < 16:
                for i, grp in enumerate(s.stype_reads(m + 3, tagp)): fill.setdefault(4 * m + i, []).extend(grp)
            fill.setdefault(4 * m - 1, []).append(('wait', None, (tagp, m)))
        merge(fill, extra)
        s.weave(spine, fill)

    def p_reads_A(s, st, tagp):
        buf = 32 * (st & 1); slot = st % 3
        base = vT1 if slot == 2 else vT0; off = 32768 if slot == 1 else 0
        return [[('lds', f"ds_read_b64_tr_b16 {a(buf + 4 * nt + 2 * jh, 2)}, v{base + nt} offset:{off + jh * 4096}", (tagp, st, 'a' if nt < 4 else 'b')) for jh in range(2)]
                for nt in range(8)]

    def p_bbuf(s, st, bpre):
        return 96 + 16 * (st - 14) if (bpre and st >= 14) else 64 + 16 * (st & 1)

    def p_reads_B(s, st, tagp, bpre=False):
        buf = s.p_bbuf(st, bpre)
        B = [('lds', f"ds_read_b128 {a(buf + 4 * tt, 4)}, v{vB} offset:{(16 * tt + st) * 1024}", (tagp, st, 'a')) for tt in range(4)]
        return [B[:2], B[2:]]

    def ptype(s, tagp, vo, S, step_bytes, half_bytes, extra, bpre=False):
        for st in range(16):
            ab = 32 * (st & 1); bb = s.p_bbuf(st, bpre)
            po = s.opt.get('pord', 'blk')
            order = {'nt': [(nt, tt) for nt in range(8) for tt in range(4)],
                     'serp': [(nt, tt if nt % 2 == 0 else 3 - tt) for nt in range(8) for tt in range(4)],
                     'tt': [(nt if tt % 2 == 0 else 7 - nt, tt) for tt in range(4) for nt in range(8)],
                     'blk': [(2 * b + (i & 1 ^ (i >> 1) & 1), 2 * h + (i >> 1)) for b in range(4) for h in ((0, 1) if b % 2 == 0 else (1, 0)) for i in range(4)]}[po]
            spine = [mfma(v(128 + 16 * nt + 4 * tt, 4), a(ab + 4 * nt, 4), a(bb + 4 * tt, 4), "0" if st == 0 else v(128 + 16 * nt + 4 * tt, 4))
                     for nt, tt in order]
            ex = extra(st)
            fill = {-1: [('wait', None, (tagp, st, 'a'))], 1: [('wait', None, 0)]}
            merge(fill, ex.get('early', {}))
            dm = s.pstep_dma(vo, S, step_bytes, half_bytes, st % 3, (tagp, 'd', st + 3)) if st + 3 < 16 else ex.get('dma', [])
            if st + 1 < 16:
                spread(fill, dm, 2, 9)
                fill.setdefault(9, []).append(('wait', (tagp, 'd', st + 1), None))
                A = s.p_reads_A(st + 1, tagp)
                if bpre and st >= 13: rd = A
                else:
                    B = s.p_reads_B(st + 1, tagp); rd = [B[0], A[0], B[1]] + A[1:]
                spread(fill, rd, 10, 26)
                if bpre and st == 12: spread(fill, s.p_reads_B(14, tagp, True) + s.p_reads_B(15, tagp, True), 27, 30)
            else:
                spread(fill, dm, 2, 31)
            merge(fill, ex.get('at', {}))
            if ex.get('alu'): spread(fill, ex['alu'], *ex.get('alug', (2, 31)))
            if ex.get('vm2'): spread(fill, ex['vm2'], 11, 31)
            s.weave(spine, fill)
            s.stamp(f'.{tagp}{st}')

    def k_reads(s, t):
        off = KVPOS[(t + 2) & 3] - KVPOS[0]
        return [('lds', f"ds_read_b128 {a(144 + 16 * u + 4 * ds, 4)}, v{vT1 + ds} offset:{off + u * 8192}", ('K', t, 'ab'[u])) for u in range(2) for ds in range(4)]

    def v_reads(s, t):
        off = KVPOS[(t + 3) & 3] - KVPOS[0]
        return [('lds', f"ds_read_b64_tr_b16 {a(176 + 4 * dt + 2 * jh, 2)}, v{vT0 + dt} offset:{off + jh * 8192}", ('V', t, 'ab'[dt >> 2])) for dt in range(8) for jh in range(2)]

    def qk_spine(s, cinit):
        return [mfma(v(vS_ + 8 * qt + 4 * u, 4), a(144 + 16 * u + 4 * ds, 4), v(vQ + 16 * ds + 4 * qt, 4), v(vS_ + 8 * qt + 4 * u, 4) if ds else cinit(qt))
                for qt in range(4) for u in range(2) for ds in range(4)] if not s.opt.get('qkserp', 1) else [
                mfma(v(vS_ + 8 * qt + 4 * u, 4), a(144 + 16 * u + 4 * ds, 4), v(vQ + 16 * ds + 4 * qt, 4), v(vS_ + 8 * qt + 4 * u, 4) if i else cinit(qt))
                for qt in range(4) for u in range(2) for i, ds in enumerate(range(4) if u == 0 else range(3, -1, -1))]

    def pv_spine(s, t, l_first=False):
        pv, L = [], []
        for qt in range(4):
            p = v(vP + 16 * (t & 1) + 4 * qt, 4)
            pv.append([mfma(a(16 * dt + 4 * qt, 4), a(176 + 4 * dt, 4), p, "0" if t == 0 else a(16 * dt + 4 * qt, 4)) for dt in range(8)])
            L.append(mfma(a(128 + 4 * qt, 4), a(aONE, 4), p, "0" if t == 0 else a(128 + 4 * qt, 4)))
        if s.opt.get('pvserp', 1): pv = [p if qt % 2 == 0 else p[::-1] for qt, p in enumerate(pv)]
        if l_first: return L + sum(pv, [])
        return sum([pv[qt] + [L[qt]] for qt in range(4)], [])

    def job(s, t, qt):
        b = vS_ + 8 * qt
        return ([f"v_exp_f32 v{b + i}, v{b + i}" for i in range(8)],
                [f"v_cvt_pk_bf16_f32 v{vP + 16 * (t & 1) + 4 * qt + i}, v{b + 2 * i}, v{b + 2 * i + 1}" for i in range(4)])

    def build(s):
        o = s.opt
        pa, cmap, pf = o.get('pa', s.amap), o.get('cmap', 4), o.get('pf', 1)
        s("s_cmp_ge_u32 s2, 256", "s_cbranch_scc1 L_end")
        if o.get('perm'):
            s(f"s_mul_i32 s2, s2, {o['perm']}", "s_add_u32 s2, s2, 11", "s_and_b32 s2, s2, 255")
        s.stamp('start')
        s("s_load_dwordx16 s[64:79], s[0:1], 0", "s_load_dwordx8 s[80:87], s[0:1], 64", "s_load_dwordx2 s[88:89], s[0:1], 96")
        s(f"v_and_b32 v{vL}, 63, v0", f"v_lshrrev_b32 v{vX}, 6, v0", f"v_readfirstlane_b32 s{sW}, v{vX}")
        if o.get('cpf', 1):
            L = s.label('cpf')
            s(f"s_cmp_lt_u32 s{sW}, 3", f"s_cbranch_scc1 {L}", f"s_getpc_b64 s[{sT2}:{sT3}]", "L_pcbase:")
            s(f"s_lshr_b32 s{sT0}, s2, 3", f"s_mul_i32 s{sT0}, s{sT0}, CPF_N", f"v_add_u32 v{vX}, s{sT0}, v{vL}", f"v_lshlrev_b32 v{vX}, 7, v{vX}",
              f"v_min_u32 v{vX}, L_end-L_pcbase, v{vX}", f"v_mov_b32 v{vY}, s{sT3}", f"v_add_co_u32 v{vX}, vcc, s{sT2}, v{vX}", f"v_addc_co_u32 v{vY}, vcc, 0, v{vY}, vcc",
              "s_mov_b64 exec, (1<<CPF_N)-1")
            s.vmem(f"global_load_dword a{aDUMMY}, v[{vX}:{vY}], off", None, cond=True)
            s("s_mov_b64 exec, -1", f"{L}:")
        s(f"s_and_b32 s{sT0}, s2, 7", f"s_lshr_b32 s{sT1}, s2, 3")

        def mapping(am, rT, rG):
            lg = int(math.log2(am))
            s(f"s_and_b32 s{rG}, s{sT0}, {8 // am - 1}", f"s_lshl_b32 s{rG}, s{rG}, {lg}", f"s_and_b32 s{sT2}, s{sT1}, {am - 1}", f"s_add_u32 s{rG}, s{rG}, s{sT2}")
            s(f"s_andn2_b32 s{rT}, s{sT1}, {am - 1}", f"s_lshr_b32 s{sT2}, s{sT0}, {3 - lg}", f"s_add_u32 s{rT}, s{rT}, s{sT2}")
        mapping(s.amap, sTB, sG)
        s(f"v_and_b32 v{vX}, 15, v{vL}", f"s_lshl_b32 s{sT2}, s{sW}, 4", f"v_add_u32 v{vX}, s{sT2}, v{vX}", f"v_lshlrev_b32 v{vX}, 10, v{vX}",
          f"v_lshrrev_b32 v{vY}, 4, v{vL}", f"v_lshl_add_u32 v{vU}, v{vY}, 4, v{vX}", f"s_lshl_b32 s{sOFF}, s{sTB}, 16")
        s("s_waitcnt lgkmcnt(0)")
        s.stamp('.k')
        s.mk_srd(X, 64, 0x200000)
        for m in range(16):
            s.vmem(f"buffer_load_dwordx4 {v(vRAW + 4 * m, 4)}, v{vU}, {srd(X)}, s{sOFF} offen offset:{m * 64}", ('x', m // 4))
        s.stamp('.xi')
        if o.get('hop'):
            s("s_mov_b64 exec, 0")
            for w_ in range(3): s(f"s_cmp_eq_u32 s{sW}, {w_}", f"s_cbranch_scc1 L_hop_{w_}_0")
            s("s_branch L_hop_3_0", "L_hop_back:", "s_mov_b64 exec, -1")
        mapping(cmap, sTC, sJ)
        s(f"s_lshr_b32 s{sJC}, s{sT1}, {int(math.log2(cmap))}")
        s(f"s_lshr_b32 s{sJJ}, s{sT1}, {int(math.log2(s.amap))}" if pa == s.amap else f"s_lshr_b32 s{sJJ}, s{sTB}, {int(math.log2(pa))}")
        s(f"s_and_b32 s{sTH}, s{sW}, 1", f"s_lshr_b32 s{sCH}, s{sW}, 1", f"v_lshlrev_b32 v{vL16}, 4, v{vL}")
        s.lin(sT3, 0, (sG, 1024), (sW, 256)); s.mk_srd(WQ, 70, 0x400000, sT3)
        s.lin(sT3, 0, (sG, 128)); s.mk_srd(W1, 76, 0x80000, sT3); s.mk_srd(W2, 78, 0x80000, sT3)
        s.lin(sT3, 1536 * 256, (sG, 1 << 19)); s.mk_srd(KC, 66, 0x400000, sT3)
        s(f"s_sub_u32 s{sT3}, s{sT3}, {2048 + 8192}"); s.mk_srd(VC, 68, 0x400000, sT3)
        s.lin(sT3, 0, (sG, 1 << 19), (sW, 256)); s.mk_srd(WO, 72, 0x400000, sT3)
        s(f"s_and_b32 s{sT2}, s{sJ}, 1", f"s_lshl_b32 s{sT3}, s{sW}, 1", f"s_add_u32 s{sT3}, s{sT3}, s{sT2}", f"s_cmp_eq_u32 s{sT3}, 7", f"s_cselect_b32 s{sT3}, 0, s{sT3}",
          f"s_mul_i32 s{sT2}, s{sJ}, 7", f"s_add_u32 s{sSPIN}, s{sT3}, s{sT2}", f"s_lshl_b32 s{sT3}, s{sSPIN}, 6")
        s.mk_srd(W3, 80, 0x1c0000, sT3)
        dmap = o.get('dmap', 4)
        s(f"s_and_b32 s{sT0}, s2, 7")
        mapping(dmap, sTD, sJD)
        s.lin(sT3, 0, (sJD, 128)); s.mk_srd(W4, 82, 0x1c0000, sT3)
        s.mk_srd(OUT, 84, 0x200000); s.mk_srd(DBG, 86, 256); s.mk_srd(WS, 88, 0x10000000)
        s(f"s_getpc_b64 s[{sPC}:{sPC + 1}]", "L_pc2:")
        s(f"s_mov_b32 s{sONE2}, 0x3f803f80", f"s_mov_b32 s{sLO}, 0x00003f80", f"s_mov_b32 s{sHI}, 0x3f800000", f"s_mov_b32 s{sINV}, {f2u(1.0 / 512)}")
        s(f"s_mov_b32 s{sC}, {f2u(-1.4426950408889634)}", f"s_mov_b32 s{sC + 1}, {f2u(-1.4426950408889634)}")
        s(f"s_lshl_b32 s{sKVM}, s{sW}, 12", f"s_mov_b32 s{sKV}, 0", f"s_mov_b32 s{sPASS}, 0")
        s.lin(sRING, SLOT[0], (sW, 8192))
        s.d128(vE, 1024, True)
        noswap = o.get('noswap', 0)
        s.d256(vD, 8192, True, blk=noswap)
        s.lin(sHST, WS_H + 128, (sG, 8 * HPL), (sCH, 4 * HPL), (sTB, 1024), (sTH, 512))
        s.lin(sHLD, WS_H, (sTB, 1024), (sW, 256))
        s.lin(sX1ST, WS_X1, (sTB, 65536), (sTH, 32768), (sG, 2048), (sCH, 1024))
        s.lin(sX1LD, WS_X1, (sTC, 65536), (sW, 16384))
        s.lin(sX1S, WS_X1, (sTD, 65536), (sTH, 32768), (sJD, 2048), (sCH, 1024))
        s.lin(sH2ST, WS_H2, (sTC, 229376), (sSPIN, 4096))
        s.lin(sH2LD, WS_H2, (sTD, 229376), (sW, 4096))
        s.lin(sSPST, WS_SP, (sTB, 1 << 19), (sW, 1 << 17), (sG, 1024))
        s(f"s_and_b32 s{sSPX}, s{sTB}, 15", f"s_lshl_b32 s{sSPX}, s{sSPX}, 13")
        s.lin(sSPLD, WS_SP, (sTD, 1 << 19), (sJD, 1 << 16), (sCH, 1 << 15), (sTH, 1 << 14))
        s(f"s_and_b32 s{sSPY}, s{sSPLD}, 0x1e000", f"s_andn2_b32 s{sSPLD}, s{sSPLD}, 0x1e000", f"s_and_b32 s{sT0}, s{sTD}, 15", f"s_lshl_b32 s{sT0}, s{sT0}, 13",
          f"s_xor_b32 s{sSPY}, s{sSPY}, s{sT0}")
        s.lin(sXF, 0, (sTD, 65536), (sTH, 32768), (sJD, 128), (sCH, 64))
        s.lin(sFLG, WS_FLAG, (sTB, 256), (sG, 4)); s.lin(sFLC, WS_FLAG, (sTC, 256), (sJ, 4)); s.lin(sFLD, WS_FLAG, (sTD, 256))
        s(f"v_lshrrev_b32 v{vX}, 4, v{vL}", f"v_lshlrev_b32 v{vY}, 5, v{vX}", f"v_xor_b32 v{vB}, v{vY}, v{vL16}")
        s(f"v_mul_u32_u24 v{vX}, {HPL}, v{vX}", f"v_and_b32 v{vY}, 0xf0, v{vB}", f"v_add_u32 v{vH}, v{vX}, v{vY}", f"v_and_b32 v{vY}, 0xf0, v{vL16}", f"v_add_u32 v{vEA}, v{vX}, v{vY}")
        s(f"s_lshl_b32 s{sT0}, s{sTH}, 15", f"v_add_u32 v{vB2}, s{sT0}, v{vB}", f"s_lshl_b32 s{sW14}, s{sW}, 14", f"v_add_u32 v{vEA + 1}, s{sW14}, v{vB}")
        if noswap: s.t256q(vT0, sRING)
        else: s.t256(vT0, base_s=sRING)
        for nt in range(8): s(f"v_add_u32 v{vT1 + nt}, 0x10000, v{vT0 + nt}")
        s.t128(vS, 2, base_imm=SLOT[1], pair_s=sCH)
        s(f"v_lshrrev_b32 v{vX}, 1, v{vY}" if False else f"v_and_b32 v{vX}, 15, v{vL}", f"v_lshlrev_b32 v{vX}, 3, v{vX}", f"v_add_u32 v{vEA + 2}, {SCR}, v{vX}", f"s_lshl_b32 s{sT0}, s{sTH}, 8",
          f"v_add_u32 v{vEA + 3}, s{sT0}, v{vEA + 2}")
        s.lin(sT1, 0, (sG, 2048), (sCH, 1024), (sTH, 32768))
        s(f"v_lshrrev_b32 v{vX}, 5, v{vL}", f"v_mul_u32_u24 v{vX}, 0x120, v{vX}", f"v_and_b32 v{vY}, 0xf0, v{vL16}", f"v_xor_b32 v{vX}, v{vX}, v{vY}",
          f"v_bfe_u32 v{vY}, v{vL}, 4, 1", f"v_lshl_add_u32 v{vX}, v{vY}, 3, v{vX}", f"v_add_u32 v{vEA + 4}, s{sT1}, v{vX}", f"v_xor_b32 v{vEA + 5}, 0x240, v{vEA + 4}")
        if pf:
            lg = int(math.log2(pa))
            s(f"v_lshrrev_b32 v{vX}, {lg + 1}, v{vL}", f"v_lshlrev_b32 v{vX}, 18, v{vX}", f"v_bfe_u32 v{vY}, v{vL}, 1, {lg}" if lg else f"v_mov_b32 v{vY}, 0",
              f"s_lshl_b32 s{sT0}, s{sJJ}, {lg}", f"v_add_u32 v{vY}, s{sT0}, v{vY}", f"v_lshl_add_u32 v{vX}, v{vY}, 13, v{vX}", f"v_and_b32 v{vY}, 1, v{vL}",
              f"v_lshl_add_u32 v{vEA + 6}, v{vY}, 7, v{vX}")
        for i in range(4): s(f"v_accvgpr_write_b32 a{aONE + i}, s{sONE2}")
        for i in (0, 1, 4, 5): s(f"v_accvgpr_write_b32 a{aSEL + i}, 0")
        s(f"v_and_b32 v{vX}, 16, v{vL16}", f"v_lshlrev_b32 v{vU}, v{vX}, s{sLO}", f"v_lshrrev_b32 v{vX}, 4, v{vL}", f"v_bfe_u32 v{vY}, v{vL}, 2, 2", f"v_cmp_eq_u32 vcc, v{vX}, v{vY}",
          f"v_and_b32 v{vX}, 2, v{vL}", f"v_cndmask_b32 v{vU}, 0, v{vU}, vcc", f"v_cmp_eq_u32 vcc, 0, v{vX}", "s_nop 1", f"v_cndmask_b32 v{vY}, 0, v{vU}, vcc",
          f"v_sub_u32 v{vX}, v{vU}, v{vY}", f"v_accvgpr_write_b32 a{aSEL + 2}, v{vY}", f"v_accvgpr_write_b32 a{aSEL + 3}, v{vX}")
        touch_wq = [[f"s_mov_b32 s{sB1}, {(k * (32 // pa) + 1) * 32 * 8192}", ('vm', f"buffer_load_dword a{aDUMMY}, v{vEA + 6}, {srd(WQ)}, s{sB1} offen", None)]
                    for k in range(-(-15 // (32 // pa)))] if pf else []
        up = o.get('w1up', 2)
        w1items = s.w12_dma(W1, 0, 'w1') + s.w12_dma(W1, 1, 'w1')
        s.stamp('.alu')
        for it in w1items[:7 * up]: s.item(it)
        s.stamp('setup')

        def ln1():
            sp, fl = s.ln_stats(lambda k: ('x', k))
            s.weave(sp, fl)
            s.ln_centre(True, vEA + 1)
        back = w1items[7 * up:] + [f"s_mov_b32 s{sOFF}, 0"] + s.dma4(vD, WQ, sOFF, sRING, 0, ('q', 'd', 0)) \
            + [f"s_mov_b32 s{sOFF}, {4 * 8192}"] + s.dma4(vD, WQ, sOFF, sRING, 4096, ('q', 'd', 0), n=3) + touch_wq
        s.bg(s.capture(ln1), back, o.get('lnlo', 0.05), o.get('lnhi', 0.95))
        s.stamp('ln1')
        s.wait(vm='w1', lg=0)
        s("s_barrier")

        for tt in range(4): s.lds(f"ds_read_b64 {v(vR + 2 * tt, 2)}, v{vEA + 2} offset:{tt * 128}", 'r2')
        for t in range(2): s.lds(f"ds_read_b64 {v(vR + 8 + 2 * t, 2)}, v{vEA + 3} offset:{t * 128}", 'r2')
        for m in range(3): s.item(s.stype_reads(m, 'b1'))
        for n in range(2):
            for t in range(2): s.lds(f"ds_read_b64 {v(vX1 + 4 * t + 2 * n, 2)}, v{vEA + 4 + n} offset:{t * 16384}", 'xs')
        late = {7: ["s_barrier", f"s_add_u32 m0, s{sRING}, 4096", f"s_mov_b32 s{sB0}, {4 * 8192}",
                    ('vm', f"buffer_load_dwordx4 v{vD + 3}, {srd(WQ)}, s{sB0} offen offset:3072 lds", ('q', 'd', 0)), f"s_mov_b32 s{sOFF}, {32 * 8192}"]}
        s.stype('b1', late)
        s.wait(lg=0)
        s("s_barrier")
        s.stamp('b1')

        def b1_epi():
            for t in range(2): s(*s.gelu_consts(vR + 12 + 4 * t, vR + 9 + 2 * t))
            s.gelu_pairs([(vACC + 8 * n + 4 * t + 2 * j, vR + 12 + 4 * t) for n in range(2) for t in range(2) for j in range(2)], vQ)
            for t in range(2):
                for n in range(2):
                    for j in range(2):
                        r = vACC + 8 * n + 4 * t + 2 * j
                        s(f"v_cvt_pk_bf16_f32 v{vQ + 16 + 4 * t + 2 * n + j}, v{r}, v{r + 1}")
                s.vmem(f"buffer_store_dwordx4 {v(vQ + 16 + 4 * t, 4)}, v{vEA}, {srd(WS)}, s{sHST} offen offset:{t * 256} sc1", 'hst')
            c = 1.4426950408889634 / math.sqrt(128)
            for tt in range(4): s(f"v_mul_f32 v{vACC + 2 * tt}, {f2u(c)}, v{vR + 2 * tt}")
            for i in range(8): s(f"v_lshlrev_b32 v{vQ + 2 * i}, 16, v{vX1 + i}", f"v_and_b32 v{vQ + 2 * i + 1}, 0xffff0000, v{vX1 + i}")
            for i in range(8): s(f"v_pk_mul_f32 {v(vQ + 2 * i, 2)}, {v(vQ + 2 * i, 2)}, {v(vR + 8 + 2 * (i >> 2), 2)} op_sel_hi:[1,0]")
            for i in range(8): s(f"v_cvt_pk_bf16_f32 v{vX1 + i}, v{vQ + 2 * i}, v{vQ + 2 * i + 1}")
        qA = s.p_reads_A(0, 'q')
        s.bg(s.capture(b1_epi), s.pstep_dma(vD, WQ, 32 * 8192, 4 * 8192, 1, ('q', 'd', 1)) + s.pstep_dma(vD, WQ, 32 * 8192, 4 * 8192, 2, ('q', 'd', 2))[:7]
             + s.p_reads_B(0, 'q') + [[('wait', ('q', 'd', 0), None)] + qA[0]] + qA[1:], 0.0, 0.98)
        for it in s.pstep_dma(vD, WQ, 32 * 8192, 4 * 8192, 2, ('q', 'd', 2))[7:]: s.item(it)
        Lp = s.label('pad')
        s(f"s_cmp_lg_u32 s{sW}, 0", f"s_cbranch_scc1 {Lp}")
        s(f"v_lshl_add_u32 v{vX}, v{vL}, 7, s{sFLG}", "s_mov_b64 exec, 3")
        for i in range(4): s(f"v_mov_b32 v{vQ + 24 + i}, 0")
        s.vmem(f"buffer_store_dword v{vQ + 24}, v{vX}, {srd(WS)}, 0 offen sc1", None, cond=True)
        s("s_mov_b64 exec, -1")
        s(f"s_add_u32 s{sT1}, s{sTB}, 1", f"s_and_b32 s{sT1}, s{sT1}, 30", f"s_cmp_lg_u32 s{sT1}, 0", f"s_cbranch_scc1 {Lp}")
        s(f"s_cmp_eq_u32 s{sTB}, 0", f"s_cselect_b32 s{sT1}, {WS_H}, {WS_H + (8 + 2048) * 16}", f"s_mul_i32 s{sT0}, s{sG}, {8 * HPL}", f"s_add_u32 s{sT0}, s{sT0}, s{sT1}")
        s(f"v_lshrrev_b32 v{vX}, 3, v{vL}", f"v_mul_u32_u24 v{vX}, {HPL}, v{vX}", f"v_and_b32 v{vY}, 0x70, v{vL16}", f"v_add_u32 v{vX}, v{vX}, v{vY}")
        for i in range(4): s(f"v_mov_b32 v{vQ + 24 + i}, 0")
        s.vmem(f"buffer_store_dwordx4 {v(vQ + 24, 4)}, v{vX}, {srd(WS)}, s{sT0} offen sc1", None, cond=True)
        s(f"{Lp}:")
        s.stamp('b1epi')

        def h_dma(lo, hi):
            shift = [1, -1, 2, -2]
            return [[f"s_add_u32 m0, s{sW14}, {m * 1024}", f"s_add_u32 s{sB1}, s{sHLD}, {m * 4 * HPL + (8 - shift[m >> 2]) * 16}",
                     ('vm', f"buffer_load_dwordx4 v{vH}, {srd(WS)}, s{sB1} offen sc1 lds", 'h')] for m in range(lo, hi)]

        def kv_offsets():
            s(f"v_lshrrev_b32 v{vX}, 4, v{vL}", f"s_lshl_b32 s{sT0}, s{sW}, 3", f"v_add_u32 v{vX}, s{sT0}, v{vX}", f"v_and_b32 v{vY}, 0xf0, v{vL16}",
              f"v_lshl_add_u32 v{vY}, v{vX}, 8, v{vY}", f"v_and_b32 v{vU}, 15, v{vX}", f"v_lshlrev_b32 v{vU}, 4, v{vU}", f"v_xor_b32 v{vE}, v{vY}, v{vU}",
              f"v_xor_b32 v{vE + 1}, 0x40, v{vE}", f"v_and_b32 v{vU}, 7, v{vX}", f"v_lshlrev_b32 v{vU}, 5, v{vU}", f"v_xor_b32 v{vE + 2}, v{vY}, v{vU}",
              f"v_xor_b32 v{vE + 3}, 0x80, v{vE + 2}")

        def attn_addr():
            s.t256(vT0, base_imm=KVPOS[0] + 2048, kv=True)
            s(f"v_and_b32 v{vX}, 8, v{vL}", f"v_lshlrev_b32 v{vX}, 9, v{vX}", f"v_and_b32 v{vY}, 7, v{vL}", f"v_lshl_add_u32 v{vX}, v{vY}, 8, v{vX}",
              f"v_lshrrev_b32 v{vY}, 4, v{vL}", f"v_and_b32 v{vU}, 15, v{vL}", f"v_xor_b32 v{vY}, v{vY}, v{vU}", f"v_lshl_add_u32 v{vX}, v{vY}, 4, v{vX}",
              f"v_add_u32 v{vT1}, {KVPOS[0]}, v{vX}")
            for ds in range(1, 4): s(f"v_xor_b32 v{vT1 + ds}, {ds << 6}, v{vT1}")
        def kv_touch():
            L = s.label('tk'); nk = 32 * pa
            assert nk == 64
            return [f"v_lshlrev_b32 v{vX}, 7, v{vL}", f"s_mul_i32 s{sT0}, s{sJJ}, {nk * 128}", f"s_add_u32 s{sT1}, s{sT0}, {2048 + 8192}", f"s_cmp_lg_u32 s{sW}, 0", f"s_cbranch_scc1 {L}a",
                    ('vm', f"buffer_load_dword a{aDUMMY}, v{vX}, {srd(KC)}, s{sT0} offen", None, True), f"{L}a:", f"s_cmp_lg_u32 s{sW}, 1", f"s_cbranch_scc1 {L}b",
                    ('vm', f"buffer_load_dword a{aDUMMY}, v{vX}, {srd(VC)}, s{sT1} offen", None, True), f"{L}b:"]
        hpre = o.get('hpre', 1)
        nh13, nh14, nh15 = o.get('nh', (4, 4, 5) if hpre else (0, 0, 6))
        nh15 += nh13 + nh14

        def q_extra(st):
            ex = {'at': {}}
            if st == 0: ex['alu'] = s.capture(lambda: s.d128(vE, 1024, False)); ex['alug'] = (27, 31)
            if st == 2: ex['at'][9] = ["s_barrier", lambda: s.signal(0)]
            if pf and st == o.get('tw2', 9):
                L = s.label('tw'); nw = 16 * pa
                ex['at'][28] = [f"v_lshlrev_b32 v{vX}, 10, v{vL}", f"s_mul_i32 s{sB1}, s{sJJ}, {nw * 1024}", f"v_cmp_gt_u32 vcc, {nw}, v{vL}", f"s_cmp_lg_u32 s{sW}, 2",
                                f"v_cndmask_b32 v{vX}, -1, v{vX}, vcc", f"s_cbranch_scc1 {L}",
                                ('vm', f"buffer_load_dword a{aDUMMY}, v{vX}, {srd(W2)}, s{sB1} offen", None, True), f"{L}:"]
            if pf and st == o.get('tkvq', -1): ex['at'][30] = kv_touch()
            if o.get('cpf', 1) and st == o.get('ct1', -1): ex['at'][29] = s.code_touch('L_attn', 'L_attn_end', 7)
            if st == (10 if hpre else 11): ex['at'][12] = s.poll_items(0, 'p1')
            if st == 11: ex['alu'] = s.capture(lambda: s.d128(vW4, 1024, False)); ex['alug'] = (14, 31)
            if st == 13:
                ex['dma'] = s.w12_dma(W2, 0, 'w2')
                ex['alu'] = s.capture(lambda: s.d128(vD, 3584, False, oob_w3=True)); ex['alug'] = (11, 31)
                if hpre:
                    ex['at'][10] = [lambda: s.poll_check(0, 'p1'), "s_barrier"]
                    ex['vm2'] = h_dma(0, nh13)
            if st == 14:
                ex['dma'] = s.w12_dma(W2, 1, 'w2')
                ex['alu'] = s.capture(kv_offsets); ex['alug'] = (11, 31)
                if hpre: ex['vm2'] = h_dma(nh13, nh13 + nh14)
                else: ex['at'][9] = [lambda: s.poll_check(0, 'p1')]
            if st == 15:
                ex['dma'] = ["s_barrier"] + h_dma(nh13 + nh14, nh15)
                ex['alu'] = s.capture(attn_addr)
            return ex
        s.ptype('q', vD, WQ, 32 * 8192, 4 * 8192, q_extra, bpre=hpre)
        s.stamp('qproj')

        def q_epi():
            for ds in range(4):
                for tt in range(4):
                    q = vQ + 16 * ds + 4 * tt
                    rr = [128 + 16 * (2 * ds + u) + 4 * tt + 2 * j for u in range(2) for j in range(2)]
                    for r in rr: s(f"v_pk_mul_f32 {v(r, 2)}, {v(r, 2)}, {v(vACC + 2 * tt, 2)} op_sel_hi:[1,0]")
                    for i, r in enumerate(rr): s(f"v_cvt_pk_bf16_f32 v{q + i}, v{r}, v{r + 1}")
                for op in ("v_permlane32_swap_b32", "v_permlane16_swap_b32") if not noswap else ():
                    for tt in range(4):
                        for j in range(2): s(f"{op} v{vQ + 16 * ds + 4 * tt + j}, v{vQ + 16 * ds + 4 * tt + 2 + j}")
        tkv = [kv_touch()] if (pf and o.get('tkv', 1)) else []
        s.bg(s.capture(q_epi), h_dma(nh15, 16) + s.kv_dma(-1) + tkv, 0.0, 0.95)
        s.dump('q', [f"v{vQ + i}" for i in range(64)], 0)
        s.stamp('qepi')

        s.wait(vm='h')
        s("s_barrier")
        for m in range(3): s.item(s.stype_reads(m, 'b2'))
        fx = {}
        spread(fx, s.kv_dma(0), 1, 20)
        s.stype('b2', fx)
        s.wait(vm=('kv', -1), lg=0)
        s("s_barrier")
        s.stamp('b2')

        s(f"s_mov_b32 s{sOFF}, 0")
        for it in s.k_reads(0): s.item(it)
        for n in range(2):
            for t in range(2): s(mfma(v(vACC + 8 * n + 4 * t, 4), sel(n), v(vX1 + 4 * t, 4), v(vACC + 8 * n + 4 * t, 4)))
        x1e = []
        for t in range(2):
            for n in range(2):
                for j in range(2):
                    r = vACC + 8 * n + 4 * t + 2 * j
                    x1e.append(f"v_cvt_pk_bf16_f32 v{vX1 + 4 * t + 2 * n + j}, v{r}, v{r + 1}")
        x1e += [('vm', f"buffer_store_dwordx4 {v(vX1, 4)}, v{vL16}, {srd(WS)}, s{sX1ST} offen", 'x1st'), f"s_add_u32 s{sB0}, s{sX1ST}, 16384",
                ('vm', f"buffer_store_dwordx4 {v(vX1 + 4, 4)}, v{vL16}, {srd(WS)}, s{sB0} offen", 'x1st')]
        x1e = [(it[0], it[1] + " sc1", it[2]) if isinstance(it, tuple) else it for it in x1e]

        def rowmax(qt):
            b = vS_ + 8 * qt; r = vACC + 4 * qt
            it = [f"v_max3_f32 v{r}, v{b}, v{b + 1}, v{b + 2}", f"v_max3_f32 v{r + 1}, v{b + 3}, v{b + 4}, v{b + 5}", f"v_max3_f32 v{r}, v{r}, v{b + 6}, v{b + 7}",
                  f"v_max_f32 v{r}, v{r}, v{r + 1}"] + s.xred(r, r + 1, "v_max_f32")
            it += [f"v_sub_f32 v{r}, 0, v{r}"] + [f"v_mov_b32 v{r + i}, v{r}" for i in range(1, 4)]
            return it + [f"v_add_f32 v{b + i}, v{b + i}, v{r}" for i in range(8)]
        fill = {-1: [('wait', None, ('K', 0, 'a'))], 3: [('wait', None, ('K', 0, 'b'))]}
        spread(fill, x1e, 3, 9)
        spread(fill, rowmax(0) + s.kv_dma(1), 10, 17)
        spread(fill, rowmax(1) + s.kv_dma(2), 18, 25)
        spread(fill, rowmax(2), 26, 31)
        s.weave(s.qk_spine(lambda qt: "0"), fill)
        s.wait(vm=('kv', 0)); s("s_barrier")
        for it in s.k_reads(1): s.item(it)
        pro = []
        for qt in range(3):
            E, C = s.job(0, qt); pro += E + C
            if qt == 0: pro += rowmax(3)
        s.bg(pro, s.kv_dma(3))
        s.stamp('attn_pro')
        s("L_attn:")

        def x1_loads(lo, hi):
            it = []
            for m in range(lo, hi):
                if m % 4 == 0: it.append(f"s_add_u32 s{sB0}, s{sX1LD}, {m * 1024}")
                it.append(('vm', f"buffer_load_dwordx4 {v(vRAW + 4 * m, 4)}, v{vL16}, {srd(WS)}, s{sB0} offen offset:{(m & 3) * 1024} sc1", ('x1', m // 4)))
            return it

        def w3_dma(ms): return s.pstep_dma(vD, W3, 64 * 3584, 32 * 3584, (ms + 1) % 3, ('c', 'd', ms))

        def touch2(which):
            p_, jj = (pa, sJJ) if which == 'wo' else (cmap, sJC)
            if which == 'w4':
                n = 14 * dmap
                it = [f"v_lshlrev_b32 v{vY}, 10, v{vL}", f"s_lshr_b32 s{sB1}, s2, {3 + int(math.log2(dmap))}", f"s_lshl_b32 s{sB1}, s{sB1}, 2", f"s_add_u32 s{sB1}, s{sB1}, s{sW}",
                      f"s_mul_i32 s{sB1}, s{sB1}, {n * 1024}"]
                for k in range(-(-n // 64)):
                    if n - 64 * k < 64: it += [f"v_cmp_gt_u32 vcc, {n - 64 * k}, v{vL}", "s_nop 1", f"v_cndmask_b32 v{vY}, -1, v{vY}, vcc"]
                    it += [('vm', f"buffer_load_dword a{aDUMMY}, v{vY}, {srd(W4)}, s{sB1} offen", None), f"s_add_u32 s{sB1}, s{sB1}, 65536"]
                return it
            rows = 16 * p_
            if which == 'w3':
                it = [f"v_mul_u32_u24 v{vY}, 3584, v{vL}", f"s_mul_i32 s{sB1}, s{jj}, {rows * 3584}"]
                if rows < 64: it += [f"v_cmp_gt_u32 vcc, {rows}, v{vL}", "s_nop 1", f"v_cndmask_b32 v{vY}, -1, v{vY}, vcc"]
                for k in range(max(1, rows // 64)):
                    it += [('vm', f"buffer_load_dword a{aDUMMY}, v{vY}, {srd(W3)}, s{sB1} offen", None), f"s_add_u32 s{sB1}, s{sB1}, {64 * 3584}"]
                return it
            it = [f"v_lshrrev_b32 v{vX}, 1, v{vL}", f"v_lshlrev_b32 v{vX}, 10, v{vX}", f"v_and_b32 v{vY}, 1, v{vL}", f"v_lshl_add_u32 v{vY}, v{vY}, 7, v{vX}",
                  f"s_mul_i32 s{sB1}, s{jj}, {rows * 1024}"]
            if rows < 32: it += [f"v_cmp_gt_u32 vcc, {2 * rows}, v{vL}", "s_nop 1", f"v_cndmask_b32 v{vY}, -1, v{vY}, vcc"]
            for k in range(max(1, rows // 32)):
                it += [('vm', f"buffer_load_dword a{aDUMMY}, v{vY}, {srd(WO)}, s{sB1} offen", None), f"s_add_u32 s{sB1}, s{sB1}, {32 * 1024}"]
            return it

        P1 = o.get('p1', "E VV E C E VV E C E VV E C E VV E C E VV E C E VV E C E VV E C E VV E C").split()
        P2 = o.get('p2', "E - E C E B E C D E KK E C E D E C D E KK E C E D E C KK E D E C E KK E C D").split()
        assert len(P1) == 32 and len(P2) == 36

        def pattern(P, streams):
            fill = {}; pos = {k: [] for k in streams}; idx = {k: 0 for k in streams}
            for g, tok in enumerate(P):
                for ch in tok:
                    if ch in streams and idx[ch] < len(streams[ch]):
                        fill.setdefault(g, []).append(streams[ch][idx[ch]]); pos[ch].append(g); idx[ch] += 1
            assert all(idx[k] == len(streams[k]) for k in streams)
            return fill, pos

        for t in range(16):
            V = s.v_reads(t)
            EA, CA = s.job(t, 3)
            if t < 15:
                EB, CB = s.job(t + 1, 0)
                spine = s.qk_spine(lambda qt: v(vACC + 4 * qt, 4))
                fill, pos = pattern(P1, {'E': EA + EB, 'C': CA + CB, 'V': V})
                for i in range(8): assert pos['C'][i] >= pos['E'][2 * i + 1]
                assert pos['C'][3] < 24 and pos['E'][8] >= 9
                fill.setdefault(-1, []).append(('wait', None, ('K', t + 1, 'a')))
                fill.setdefault(3, []).insert(0, ('wait', None, ('K', t + 1, 'b')))
            else:
                spine, fill = s.ln_stats(lambda k: ('x1', k))
                merge(fill, pattern(P1, {'E': EA, 'C': CA, 'V': V})[0])
            s.weave(spine, fill)
            spine = s.pv_spine(t, l_first=(t == 15))
            if t < 15:
                EE, CC = [sum(x, []) for x in zip(s.job(t + 1, 1), s.job(t + 1, 2))]
                bar = [[('wait', ('kv', t + 1), None), "s_barrier"] + ([lambda: s.signal(1)] if t == 0 else [])]
                fill, pos = pattern(P2, {'E': EE, 'C': CC, 'K': s.k_reads(t + 2) if t < 14 else [], 'D': s.kv_dma(t + 4) if t < 12 else [], 'B': bar})
                for i in range(8): assert pos['C'][i] >= pos['E'][2 * i + 1]
                gb = [g for g, tok in enumerate(P2) if 'B' in tok][0]
                assert all(g > gb for g in pos['K'] + pos['D']) and gb >= 3
                fill.setdefault(-1, []).append(('wait', None, ('V', t, 'a')))
                fill.setdefault(3, []).insert(0, ('wait', None, ('V', t, 'b')))
                ex = []
                tx = o.get('tx', 7)
                tsel = o.get('tsel', {1: 'w3', 3: 'wo', 5: 'w4'})
                if pf and t in tsel:
                    tl = touch2(tsel[t])
                    nv = [i for i, it in enumerate(tl) if isinstance(it, tuple)][0]
                    spread(fill, tl[:nv], gb + 1, 28); spread(fill, tl[nv:], 30, 35)
                if o.get('cpf', 1) and t == o.get('ct2', 12): spread(fill, s.code_touch('L_attn_end', 'L_slow', 8), 33, 33)
                if t == tx - 2: ex = s.poll_items(1, 'p2')
                if t == tx: ex = [lambda: s.poll_check(1, 'p2')] + x1_loads(0, 4)
                if tx < t < tx + 4: ex = x1_loads(4 * (t - tx), 4 * (t - tx) + 4)
                if t == tx + 4:
                    ex = [('vm', f"buffer_load_dwordx4 {v(vX1, 4)}, v{vL16}, {srd(WS)}, s{sX1S} offen sc1", 'x1s'), f"s_add_u32 s{sB0}, s{sX1S}, 16384",
                          ('vm', f"buffer_load_dwordx4 {v(vX1 + 4, 4)}, v{vL16}, {srd(WS)}, s{sB0} offen sc1", 'x1s')]
                if t == 14: ex = w3_dma(0)
                spread(fill, ex, 30 if (t < 12 and t >= tx) else gb + 1, 35)
            else:
                fill = {3: [('wait', None, ('V', t, 'a'))], 7: [('wait', None, ('V', t, 'b'))]}
                chk = [f"v_accvgpr_read_b32 v{vS_ + qt}, a{128 + 4 * qt}" for qt in range(4)]
                chk += [f"v_max3_f32 v{vX}, v{vS_}, v{vS_ + 1}, v{vS_ + 2}", f"s_mov_b32 s{sT0}, {f2u(2.0 ** s.thr)}", f"v_max_f32 v{vX}, v{vX}, v{vS_ + 3}",
                        f"v_cmp_u_f32 s[{sT2}:{sT3}], v{vS_}, v{vS_ + 1}", f"v_cmp_u_f32 vcc, v{vS_ + 2}, v{vS_ + 3}", f"s_lshl_b32 s{sT1}, s{sW}, 2",
                        f"s_or_b64 s[{sT2}:{sT3}], s[{sT2}:{sT3}], vcc", f"v_cmp_lt_f32 vcc, s{sT0}, v{vX}", f"s_add_u32 s{sT1}, s{sT1}, {SCR + 768}",
                        f"s_or_b64 vcc, vcc, s[{sT2}:{sT3}]", "s_cmp_lg_u64 vcc, 0", f"s_cselect_b32 s{sT0}, 1, 0", f"v_mov_b32 v{vU}, s{sT1}", f"v_mov_b32 v{vX}, s{sT0}",
                        ('lds', f"ds_write_b32 v{vU}, v{vX}", 'fw'), f"v_and_b32 v{vU}, 3, v{vL}", f"v_lshlrev_b32 v{vU}, 2, v{vU}", f"v_add_u32 v{vU}, {SCR + 768}, v{vU}"]
                chk += [f"v_rcp_f32 v{vS_ + 2 * qt + 8}, v{vS_ + qt}" for qt in range(4)]
                spread(fill, chk, 8, 19)
                fill.setdefault(21, []).extend([('wait', None, 0), "s_barrier", ('lds', f"ds_read_b32 v{vX}, v{vU}", 'fr')])
                spread(fill, w3_dma(1), 22, 35)
                fill.setdefault(28, []).extend([('wait', None, 0), f"v_cmp_ne_u32 vcc, 0, v{vX}", f"s_cmp_eq_u32 s{sPASS}, 0", "s_cselect_b64 s[58:59], -1, 0"])
                fill.setdefault(30, []).append("s_and_b64 s[58:59], vcc, s[58:59]")
            s.weave(spine, fill)
            s.stamp(f'.a{t}')
        s("L_attn_end:")
        s("s_cmp_lg_u64 s[58:59], 0", "s_cbranch_scc1 L_slow")
        s.stamp('attn')
        if o.get('diag_cyc'):
            s(f"s_mov_b32 s{sSPIN}, {o['diag_cyc'] // 64}", "L_diag:", "s_nop 15", "s_nop 15", "s_nop 15", "s_nop 11", f"s_sub_u32 s{sSPIN}, s{sSPIN}, 1", f"s_cmp_lg_u32 s{sSPIN}, 0", "s_cbranch_scc1 L_diag")
        if o.get('diag_rt'):
            s("s_memrealtime s[90:91]", "s_waitcnt lgkmcnt(0)", "L_diag2:", "s_memrealtime s[92:93]", "s_waitcnt lgkmcnt(0)", "s_sub_u32 s92, s92, s90",
              f"s_cmp_lt_u32 s92, {o['diag_rt']}", "s_cbranch_scc1 L_diag2")

        def o_epi():
            for ds in range(4):
                for qt in range(4):
                    T = vP + 8 * (qt & 1)
                    for u in range(2):
                        for i in range(4): s(f"v_accvgpr_read_b32 v{T + 4 * u + i}, a{16 * (2 * ds + u) + 4 * qt + i}")
                    for i in range(4): s(f"v_pk_mul_f32 {v(T + 2 * i, 2)}, {v(T + 2 * i, 2)}, {v(vS_ + 2 * qt + 8, 2)} op_sel_hi:[1,0]")
                    for i in range(4): s(f"v_cvt_pk_bf16_f32 v{vQ + 16 * ds + 4 * qt + i}, v{T + 2 * i}, v{T + 2 * i + 1}")
        w32 = w3_dma(2)
        s.bg(s.capture(o_epi), w32[:-2], 0.0, 0.8)
        s.dump('o', [f"v{vQ + i}" for i in range(64)], 1)
        s.stamp('oepi')

        def c_reads(ms):
            ab = 32 * (ms & 1); bb = 64 + 32 * (ms & 1)
            slot = (ms + 1) % 3
            base = vT1 if slot == 2 else vT0; off = 32768 if slot == 1 else 0
            A, B = [], []
            for ks in range(2):
                tg = ('c', ms, 'ab'[ks])
                b_ = [('lds', f"ds_read_b128 {a(bb + 16 * ks + 4 * tt, 4)}, v{vB} offset:{(16 * tt + 2 * ms + ks) * 1024}", tg) for tt in range(4)]
                B.append([b_[:2], b_[2:]])
                A.append([[('lds', f"ds_read_b64_tr_b16 {a(ab + 16 * ks + 4 * nt + 2 * jh, 2)}, v{base + nt} offset:{off + ks * 4096 + jh * 2048}", tg) for jh in range(2)]
                          for nt in range(4)])
            return A, B
        s(f"v_add_u32 v{vB2}, s{sW14}, v{vB}")
        s.t128(vT0, 4, base_s=sRING)
        for i in range(4): s(f"v_add_u32 v{vT1 + i}, 0x10000, v{vT0 + i}")
        s.ln_centre(False, vB2)
        A0, B0 = c_reads(0)
        s.wait(vm=('c', 'd', 0))
        for it in A0[0] + A0[1]: s.item(it)
        s(f"v_and_b32 v{vX}, 15, v{vL}", f"v_lshlrev_b32 v{vX}, 2, v{vX}", f"v_add_u32 v{vX}, {SCR}, v{vX}")
        s.wait(lg=0)
        s("s_barrier")
        s.stamp('ln3')
        for it in B0[0] + B0[1]: s.item(it)
        for tt in range(4): s.lds(f"ds_read_b32 v{vACC + 4 * tt + 3}, v{vX} offset:{tt * 64}", 'r3')
        wo_dma = lambda k: ([f"s_mov_b32 s{sOFF}, 0"] if k == 0 else []) + s.pstep_dma(vE, WO, 32 * 1024, 16 * 1024, k, ('o', 'd', k))
        for ms in range(8):
            ab = 32 * (ms & 1); bb = 64 + 32 * (ms & 1)
            spine = [mfma(v(128 + 16 * nt + 4 * tt, 4), a(ab + 16 * ks + 4 * nt, 4), a(bb + 16 * ks + 4 * tt, 4), "0" if (ms == 0 and ks == 0) else v(128 + 16 * nt + 4 * tt, 4))
                     for ks in range(2) for nt, tt in (blk(4) if o.get('cblk', 1) else [(n_, t_) for n_ in range(4) for t_ in range(4)])]
            if ms == 0:
                fill = {-1: [('wait', None, ('c', 0, 'a'))], 1: [('wait', None, 0), "s_barrier"] + w32[-2:]}
            else:
                fill = {-1: [('wait', None, ('c', ms, 'a'))], 1: [('wait', None, 0)]}
            spread(fill, w3_dma(ms + 3) if ms + 3 < 8 else wo_dma(ms - 5), 2, 8)
            if ms + 1 < 8:
                fill.setdefault(8, []).append(('wait', ('c', 'd', ms + 1), None))
                A, B = c_reads(ms + 1)
                spread(fill, [B[0][0], A[0][0], B[0][1]] + A[0][1:] + [B[1][0], A[1][0], B[1][1]] + A[1][1:], 9, 27)
            if ms == 1: spread(fill, s.capture(lambda: s.d256(vE, 1024, False)), 10, 31)
            if ms == 2: spread(fill, sum([s.gelu_consts(vACC + 4 * tt, vACC + 4 * tt + 3) for tt in range(4)], []), 10, 31)
            if ms == 7:
                def oaddr():
                    s.t256(vT0, base_s=sRING)
                    for nt in range(8): s(f"v_add_u32 v{vT1 + nt}, 0x10000, v{vT0 + nt}")
                    s(f"s_lshl_b32 s{sT0}, s{sW}, 12", f"v_add_u32 v{vB2}, s{sT0}, v{vB}")
                spread(fill, s.capture(oaddr), 9, 31)
            s.weave(spine, fill)
            s.stamp(f'.c{ms}')
        s("s_barrier")
        s.stamp('b3')
        ow = [('lds', f"ds_write_b128 v{vB2}, {v(vQ + 16 * ds + 4 * qt, 4)} offset:{qt * 16384 + ds * 1024}", 'ow') for ds in range(4) for qt in range(4)]

        def c_epi(b):
            for tt in range(4):
                s.gelu_pairs([(128 + 16 * (2 * b + n) + 4 * tt + 2 * j, vACC + 4 * tt) for n in range(2) for j in range(2)], 192)
                for n in range(2):
                    for j in range(2):
                        r = 128 + 16 * (2 * b + n) + 4 * tt + 2 * j
                        s(f"v_cvt_pk_bf16_f32 v{208 + 16 * b + 4 * tt + 2 * n + j}, v{r}, v{r + 1}")
                s.vmem(f"buffer_store_dwordx4 {v(208 + 16 * b + 4 * tt, 4)}, v{vL16}, {srd(WS)}, s{sH2ST} offen offset:{tt * 1024} sc1", 'h2st', cond=(b == 1))
        oA = s.p_reads_A(0, 'o')
        s.bg(s.capture(lambda: c_epi(0)), ow + [[('wait', ('o', 'd', 0), None)] + oA[0]] + oA[1:], 0.0, 0.9)
        s.wait(lg=0)
        s("s_barrier")
        s.item(s.p_reads_B(0, 'o'))
        Lw3 = s.label('w3skip')
        s(f"s_cmp_eq_u32 s{sW}, 3", f"s_cbranch_scc1 {Lw3}", f"s_add_u32 s{sH2ST}, s{sH2ST}, 4096")
        c_epi(1)
        s(f"{Lw3}:")
        s.stamp('b3epi')

        hbank = lambda c: 96 + 16 * (c % 7)

        def b4_dma(c):
            return [f"s_lshl_b32 s{sB0}, s{sW}, 15", f"s_add_u32 s{sB0}, s{sB0}, {c * 4 * 32768}", f"s_lshl_b32 s{sB1}, s{sW}, 13"] + s.dma4(vW4, W4, sB0, sB1, UNIT[c % 10], ('yw', c)) \
                + [f"s_add_u32 s{sB0}, s{sH2LD}, {c * 4 * 4096}"] \
                + [('vm', f"buffer_load_dwordx4 {a(hbank(c) + 4 * tt, 4)}, v{vL16}, {srd(WS)}, s{sB0} offen offset:{tt * 1024} sc1", ('y', c)) for tt in range(4)]

        def yaddr():
            s(f"s_lshl_b32 s{sT1}, s{sW}, 13")
            s.t128(vT0, 4, base_s=sT1)
            for wdw in (1, 2):
                for i in range(4): s(f"v_add_u32 v{vT0 + 4 * wdw + i}, {0x10000 * wdw}, v{vT0 + i}")
            s(f"v_and_b32 v{vX}, 15, v{vL}", f"v_lshlrev_b32 v{vX}, 10, v{vX}", f"v_lshrrev_b32 v{vY}, 4, v{vL}", f"v_lshl_add_u32 v{vD}, v{vY}, 4, v{vX}")
            s.lin(sT1, 98304, (sW, 8192)); s(f"v_add_u32 v{vD + 1}, s{sT1}, v{vL16}")
            s.lin(sT1, 98304, (sCH, 32768), (sTH, 4096)); s(f"v_add_u32 v{vD + 2}, s{sT1}, v{vL16}")

        def h2_touch():
            per = 1792 // dmap // 4
            it = [f"v_lshlrev_b32 v{vX}, 7, v{vL}", f"s_lshr_b32 s{sB1}, s2, 3", f"s_and_b32 s{sB1}, s{sB1}, {dmap - 1}", f"s_lshl_b32 s{sB1}, s{sB1}, 2",
                  f"s_add_u32 s{sB1}, s{sB1}, s{sW}", f"s_mul_i32 s{sB1}, s{sB1}, {per * 128}", f"s_mul_i32 s{sT0}, s{sTD}, 229376",
                  f"s_add_u32 s{sB1}, s{sB1}, s{sT0}", f"s_add_u32 s{sB1}, s{sB1}, {WS_H2}"]
            for k in range(-(-per // 64)):
                if per - 64 * k < 64: it += [f"v_cmp_gt_u32 vcc, {per - 64 * k}, v{vL}", "s_nop 1", f"v_cndmask_b32 v{vX}, -1, v{vX}, vcc"]
                it += [('vm', f"buffer_load_dword a{aDUMMY}, v{vX}, {srd(WS)}, s{sB1} offen sc1", None), f"s_add_u32 s{sB1}, s{sB1}, 8192"]
            return [it]

        def o_extra(st):
            ex = {'at': {}}
            if st == 2: ex['at'][9] = ["s_barrier", lambda: s.signal(2)]
            if st == 11: ex['at'][12] = s.poll_items(2, 'p3')
            if o.get('cpf', 1) and st == o.get('ct3', -1): ex['at'][29] = s.code_touch('L_oproj_end', 'L_slow', 4)
            if st == 13:
                ex['early'] = {1: [lambda: s.poll_check(2, 'p3')]}
                ex['dma'] = (h2_touch() if o.get('h2t', 0) else []) + b4_dma(0)
            if st == 14: ex['dma'] = b4_dma(1)
            if st == 15:
                ex['dma'] = b4_dma(2) + ["s_barrier"]
                ex['alu'] = s.capture(yaddr); ex['alug'] = (2, 24)
            return ex
        s.ptype('o', vE, WO, 32 * 1024, 16 * 1024, o_extra)
        s("L_oproj_end:")
        s.stamp('oproj')

        def ka_reads(c):
            b = vT0 + 4 * (UNIT[c % 10] >> 16); o_ = UNIT[c % 10] & 0xffff
            return [[('lds', f"ds_read_b64_tr_b16 {a(16 * (c & 1) + 4 * nt + 2 * jh, 2)}, v{b + nt} offset:{o_ + jh * 2048}", ('ya', c)) for jh in range(2)] for nt in range(4)]

        def sp_store(k):
            b, tt = k // 4, k % 4
            return [f"s_xor_b32 s{sB0}, s{sSPX}, {b * 32768 + tt * 8192}", f"s_add_u32 s{sB0}, s{sB0}, s{sSPST}",
                    ('vm', f"buffer_store_dwordx4 {v(vQ + 16 * b + 4 * tt, 4)}, v{vL16}, {srd(WS)}, s{sB0} offen sc1", 'spst')]
        spreg = lambda t, src: (224 + 16 * t + 4 * (src >> 1)) if src % 2 == 0 else (vQ + 16 * t + 4 * (src >> 1))

        def sp_loads(par):
            it = []
            for t in range(2):
                for h in range(2):
                    it += [f"s_xor_b32 s{sT0}, s{sSPY}, {t * 8192}", f"s_add_u32 s{sT0}, s{sT0}, s{sSPLD}", f"s_add_u32 s{sT0}, s{sT0}, {h * 4096}"]
                    it += [('vm', f"buffer_load_dwordx4 {v(spreg(t, 4 * h + 2 * k + par), 4)}, v{vL16}, {srd(WS)}, s{sT0} offen offset:{(2 * k + par) * 1024} sc1", None, True) for k in range(2)]
            return it

        def take(par, test, blocking):
            L = s.label('sp')
            s(f"s_bitcmp1_b32 s{sPASS}, {par}", f"s_cbranch_scc1 {L}")
            if blocking: s.spin(3)
            else: s(*test); s(f"s_cbranch_vccnz {L}")
            s(f"s_bitset1_b32 s{sPASS}, {par}")
            s.item(sp_loads(par)); s(f"{L}:")
        D = o.get('kd', 6)
        x_final = [('vm', f"buffer_load_dwordx4 {v(192, 4)}, v{vD}, {srd(X)}, s{sXF} offen", 'xf'), f"s_add_u32 s{sT1}, s{sXF}, 16384",
                   ('vm', f"buffer_load_dwordx4 {v(196, 4)}, v{vD}, {srd(X)}, s{sT1} offen", 'xf')]
        cA, cB, cl = o.get('cA', 6), o.get('cB', 7), o.get('cl', 10)
        even_mask = f"s_mov_b64 s[{sT2}:{sT3}], 0x55"

        def b4_steps(var, cs, csig):
            s.wait(vm=('yw', 0))
            s.item(ka_reads(0))
            for k in range(16):
                for n in range(2):
                    for j in range(2):
                        r = 128 + 16 * (2 * (k // 4) + n) + 4 * (k % 4) + 2 * j
                        s(f"v_cvt_pk_bf16_f32 v{vQ + 16 * (k // 4) + 4 * (k % 4) + 2 * n + j}, v{r}, v{r + 1}")
                if cs < 0: s.item(sp_store(k))
            if var == 0: s.stamp('spst')
            for c in range(14):
                if c == csig:
                    s.wait(vm='spst'); s("s_barrier"); s.signal(3)
                spine = [mfma(v(128 + 16 * nt + 4 * tt, 4), a(16 * (c & 1) + 4 * nt, 4), a(hbank(c) + 4 * tt, 4), "0" if c == 0 else v(128 + 16 * nt + 4 * tt, 4))
                         for nt, tt in blk(4)]
                fill = {-1: [('wait', ('y', c), ('ya', c))]}
                ld_ = sum([b4_dma(k) for k in (range(3, D + 1) if c == 0 else [c + D]) if k < 14], [])
                spread(fill, ld_ + ([sp_store(k) for k in range(16)] if c == cs else []), 0, 8)
                if c + 1 < 14:
                    fill.setdefault(9, []).append(('wait', ('yw', c + 1), None))
                    spread(fill, ka_reads(c + 1), 9, 12)
                if c == cA - 1: spread(fill, s.poll_items(3, 'p4'), 10, 15)
                if c == cB - 1: spread(fill, [('vm', s.poll_load(3), 'p5')], 10, 15)
                if c == cA: fill.setdefault(15, []).extend([('wait', 'p4', None), lambda: take(0, s.poll_test(3) + [even_mask, f"s_and_b64 vcc, vcc, s[{sT2}:{sT3}]"], False)])
                if c == cB: fill.setdefault(15, []).extend([('wait', 'p5', None), lambda: take(0, s.poll_test(3), False), lambda: take(1, s.poll_test(3), False)])
                if c == cl: fill.setdefault(15, []).extend([lambda: take(0, None, True), lambda: take(1, None, True)])
                if c == 9: spread(fill, x_final, 0, 8)
                s.weave(spine, fill)
                if var == 0: s.stamp(f'.y{c}')
        s(f"s_mov_b32 s{sPASS}, 0")
        if o.get('stag', 0):
            snap = (list(s.vm), list(s.lg))
            s(f"s_bitcmp1_b32 s{sG}, 0", "s_cbranch_scc1 L_b4_late")
            b4_steps(0, -1, o.get('csig0', 2))
            s("s_branch L_b4_join", "L_b4_late:")
            s.vm, s.lg = snap
            b4_steps(1, o.get('cs1', 2), o.get('csig1', 4))
            s("L_b4_join:")
        else:
            b4_steps(0, -1, o.get('csig0', 2))
        T, U = 208, 144
        wr = [('lds', f"ds_write_b128 v{vD + 1}, {v(128 + 16 * nt + 4 * tt, 4)} offset:{(nt >> 1) * 32768 + (tt >> 1) * 4096 + ((nt & 1) * 2 + (tt & 1)) * 1024}", None)
              for nt in range(4) for tt in range(4)]
        fill = {-1: wr[:4] + [('wait', 0, None)]}
        spread(fill, wr[4:], 0, 22)
        s.weave([mfma(v(T + 8 * n + 4 * t, 4), sel(n), v(spreg(t, src), 4), "0" if src == 0 else v(T + 8 * n + 4 * t, 4))
                 for src in range(8) for t in range(2) for n in range(2)], fill)
        s.wait(lg=0)
        s("s_barrier")
        for sw in range(4):
            for i in range(4): s.lds(f"ds_read_b128 {v(128 + 16 * sw + 4 * i, 4)}, v{vD + 2} offset:{sw * 8192 + i * 1024}", ('red', sw))
        s.wait(lg=('red', 1))
        for i in range(8): s(f"v_pk_add_f32 {v(vACC + 2 * i, 2)}, {v(128 + 2 * i, 2)}, {v(144 + 2 * i, 2)}")
        s.wait(lg=('red', 3))
        for i in range(8): s(f"v_pk_add_f32 {v(160 + 2 * i, 2)}, {v(160 + 2 * i, 2)}, {v(176 + 2 * i, 2)}")
        for i in range(8): s(f"v_pk_add_f32 {v(vACC + 2 * i, 2)}, {v(vACC + 2 * i, 2)}, {v(160 + 2 * i, 2)}")
        for n in range(2):
            for t in range(2): s(mfma(v(vACC + 8 * n + 4 * t, 4), sel(n), v(vX1 + 4 * t, 4), v(vACC + 8 * n + 4 * t, 4)))
        s.stamp('b4')

        for i in range(8): s(f"v_pk_mul_f32 {v(U + 2 * i, 2)}, {v(vACC + 2 * i, 2)}, s[{sC}:{sC + 1}]")
        for i in range(8): s(f"v_pk_mul_f32 {v(T + 2 * i, 2)}, {v(T + 2 * i, 2)}, {v(vACC + 2 * i, 2)}")
        for i in range(16): s(f"v_exp_f32 v{U + i}, v{U + i}")
        for i in range(8): s(f"v_pk_add_f32 {v(U + 2 * i, 2)}, {v(U + 2 * i, 2)}, 1.0 op_sel_hi:[1,0]")
        for i in range(16): s(f"v_rcp_f32 v{U + i}, v{U + i}")
        for i in range(8): s(f"v_pk_mul_f32 {v(T + 2 * i, 2)}, {v(T + 2 * i, 2)}, {v(U + 2 * i, 2)}")
        for t in range(2):
            for op in ("v_permlane32_swap_b32", "v_permlane16_swap_b32"):
                for i in range(4): s(f"{op} v{T + 4 * t + i}, v{T + 8 + 4 * t + i}")
            for h in range(2):
                for j in range(2):
                    r = T + 8 * h + 4 * t + 2 * j; xr = 192 + 4 * t + 2 * h + j
                    s(f"v_dot2_f32_bf16 v{r}, v{xr}, s{sLO}, v{r}", f"v_dot2_f32_bf16 v{r + 1}, v{xr}, s{sHI}, v{r + 1}")
            for h in range(2):
                for j in range(2):
                    r = T + 8 * h + 4 * t + 2 * j
                    s(f"v_cvt_pk_bf16_f32 v{200 + 4 * t + 2 * h + j}, v{r}, v{r + 1}")
            s.vmem(f"buffer_store_dwordx4 {v(200 + 4 * t, 4)}, v{vD}, {srd(OUT)}, s{sT1 if t else sXF} offen", None)
        if s.stamps and o.get('dbgstamp'):
            s.stamp('end')
            L = s.label('ds')
            s(f"s_cmp_lg_u32 s{sW}, 0", f"s_cbranch_scc1 {L}", "s_mov_b64 exec, 1", f"v_mov_b32 v{vX}, 0")
            s(f"v_accvgpr_read_b32 v{vU}, a{STAMP0 + 1}", f"v_accvgpr_read_b32 v{vY}, a{STAMP0 + 1 + 2 * (s.nstamp - 1)}", f"v_not_b32 v{vH}, v{vU}")
            s(f"buffer_atomic_umax v{vY}, v{vX}, {srd(DBG)}, 0 offen offset:4 sc1", f"buffer_atomic_umax v{vH}, v{vX}, {srd(DBG)}, 0 offen offset:12 sc1", "s_waitcnt vmcnt(0)")
            for i in range(1, min(7, s.nstamp)):
                s(f"v_accvgpr_read_b32 v{vY}, a{STAMP0 + 1 + 2 * i}", f"v_sub_u32 v{vY}, v{vY}, v{vU}",
                  f"buffer_atomic_add v{vY}, v{vX}, {srd(DBG)}, 0 offen offset:{12 + 8 * i} sc1", "s_waitcnt vmcnt(0)")
            s(f"{L}:")
        elif s.stamps:
            s.stamp('end')
            s(f"s_lshl_b32 s{sT0}, s2, 2", f"s_add_u32 s{sT0}, s{sT0}, s{sW}", f"s_lshl_b32 s{sT0}, s{sT0}, 9", f"s_add_u32 s{sT0}, s{sT0}, {WS_STAMP}")
            s(f"v_mov_b32 v{vX}, 0", "s_mov_b64 exec, 1")
            for i in range(2 * s.nstamp):
                s(f"v_accvgpr_read_b32 v{vY}, a{STAMP0 + i}", f"buffer_store_dword v{vY}, v{vX}, {srd(WS)}, s{sT0} offen offset:{4 * i}", "s_waitcnt vmcnt(0)")
        s("s_endpgm")

        raw = lambda its: [s(it if isinstance(it, str) else it[1]) for it in its]
        s("L_slow:")
        s("s_waitcnt vmcnt(0) lgkmcnt(0)", "s_barrier")
        for i in range(16): s(f"v_mov_b32 v{vACC + i}, 0xff800000")
        s(f"s_mov_b32 s{sKV}, 0", f"s_mov_b32 s{sPASS}, 0")
        s("L_slow_loop:")
        raw(s.kv_dma(-1))
        s("s_waitcnt vmcnt(0)", "s_barrier")
        raw(s.k_reads(0))
        s("s_waitcnt lgkmcnt(0)", "s_barrier")
        raw(s.qk_spine(lambda qt: "0"))
        for qt in range(4):
            b = vS_ + 8 * qt; r = vACC + 4 * qt
            for i in range(4): s(f"v_max3_f32 v{r}, v{r}, v{b + 2 * i}, v{b + 2 * i + 1}")
        s(f"s_add_u32 s{sPASS}, s{sPASS}, 1", f"s_cmp_lt_u32 s{sPASS}, 16", "s_cbranch_scc1 L_slow_loop")
        for qt in range(4):
            r = vACC + 4 * qt
            s(*s.xred(r, r + 1, "v_max_f32")); s(f"v_sub_f32 v{r}, 0, v{r}")
            for i in range(1, 4): s(f"v_mov_b32 v{r + i}, v{r}")
        s(f"s_mov_b32 s{sKV}, 0", f"s_mov_b32 s{sOFF}, 0")
        for g in range(-1, 3): raw(s.kv_dma(g))
        s("s_waitcnt vmcnt(0)", "s_barrier")
        raw(s.k_reads(0))
        s("s_waitcnt lgkmcnt(0)", "s_barrier")
        raw(s.kv_dma(3))
        raw(s.qk_spine(lambda qt: v(vACC + 4 * qt, 4)))
        raw(s.k_reads(1))
        for qt in range(3):
            E, C = s.job(0, qt); raw(E + C)
        s("s_waitcnt vmcnt(0) lgkmcnt(0)", "s_branch L_attn")
        s("L_end:", "s_endpgm")
        stubs = None
        if o.get('hop'):
            first = [i for i, it in enumerate(s.items) if it.text == 'L_hop_back:'][0]
            last = [i for i, it in enumerate(s.items) if it.text == 'L_slow:'][0]
            pos, acc = [], 0
            for i in range(first + 2, last):
                it = s.items[i]
                if it.kind == 'label': continue
                if acc >= o['hop'] and not it.op.startswith('s_cbranch'): pos.append(i); acc = 0
                acc += isize(it.text)
            stubs = {}
            per = -(-len(pos) // 4)
            for k, i in enumerate(pos):
                w_, j = k // per, k % per
                nxt = f"L_hop_{w_}_{j + 1}" if (j + 1 < per and k + 1 < len(pos)) else "L_hop_back"
                stubs[i] = [f"L_hop_{w_}_{j}:", f"s_cbranch_execz {nxt}"]
            s.nhop = len(pos)
        return s.text(stubs)


HEADER = """; Fused kernel: x + attention(LN(x)) * silu(mixer-MLP(LN(x))), one persistent workgroup per CU.
; @launch grid=(256,1,1) block=(256,1,1) lds=163840
.amdgcn_target "amdgcn-amd-amdhsa--gfx950"
.text
.globl {n}
.p2align 8
.type {n},@function
{n}:
"""
FOOTER = """.section .rodata,"a"
.p2align 6
.amdhsa_kernel {n}
  .amdhsa_next_free_vgpr 512
  .amdhsa_next_free_sgpr 102
  .amdhsa_accum_offset 256
  .amdhsa_group_segment_fixed_size 0
  .amdhsa_kernarg_size 104
  .amdhsa_user_sgpr_count 2
  .amdhsa_user_sgpr_kernarg_segment_ptr 1
  .amdhsa_system_sgpr_workgroup_id_x 1
  .amdhsa_float_denorm_mode_32 3
.end_amdhsa_kernel
"""


def generate(**kw):
    g = Gen(**kw)
    body = g.build().replace("CPF_N", str(kw.get('cpfn', 17)))
    return HEADER.format(n=NAME) + body + FOOTER.format(n=NAME), g


if __name__ == "__main__":
    import argparse
    ap = argparse.ArgumentParser()
    ap.add_argument("-o", default="k.s"); ap.add_argument("--amap", type=int, default=2); ap.add_argument("--opts", default="")
    ap.add_argument("--dumps", default=""); ap.add_argument("--stamps", action="store_true"); ap.add_argument("--thr", type=int, default=30)
    A_ = ap.parse_args()
    txt, g = generate(amap=A_.amap, dumps=[d for d in A_.dumps.split(",") if d], stamps=A_.stamps, thr_log2=A_.thr, **eval('dict(%s)' % A_.opts))
    open(A_.o, "w").write(txt)
    print("lines", txt.count("\n"), "pads", g.npad, "stamps", g.stamp_names)
```
